```python
import torch

def _softmax(x, axis=-1):
    return torch.softmax(x, dim=axis)

def _gelu(x):
    return torch.nn.functional.gelu(x, approximate='tanh')

def _silu(x):
    return torch.nn.functional.silu(x)

def _sigmoid(x):
    return torch.sigmoid(x)

def _layernorm(x, axis=-1, eps=1e-05):
    m = x.mean(dim=axis, keepdim=True)
    v = x.var(dim=axis, keepdim=True, unbiased=False)
    return (x - m) / torch.sqrt(v + eps)

def _scatter_add(tgt, idx, src, axis=0):
    return tgt.clone().index_add_(axis, idx, src)

def _segment_sum(src, seg, n):
    out = torch.zeros((n,) + src.shape[1:], dtype=src.dtype)
    return out.index_add_(0, seg, src)

def _pad(x, pw):
    flat = tuple((v for pair in reversed(pw) for v in pair))
    return torch.nn.functional.pad(x, flat)
kernel_name = 'interleave_layers__memory_aug_recurrent_mem_tr__glu_gated_glu__prompt'

def setup_inputs():

    _w = lambda a: (lambda t: t.to(torch.bfloat16) if t.is_floating_point() else t)(torch.as_tensor(a))

    def _A_setup():
        B, S, Dm = (1, 2048, 448)
        H, Dh = (16, 256)
        M, seg = (8, 32)
        seg = min(seg, S)
        S = S // seg * seg
        return {'x': _w((lambda *s: torch.randn(*s, dtype=torch.bfloat16) * 0.05)(B, S, Dm)), 'mem0': _w((lambda *s: torch.randn(*s, dtype=torch.bfloat16) * 0.8)(B, M, Dm)), 'Wq': _w((lambda *s: torch.randn(*s, dtype=torch.bfloat16) * 0.8)(Dm, H, Dh) * Dm ** (-0.5)), 'Wk': _w((lambda *s: torch.randn(*s, dtype=torch.bfloat16) * 0.8)(Dm, H, Dh) * Dm ** (-0.5)), 'Wv': _w((lambda *s: torch.randn(*s, dtype=torch.bfloat16) * 0.8)(Dm, H, Dh) * Dm ** (-0.5)), 'Wo': _w((lambda *s: torch.randn(*s, dtype=torch.bfloat16) * 0.8)(H, Dh, Dm) * (H * Dh) ** (-0.5)), 'seg_len': seg}
    _A_in = _A_setup()

    def _B_setup():
        B, S, D, F = (1, 2048, 448, 1792)
        return {'x': _w((lambda *s: torch.randn(*s, dtype=torch.bfloat16) * 0.05)(B, S, D)), 'w_gate': _w((lambda *s: torch.randn(*s, dtype=torch.bfloat16) * 0.05)(D, F)), 'w_up': _w((lambda *s: torch.randn(*s, dtype=torch.bfloat16) * 0.05)(D, F)), 'w_down': _w((lambda *s: torch.randn(*s, dtype=torch.bfloat16) * 0.05)(F, D))}
    _B_in = _B_setup()
    return {'A_x': _A_in['x'], 'A_mem0': _A_in['mem0'], 'A_Wq': _A_in['Wq'], 'A_Wk': _A_in['Wk'], 'A_Wv': _A_in['Wv'], 'A_Wo': _A_in['Wo'], 'A_seg_len': _A_in['seg_len'], 'B_x': _B_in['x'], 'B_w_gate': _B_in['w_gate'], 'B_w_up': _B_in['w_up'], 'B_w_down': _B_in['w_down']}

def reference(A_x, A_mem0, A_Wq, A_Wk, A_Wv, A_Wo, A_seg_len, B_x, B_w_gate, B_w_up, B_w_down):

    def _A_ref(x, mem0, Wq, Wk, Wv, Wo, seg_len):
        B, S, Dm = x.shape
        H, Dh = (Wq.shape[1], Wq.shape[2])
        M = mem0.shape[1]
        scale = Dh ** (-0.5)
        n_seg = S // seg_len
        L = M + seg_len
        idx = torch.arange(L)
        mask = (idx[:, None] < M) | (idx[:, None] >= idx[None, :])
        mem = mem0
        outs = []
        for s in range(n_seg):
            xs = x[:, s * seg_len:(s + 1) * seg_len, :].clone()
            h = torch.concatenate([mem, xs], axis=1)
            q = torch.einsum('btd,dhe->bhte', h, Wq)
            k = torch.einsum('btd,dhe->bhte', h, Wk)
            v = torch.einsum('btd,dhe->bhte', h, Wv)
            scores = torch.einsum('bhqe,bhke->bhqk', q, k) * scale
            scores = torch.where(mask[None, None], scores, -1000000000.0)
            p = _softmax(scores, axis=-1)
            o = torch.einsum('bhqk,bhke->bhqe', p, v)
            o = torch.einsum('bhte,hed->btd', o, Wo)
            mem = o[:, :M, :].clone()
            outs.append(o[:, M:, :])
        return torch.concatenate(outs, axis=1)

    def _B_ref(x, w_gate, w_up, w_down):
        g = torch.einsum('bsd,df->bsf', x, w_gate)
        u = torch.einsum('bsd,df->bsf', x, w_up)
        h = _sigmoid(g) * u
        return torch.einsum('bsf,fd->bsd', h, w_down)
    x = A_x
    x = x + _A_ref(_layernorm(x, axis=-1), A_mem0, A_Wq, A_Wk, A_Wv, A_Wo, A_seg_len)
    x = x + _B_ref(_layernorm(x, axis=-1), B_w_gate, B_w_up, B_w_down)
    x = x + _A_ref(_layernorm(x, axis=-1), A_mem0, A_Wq, A_Wk, A_Wv, A_Wo, A_seg_len)
    x = x + _B_ref(_layernorm(x, axis=-1), B_w_gate, B_w_up, B_w_down)
    return x
```

```python
import re

def R(p, n, c=1):
    return f"{p}{n}" if c == 1 else f"{p}[{n}:{n+c-1}]"
def v(n, c=1): return R("v", n, c)
def a(n, c=1): return R("a", n, c)
def s(n, c=1): return R("s", n, c)

_reg = re.compile(r"^(-|abs\()?([vas])(?:(\d+)|\[(\d+):(\d+)\])\)?$")
def regs(op):
    op = op.strip()
    if op in ("vcc",): return {("s", 106), ("s", 107)}
    if op == "vcc_lo": return {("s", 106)}
    if op == "vcc_hi": return {("s", 107)}
    if op == "exec": return {("s", 126), ("s", 127)}
    if op == "m0": return {("s", 124)}
    m = _reg.match(op)
    if not m: return set()
    k = m.group(2)
    if m.group(3) is not None: return {(k, int(m.group(3)))}
    return {(k, i) for i in range(int(m.group(4)), int(m.group(5)) + 1)}

def split_ops(rest):
    out, depth, cur = [], 0, ""
    for ch in rest:
        if ch in "[(": depth += 1
        if ch in "])": depth -= 1
        if ch == "," and depth == 0:
            out.append(cur.strip()); cur = ""
        else: cur += ch
    if cur.strip(): out.append(cur.strip())
    return out

TRANS = ("v_exp_", "v_log_", "v_rcp_", "v_rsq_", "v_sqrt_", "v_sin_", "v_cos_")

class Ins:
    __slots__ = ("text", "mn", "kind", "w", "r", "srcC", "srcAB", "passes", "dpp", "perm", "rdlane", "trans", "stdata", "wide", "sread", "states", "target", "ldst", "ldsdma")
    def __init__(self, text):
        self.text = text
        t = text.split(";")[0].strip()
        parts = t.split(None, 1)
        mn = parts[0]; rest = parts[1] if len(parts) > 1 else ""
        self.mn = mn
        ops = split_ops(rest)
        if ops:
            last = ops[-1].split()
            mods = last[1:]; ops[-1] = last[0] if last else ""
        else: mods = []
        self.w = set(); self.r = set(); self.srcC = set(); self.srcAB = set(); self.passes = 0
        self.dpp = False; self.perm = False; self.rdlane = False; self.trans = False
        self.stdata = set(); self.wide = False; self.states = 1; self.target = None; self.ldst = set(); self.ldsdma = False
        allm = " ".join(mods) + " " + rest
        if mn.startswith("v_mfma"):
            self.kind = "mfma"
            self.w = regs(ops[0]); self.srcAB = regs(ops[1]) | regs(ops[2]); self.srcC = regs(ops[3])
            self.r = self.srcAB | self.srcC
            self.passes = 8 if "32x32" in mn else 4
        elif mn.startswith("v_"):
            self.kind = "valu"
            self.w = regs(ops[0])
            srcs = ops[1:]
            if "_co_" in mn or mn.startswith("v_div_scale"):
                self.w |= regs(ops[1]); srcs = ops[2:]
            for o in srcs: self.r |= regs(o)
            if mn.startswith("v_permlane"):
                self.perm = True; self.w |= regs(ops[1]); self.r |= regs(ops[0])
            if mn.startswith(("v_fmac", "v_pk_fmac", "v_writelane")): self.r |= regs(ops[0])
            if mn.startswith(("v_readlane", "v_readfirstlane")): self.rdlane = True
            if "_dpp" in mn or "row_" in allm or "quad_perm" in allm:
                self.dpp = True; self.r |= regs(ops[0])
            if mn.startswith(TRANS): self.trans = True
            if mn.startswith("v_cndmask") and len(ops) == 3: self.r |= regs("vcc")
            if mn.startswith("v_cmpx"): self.w |= regs("exec")
        elif mn.startswith(("buffer_", "global_")):
            self.kind = "vmem"
            if mn in ("buffer_inv", "buffer_wbl2"): pass
            elif "load" in mn:
                if " lds" in (" " + allm) or "_lds_" in mn:
                    self.ldsdma = True
                    for o in ops: self.r |= regs(o)
                    self.r |= regs("m0")
                else:
                    self.ldst = regs(ops[0]); self.w = set(self.ldst)
                    for o in ops[1:]: self.r |= regs(o)
            elif "store" in mn:
                if mn.startswith("buffer_"): self.stdata = regs(ops[0])
                else: self.stdata = regs(ops[1])
                self.wide = len(self.stdata) >= 3
                for o in ops: self.r |= regs(o)
            else:
                for o in ops: self.r |= regs(o)
                if "sc0" in allm: self.ldst = regs(ops[0]); self.w = set(self.ldst)
        elif mn.startswith("ds_"):
            self.kind = "ds"
            if mn.startswith(("ds_read", "ds_bpermute", "ds_permute", "ds_swizzle")):
                self.ldst = regs(ops[0]); self.w = set(self.ldst)
                for o in ops[1:]: self.r |= regs(o)
            else:
                for o in ops: self.r |= regs(o)
        elif mn.startswith("s_"):
            self.kind = "salu"
            if mn == "s_nop": self.states = int(ops[0], 0) + 1
            elif mn.startswith(("s_cbranch", "s_branch")): self.target = ops[0]
            elif mn.startswith(("s_cmp", "s_waitcnt", "s_barrier", "s_sleep", "s_endpgm", "s_setprio", "s_bitcmp")):
                for o in ops: self.r |= regs(o)
            else:
                if ops: self.w = regs(ops[0])
                for o in ops[1:]: self.r |= regs(o)
                if "saveexec" in mn: self.w |= regs("exec")
        else:
            raise ValueError("unknown instr " + text)

def isv(x): return x[0] in "va"
def need(p, c):
    n = 0
    vw = {x for x in p.w if isv(x)}; sw = {x for x in p.w if x[0] == "s"}
    if p.kind == "valu":
        if c.kind == "mfma" and vw & c.r: n = max(n, 2)
        if c.kind == "valu":
            if (c.dpp or c.perm) and vw & c.r: n = max(n, 2)
            if c.rdlane and vw & c.r: n = max(n, 1)
            if p.trans and not c.trans and vw & c.r: n = max(n, 1)
            if p.trans and c.trans and vw & c.r: n = max(n, 1)
            if sw & c.r: n = max(n, 4 if c.rdlane or c.mn.startswith("v_writelane") else 2)
            if c.mn.startswith("v_div_fmas") and sw: n = max(n, 4)
            if regs("exec") & sw: n = max(n, 5 if c.dpp else 4 if (c.rdlane or c.perm) else 0)
        if c.kind == "mfma" and regs("exec") & sw: n = max(n, 4)
        if c.kind == "vmem" and sw & c.r: n = max(n, 5)
        if c.kind == "salu" and sw & c.r: n = max(n, 1)
    if p.kind == "mfma":
        big = {4: 8, 8: 12}[p.passes]
        if c.kind == "mfma":
            if p.w & c.srcAB: n = max(n, big)
            if p.w & c.srcC and not (p.w == c.srcC and p.passes == c.passes): n = max(n, {4: 6, 8: 10}[p.passes])
            if p.w & c.w and not (p.w == c.srcC and p.passes == c.passes): n = max(n, {4: 6, 8: 10}[p.passes])
        elif c.kind in ("valu", "vmem", "ds"):
            if p.w & (c.r | c.w): n = max(n, big)
            if c.kind == "valu" and p.srcC & c.w: n = max(n, {4: 3, 8: 7}[p.passes])
            if c.kind in ("vmem", "ds") and p.srcC & c.ldst: n = max(n, {4: 3, 8: 7}[p.passes])
    if p.kind == "vmem" and p.wide:
        if p.stdata & c.w: n = max(n, 2 if c.kind in ("valu", "mfma") else 1)
    if p.kind == "salu" and ("s", 124) in p.w and (c.ldsdma or "addtid" in c.mn): n = max(n, 1)
    return n

WIN = 14
class Asm:
    def __init__(self):
        self.items = []
        self.uid = 0
    def __call__(self, text):
        for line in text.split("\n"):
            line = line.strip()
            if not line or line.startswith(";"): continue
            if line.endswith(":"): self.items.append(("l", line[:-1]))
            elif line.startswith("."): self.items.append(("t", line))
            else: self.items.append(("i", Ins(line)))
    def label(self, name): self.items.append(("l", name))
    def raw(self, text): self.items.append(("t", text))
    def new(self, base="L"):
        self.uid += 1; return f"{base}_{self.uid}"

    def _following(self, idx, limit):
        out = []; d = 0
        while idx < len(self.items) and d < limit:
            k, x = self.items[idx]
            if k == "i":
                out.append((d, x)); d += x.states
                if x.mn in ("s_branch", "s_endpgm"): break
            idx += 1
        return out

    def pad(self):
        changed = True; total = 0
        while changed:
            changed = False
            labels = {x: i for i, (k, x) in enumerate(self.items) if k == "l"}
            i = 0
            n = len(self.items)
            new_items = []
            hist = []
            for i in range(n):
                k, x = self.items[i]
                if k != "i":
                    new_items.append((k, x)); continue
                req = 0; d = 0
                for p in reversed(hist):
                    if d >= WIN: break
                    req = max(req, need(p, x) - d)
                    d += p.states
                if x.target is not None and x.target in labels:
                    foll = self._following(labels[x.target], WIN)
                    d = 1
                    for p in reversed(hist):
                        if d >= WIN: break
                        for (fd, c) in foll:
                            req = max(req, need(p, c) - d - fd)
                        d += p.states
                if req > 0:
                    while req > 0:
                        q = min(req, 16)
                        nop = Ins(f"s_nop {q-1}")
                        new_items.append(("i", nop)); hist.append(nop); req -= q
                    changed = True; total += 1
                new_items.append((k, x)); hist.append(x)
                if x.mn in ("s_branch", "s_endpgm"): hist = []
                if len(hist) > 40: hist = hist[-24:]
            self.items = new_items
        return total

    def text(self):
        out = []
        for k, x in self.items:
            if k == "i": out.append("  " + x.text)
            elif k == "l": out.append(x + ":")
            else: out.append(x)
        return "\n".join(out) + "\n"

class VM:
    def __init__(self, A): self.A = A; self.n = 0
    def issue(self, text):
        self.A(text); self.n += 1; return self.n
    def wait(self, idn):
        self.A(f"s_waitcnt vmcnt({self.n - idn})")
    def reset(self): self.n = 0
```

```python
from gen_common import *
from gen_main import *
import gen_main as GM
DLOOK = 2
SL = 58
NEG = -1e9 * LY.LOG2E

def poll_flags(A, vaddr, sflag, vt, code, sleep=1):
    p = Poll(A, code, sleep=sleep); p.begin()
    A(f"buffer_load_dword v{vt}, v{vaddr}, s[32:35], s{sflag} offen sc1")
    A("s_waitcnt vmcnt(0)")
    A(f"v_cmp_ne_u32 vcc, 1, v{vt}")
    p.end()

def flag_addr(A, sd, ftype, sseg, use_layer=True):
    if use_layer:
        A(f"s_lshl_b32 s{sd}, s{SL}, 6"); A(f"s_add_u32 s{sd}, s{sd}, s{sseg}"); A(f"s_lshl_b32 s{sd}, s{sd}, 7")
    else:
        A(f"s_lshl_b32 s{sd}, s{sseg}, 7")
    A(f"s_add_u32 s{sd}, s{sd}, {LY.flag_off(ftype,0,0)}")

def task_off(A, sd, sseg, bytes_per, base, use_layer=True):
    if use_layer:
        A(f"s_lshl_b32 s{sd}, s{SL}, 6"); A(f"s_add_u32 s{sd}, s{sd}, s{sseg}"); A(f"s_mul_i32 s{sd}, s{sd}, {bytes_per}")
    else:
        A(f"s_mul_i32 s{sd}, s{sseg}, {bytes_per}")
    A(f"s_add_u32 s{sd}, s{sd}, {base}")

def publish_flag(A, sflag, sidx, vt):
    A("s_waitcnt vmcnt(0)"); A("s_barrier")
    sk = A.new("pf")
    A(f"s_cmp_lg_u32 s{SW}, 0"); A(f"s_cbranch_scc1 {sk}")
    A(f"s_lshl_b32 s44, s{sidx}, 2"); A(f"v_mov_b32 v{vt}, s44"); A(f"v_mov_b32 v{vt+1}, 1")
    A("s_mov_b64 exec, 1")
    A(f"buffer_store_dword v{vt+1}, v{vt}, s[32:35], s{sflag} offen sc1")
    A("s_mov_b64 exec, -1")
    A.label(sk)

def stage28(A, ssrc, vwl, regs0, ldsbase):
    for i in range(7):
        if i == 4: A(f"s_add_u32 s{ssrc}, s{ssrc}, 4096")
        A(f"buffer_load_dwordx4 {v(regs0+i*4,4)}, v{vwl}, s[32:35], s{ssrc} offen offset:{(i%4)*1024} sc1")
    for i in range(7):
        A(f"s_waitcnt vmcnt({6-i})")
        A(f"ds_write_b128 v{vwl}, {v(regs0+i*4,4)} offset:{ldsbase+i*1024}")
    A("s_waitcnt lgkmcnt(0)"); A("s_barrier")

def xorsum(A, x, t):
    for op in ("v_permlane16_swap_b32", "v_permlane32_swap_b32"):
        A(f"v_mov_b32 v{t}, v{x}")
        A(f"{op} v{x}, v{t}")
        A(f"v_add_f32 v{x}, v{x}, v{t}")

def ln_epilogue(A, Y, T, vst_w, vst_r, vdst, sst, sdst, code):
    A(f"v_add_f32 v{T}, v{Y}, v{Y+1}"); A(f"v_add_f32 v{T+2}, v{Y+2}, v{Y+3}"); A(f"v_add_f32 v{T}, v{T}, v{T+2}")
    xorsum(A, T, T+2)
    A(f"v_mul_f32 v{T}, {f32(1/16)}, v{T}")
    for r in range(4): A(f"v_sub_f32 v{T+4+r}, v{Y+r}, v{T}")
    A(f"v_mul_f32 v{T+1}, v{T+4}, v{T+4}")
    for r in range(1, 4): A(f"v_fmac_f32 v{T+1}, v{T+4+r}, v{T+4+r}")
    xorsum(A, T+1, T+2)
    A(f"v_min_u32 v{T}, -2, v{T}"); A(f"v_min_u32 v{T+1}, -2, v{T+1}")
    A(f"buffer_store_dwordx2 {v(T,2)}, v{vst_w}, s[32:35], s{sst} offen sc1")
    Rr = T + 4
    p = Poll(A, code); p.begin()
    for q in range(3): A(f"buffer_load_dwordx4 {v(Rr+q*4,4)}, v{vst_r}, s[32:35], s{sst} offen offset:{q*16} sc1")
    A(f"buffer_load_dwordx2 {v(Rr+12,2)}, v{vst_r}, s[32:35], s{sst} offen offset:48 sc1")
    A("s_waitcnt vmcnt(0)")
    for t in chk_tree(A, range(Rr, Rr+14), T+2): A(t)
    p.end()
    A(f"v_add_f32 v{T}, v{Rr}, v{Rr+2}")
    for q in range(2, 7): A(f"v_add_f32 v{T}, v{T}, v{Rr+2*q}")
    xorsum(A, T, T+2)
    A(f"v_mul_f32 v{T}, {f32(1/28)}, v{T}")
    A(f"v_add_f32 v{T+1}, v{Rr+1}, v{Rr+3}")
    for q in range(2, 7): A(f"v_add_f32 v{T+1}, v{T+1}, v{Rr+2*q+1}")
    for q in range(7): A(f"v_sub_f32 v{Rr+2*q}, v{Rr+2*q}, v{T}")
    A(f"v_mul_f32 v{T+3}, v{Rr}, v{Rr}")
    for q in range(1, 7): A(f"v_fmac_f32 v{T+3}, v{Rr+2*q}, v{Rr+2*q}")
    A(f"v_fmac_f32 v{T+1}, 16.0, v{T+3}" if False else f"v_mul_f32 v{T+3}, {f32(16.0)}, v{T+3}")
    A(f"v_add_f32 v{T+1}, v{T+1}, v{T+3}")
    xorsum(A, T+1, T+2)
    A(f"v_mov_b32 v{T+2}, {f32(1e-5)}")
    A(f"v_fmac_f32 v{T+2}, {f32(1/448)}, v{T+1}")
    A(f"v_rsq_f32 v{T+2}, v{T+2}")
    for r in range(4): A(f"v_sub_f32 v{T+4+r}, v{Y+r}, v{T}")
    for r in range(4): A(f"v_mul_f32 v{T+4+r}, v{T+4+r}, v{T+2}")
    A(f"v_cvt_pk_bf16_f32 v{T+4}, v{T+4}, v{T+5}"); A(f"v_cvt_pk_bf16_f32 v{T+5}, v{T+6}, v{T+7}")
    A(f"buffer_store_dwordx2 {v(T+4,2)}, v{vdst}, s[32:35], s{sdst} offen sc1")

def epi_addrs(A, sslice, stt, vj, vg, vst_w, vst_r, vdst, vres, t):
    A(f"s_lshl_b32 s44, s{stt}, 4"); A(f"v_add_u32 v{t}, s44, v{vj}")
    A(f"v_mul_u32_u24 v{t}, 224, v{t}")
    A(f"v_mul_u32_u24 v{vst_r}, 56, v{vg}"); A(f"v_add_u32 v{vst_r}, v{vst_r}, v{t}")
    A(f"s_lshl_b32 s44, s{sslice}, 3"); A(f"v_add_u32 v{vst_w}, s44, v{t}")
    A(f"v_mov_b32 v{t}, {OOB}"); A(f"v_cmp_eq_u32 vcc, 0, v{vg}"); A(f"v_cndmask_b32 v{vst_w}, v{t}, v{vst_w}, vcc")
    A(f"s_mul_i32 s44, s{stt}, 14"); A(f"s_lshr_b32 s45, s{sslice}, 1"); A("s_add_u32 s44, s44, s45"); A("s_lshl_b32 s44, s44, 10")
    A(f"s_and_b32 s46, s{sslice}, 1"); A("s_lshl_b32 s47, s46, 3"); A("s_add_u32 s44, s44, s47")
    A(f"v_add_u32 v{vdst}, s44, v2")
    A(f"s_lshl_b32 s44, s45, 1"); A(f"s_add_u32 s44, s44, s{stt}"); A("s_lshl_b32 s44, s44, 11")
    A("s_lshl_b32 s47, s46, 4"); A("s_add_u32 s44, s44, s47")
    A(f"v_lshlrev_b32 v{vres}, 1, v2"); A(f"v_add_u32 v{vres}, s44, v{vres}")

def rowmajor_addr(A, sslice, stt, vj, vg, vd):
    A(f"s_lshl_b32 s44, s{stt}, 4"); A(f"v_add_u32 v{vd}, s44, v{vj}"); A(f"v_mul_u32_u24 v{vd}, 896, v{vd}")
    A(f"v_lshl_add_u32 v{vd}, v{vg}, 4, v{vd}")
    A(f"s_lshr_b32 s44, s{sslice}, 1"); A("s_lshl_b32 s44, s44, 6"); A(f"s_and_b32 s45, s{sslice}, 1"); A("s_lshl_b32 s45, s45, 3")
    A("s_add_u32 s44, s44, s45"); A(f"v_add_u32 v{vd}, s44, v{vd}")

def roleTA(A):
    SM, ST_, SH, SOWN, SMK = 60, 74, 59, 82, 86
    SS, SA, SB = 94, 95, 96
    ACC, FB, SC = 16, 72, 88
    acc = lambda j, tt: ACC + (j * 2 + tt) * 4
    LXS, LP = 0, 28672
    A(f"s_lshr_b32 s{SL}, s{SROLE}, 5"); A(f"s_sub_u32 s{SL}, s{SL}, 1")
    A(f"s_and_b32 s{SH}, s{SRANK}, 15")
    a_slots_setup(A, SM, ST_, SH)
    for i in range(4): A(f"s_mov_b32 s{SOWN+i}, s{SM+10+i}")
    for i in range(14): A(f"s_mov_b32 s{SM+i}, {i*1024}")
    load_A_weights(A, SM, ST_, wregA)
    A(f"s_lshl_b32 s97, s46, 3")
    A(f"s_mov_b32 s98, s46")
    A("v_and_b32 v9, 15, v1"); A("v_lshrrev_b32 v10, 4, v1")
    A(f"s_mul_i32 s45, s{SW}, 7168"); A("v_add_u32 v3, s45, v2")
    A(f"s_mul_i32 s45, s{SW}, 6656"); A(f"s_add_u32 s45, s45, {LP}")
    A("v_mul_u32_u24 v4, 208, v9"); A("v_lshl_add_u32 v4, v10, 4, v4"); A("v_add_u32 v4, s45, v4")
    A("v_lshrrev_b32 v9, 3, v0"); A("v_and_b32 v10, 7, v0")
    A("v_lshrrev_b32 v11, 1, v10"); A("v_lshlrev_b32 v11, 2, v11"); A("v_and_b32 v12, 1, v10"); A("v_lshl_add_u32 v11, v12, 4, v11")
    for r in range(4):
        A(f"v_add_u32 v12, {r}, v11"); A(f"v_cmp_le_u32 s[{SMK+2*r}:{SMK+2*r+1}], v12, v9")
    A("v_mul_u32_u24 v12, 208, v9"); A(f"v_add_u32 v12, {LP}, v12")
    A("v_lshl_add_u32 v5, v11, 2, v12"); A("v_add_u32 v5, 64, v5")
    A(f"s_lshl_b32 s45, s{SL}, 5"); A("v_lshl_add_u32 v6, v10, 2, v12"); A("v_add_u32 v6, s45, v6")
    A(f"s_mul_i32 s45, s{SH}, 2560")
    A("v_mul_u32_u24 v7, 80, v9"); A("v_add_u32 v7, s45, v7")
    A("v_lshl_add_u32 v8, v10, 1, v7"); A("v_add_u32 v8, 64, v8")
    A("v_lshl_add_u32 v7, v10, 3, v7")
    A("v_and_b32 v12, 1, v10"); A("v_cmp_eq_u32 vcc, 0, v12"); A(f"v_mov_b32 v12, {OOB}"); A("v_cndmask_b32 v8, v12, v8, vcc")
    A("v_min_u32 v13, 13, v1"); A("v_lshlrev_b32 v13, 2, v13")
    A(f"v_mov_b32 v14, {f32(NEG)}")
    A(f"s_lshr_b32 s{SS}, s{SRANK}, 4")
    top = A.new("ta"); A.label(top)
    A(f"s_mov_b32 s{SK}, s{SS}")
    nf = A.new("nf")
    A(f"s_cmp_eq_u32 s{SL}, 0"); A(f"s_cbranch_scc1 {nf}")
    flag_addr(A, SA, LY.FL_XS, SS, False)
    poll_flags(A, 13, SA, 9, 30)
    A.label(nf)
    task_off(A, SA, SS, 28672, LY.XS)
    stage28(A, SA, 3, ACC, LXS)
    for tt in range(2): A(f"ds_read_b128 {v(FB+tt*4,4)}, v2 offset:{LXS + tt*14336}")
    for kk in range(14):
        A("s_waitcnt lgkmcnt(0)")
        b = FB + (kk & 1) * 8; nb = FB + ((kk + 1) & 1) * 8
        n = 0
        for j in range(7):
            for tt in range(2):
                A(f"{MM} {v(acc(j,tt),4)}, {wregA(j,kk)}, {v(b+tt*4,4)}, {v(acc(j,tt),4) if kk else 0}")
                if kk < 13 and n in (0, 1): A(f"ds_read_b128 {v(nb+n*4,4)}, v2 offset:{LXS + n*14336 + (kk+1)*1024}")
                n += 1
    def pack(q, tt):
        a0 = acc(2*q, tt)
        A(f"v_cvt_pk_bf16_f32 v{a0}, v{a0}, v{a0+1}"); A(f"v_cvt_pk_bf16_f32 v{a0+1}, v{a0+2}, v{a0+3}")
        if q < 3:
            b0 = acc(2*q+1, tt)
            A(f"v_cvt_pk_bf16_f32 v{a0+2}, v{b0}, v{b0+1}"); A(f"v_cvt_pk_bf16_f32 v{a0+3}, v{b0+2}, v{b0+3}")
    sc = lambda kt, tt: SC + {(0,0): 0, (1,0): 4, (0,1): 8, (1,1): 12, (2,1): 16}[(kt, tt)]
    def keyread(ks):
        b = FB + (ks & 1) * 8
        A(f"v_add_u32 v9, s{SOWN+ks}, v2")
        if ks == 3: A("v_add_u32 v9, s97, v9")
        for tt in range(2):
            if ks < 3: A(f"ds_read_b128 {v(b+tt*4,4)}, v9 offset:{LXS + tt*14336}")
            else: A(f"ds_read_b64 {v(b+tt*4,2)}, v9 offset:{LXS + tt*14336}")
    keyread(0)
    for q in range(4):
        for tt in range(2): pack(q, tt)
    for ks in range(4):
        A("s_waitcnt lgkmcnt(0)")
        if ks < 3: keyread(ks + 1)
        b = FB + (ks & 1) * 8; w = 4 if ks < 3 else 2; op = MM if ks < 3 else MM16
        for (kt, tt) in ((1,0), (1,1), (2,1)):
            A(f"{op} {v(sc(kt,tt),4)}, {v(b+(kt-1)*4,w)}, {v(acc(2*ks,tt),w)}, {v(sc(kt,tt),4) if ks else 0}")
    MF = [acc(1,0), acc(1,1), acc(3,0), acc(3,1)]
    A(f"s_mul_i32 s44, s{SL}, {LY.LAG}"); A(f"s_add_u32 s44, s44, s{SS}"); A("s_mul_i32 s44, s44, 14336")
    A(f"s_add_u32 s44, s44, {LY.MB}"); A("v_add_u32 v9, s44, v2")
    p = Poll(A, 31, sleep=1); p.begin()
    for ks in range(4): A(f"buffer_load_dwordx4 {v(MF[ks],4)}, v9, s[32:35], s{SOWN+ks} offen sc1")
    A("s_waitcnt vmcnt(0)")
    for t in chk_tree(A, [MF[ks]+r for ks in range(4) for r in range(4)], 10): A(t)
    p.end()
    A(f"s_cmp_eq_u32 s98, 0"); A("s_cselect_b64 vcc, -1, 0")
    A(f"v_cndmask_b32 v{MF[3]}, v{MF[3]+2}, v{MF[3]}, vcc"); A(f"v_cndmask_b32 v{MF[3]+1}, v{MF[3]+3}, v{MF[3]+1}, vcc")
    for ks in range(4):
        w = 4 if ks < 3 else 2; op = MM if ks < 3 else MM16
        for tt in range(2):
            A(f"{op} {v(sc(0,tt),4)}, {v(MF[ks],w)}, {v(acc(2*ks,tt),w)}, {v(sc(0,tt),4) if ks else 0}")
    for (kt, tt) in ((1,0), (1,1), (2,1), (0,0), (0,1)):
        A(f"ds_write_b128 v4, {v(sc(kt,tt),4)} offset:{tt*16*208 + kt*64}")
    A("s_waitcnt lgkmcnt(0)"); A("s_barrier")
    T = ACC
    for w in range(4): A(f"ds_read_b128 {v(T+w*4,4)}, v5 offset:{w*6656}")
    for w in range(4): A(f"ds_read_b32 v{T+16+w}, v6 offset:{w*6656}")
    A("s_waitcnt lgkmcnt(0)")
    for r in range(4):
        A(f"v_add_f32 v{T+r}, v{T+r}, v{T+4+r}"); A(f"v_add_f32 v{T+8+r}, v{T+8+r}, v{T+12+r}")
    A(f"v_add_f32 v{T+16}, v{T+16}, v{T+17}"); A(f"v_add_f32 v{T+18}, v{T+18}, v{T+19}")
    for r in range(4): A(f"v_add_f32 v{T+r}, v{T+r}, v{T+8+r}")
    A(f"v_add_f32 v{T+4}, v{T+16}, v{T+18}")
    for r in range(4): A(f"v_cndmask_b32 v{T+r}, v14, v{T+r}, s[{SMK+2*r}:{SMK+2*r+1}]")
    A(f"v_max3_f32 v{T+5}, v{T}, v{T+1}, v{T+2}"); A(f"v_max3_f32 v{T+5}, v{T+5}, v{T+3}, v{T+4}")
    dpp_reduce8(A, "v_max_f32", T+5, None)
    for r in range(5): A(f"v_sub_f32 v{T+r}, v{T+r}, v{T+5}")
    for r in range(5): A(f"v_exp_f32 v{T+r}, v{T+r}")
    A(f"v_add_f32 v{T+5}, v{T}, v{T+1}"); A(f"v_add_f32 v{T+6}, v{T+2}, v{T+3}")
    A(f"v_add_f32 v{T+5}, v{T+5}, v{T+4}"); A(f"v_add_f32 v{T+5}, v{T+5}, v{T+6}")
    dpp_reduce8(A, "v_add_f32", T+5, None)
    A(f"v_rcp_f32 v{T+5}, v{T+5}")
    for r in range(5): A(f"v_mul_f32 v{T+r}, v{T+r}, v{T+5}")
    A(f"v_mov_b32_dpp v{T+6}, v{T+4} quad_perm:[1,0,3,2] row_mask:0xf bank_mask:0xf")
    A(f"v_cvt_pk_bf16_f32 v{T}, v{T}, v{T+1}"); A(f"v_cvt_pk_bf16_f32 v{T+1}, v{T+2}, v{T+3}")
    A(f"v_cvt_pk_bf16_f32 v{T+4}, v{T+4}, v{T+6}")
    task_off(A, SA, SS, 40960, LY.PT)
    A(f"buffer_store_dwordx2 {v(T,2)}, v7, s[32:35], s{SA} offen sc1")
    A(f"buffer_store_dword v{T+4}, v8, s[32:35], s{SA} offen sc1")
    flag_addr(A, SB, LY.FL_P, SS)
    publish_flag(A, SB, SH, 9)
    A(f"s_add_u32 s{SS}, s{SS}, 2"); A(f"s_cmp_lt_u32 s{SS}, 64"); A(f"s_cbranch_scc1 {top}")
    A("s_endpgm")

def roleUO(A):
    SI, SS, SA, SB, SC_, STT = 60, 61, 62, 63, 64, 65
    ACC, FB, STG, PX, PM, UR, D, Y, T = 24, 56, 72, 104, 136, 152, 168, 176, 180
    LXS, LMS, LRING, LRED = 0, 28672, 43008, 43008 + 65536
    wreg = lambda hh, kk: a((hh * 14 + kk) * 4, 4)
    A(f"s_lshr_b32 s{SL}, s{SROLE}, 5"); A(f"s_sub_u32 s{SL}, s{SL}, 3")
    srd(A, 40, "x")
    for hh in range(4):
        A(f"s_lshl_b32 s44, s{SRANK}, 4"); A(f"s_lshl_b32 s45, s{SW}, 2"); A("s_add_u32 s44, s44, s45"); A(f"s_add_u32 s44, s44, {hh}")
        A("s_mul_i32 s44, s44, 14336"); A(f"s_add_u32 s44, s44, {LY.BF}")
        for kk in range(14):
            A(f"buffer_load_dwordx4 {wreg(hh,kk)}, v2, s[32:35], s44 offen offset:{(kk%4)*1024}")
            if kk % 4 == 3: A("s_add_u32 s44, s44, 4096")
    A("v_and_b32 v9, 15, v1"); A("v_lshrrev_b32 v10, 4, v1")
    A(f"s_mul_i32 s45, s{SW}, 7168"); A("v_add_u32 v3, s45, v2")
    A(f"s_lshl_b32 s45, s{SW}, 10"); A("v_add_u32 v4, s45, v2")
    A(f"s_lshl_b32 s45, s{SW}, 12"); A("v_add_u32 v5, s45, v2")
    A(f"s_mul_i32 s45, s{SW}, 10240")
    A("v_mul_u32_u24 v6, 80, v9"); A("v_add_u32 v6, s45, v6")
    A("v_and_b32 v11, 1, v10"); A("v_lshl_add_u32 v7, v11, 3, v6"); A("v_add_u32 v7, 64, v7")
    A("v_lshl_add_u32 v6, v10, 4, v6")
    A("v_lshrrev_b32 v11, 1, v10"); A(f"v_cmp_eq_u32 vcc, s{SL}, v11"); A(f"v_mov_b32 v11, {OOB}"); A("v_cndmask_b32 v7, v11, v7, vcc")
    A("v_min_u32 v8, 13, v1"); A("v_lshlrev_b32 v8, 2, v8")
    A("v_and_b32 v12, 3, v1"); A(f"s_lshl_b32 s45, s{SW}, 2"); A("v_add_u32 v12, s45, v12"); A("v_lshlrev_b32 v12, 2, v12")
    A(f"s_lshl_b32 s45, s{SW}, 11"); A(f"s_add_u32 s45, s45, {LRED}"); A("v_add_u32 v13, s45, v2")
    A(f"s_and_b32 s{STT}, s{SW}, 1")
    A(f"s_lshl_b32 s45, s{STT}, 10"); A(f"s_add_u32 s45, s45, {LRED}"); A("v_add_u32 v14, s45, v2")
    epi_addrs(A, SRANK, STT, 9, 10, 15, 16, 17, 18, 11)
    rowmajor_addr(A, SRANK, STT, 9, 10, 19)
    A(f"s_mov_b32 s{SI}, {-DLOOK}")
    top = A.new("uo"); A.label(top)
    noU = A.new("noU")
    A(f"s_add_i32 s{SS}, s{SI}, {DLOOK}"); A(f"s_mov_b32 s{SK}, s{SS}")
    A(f"s_cmp_ge_i32 s{SS}, 64"); A(f"s_cbranch_scc1 {noU}")
    nf = A.new("nf")
    A(f"s_cmp_eq_u32 s{SL}, 0"); A(f"s_cbranch_scc1 {nf}")
    flag_addr(A, SA, LY.FL_XS, SS, False)
    poll_flags(A, 8, SA, 9, 40)
    A.label(nf)
    task_off(A, SA, SS, 28672, LY.XS)
    stage28(A, SA, 3, STG, LXS)
    for tt in range(2): A(f"ds_read_b128 {v(FB+tt*4,4)}, v2 offset:{LXS + tt*14336}")
    for kk in range(14):
        A("s_waitcnt lgkmcnt(0)")
        b = FB + (kk & 1) * 8; nb = FB + ((kk + 1) & 1) * 8; n = 0
        for hh in range(4):
            for tt in range(2):
                r = ACC + (hh * 2 + tt) * 4
                A(f"{MM} {v(r,4)}, {v(b+tt*4,4)}, {wreg(hh,kk)}, {v(r,4) if kk else 0}")
                if kk < 13 and n in (0, 1): A(f"ds_read_b128 {v(nb+n*4,4)}, v2 offset:{LXS + n*14336 + (kk+1)*1024}")
                n += 1
    task_off(A, SA, SS, 448 * 1024, LY.U); A(f"s_lshl_b32 s44, s{SRANK}, 14"); A(f"s_add_u32 s{SA}, s{SA}, s44")
    A(f"s_and_b32 s44, s{SS}, 3"); A("s_lshl_b32 s44, s44, 14"); A(f"s_add_u32 s44, s44, {LRING}"); A("v_add_u32 v9, s44, v5")
    for hh in range(4):
        a0 = ACC + hh * 8; b0 = a0 + 4
        A(f"v_cvt_pk_bf16_f32 v{a0}, v{a0}, v{a0+1}"); A(f"v_cvt_pk_bf16_f32 v{a0+1}, v{a0+2}, v{a0+3}")
        A(f"v_cvt_pk_bf16_f32 v{a0+2}, v{b0}, v{b0+1}"); A(f"v_cvt_pk_bf16_f32 v{a0+3}, v{b0+2}, v{b0+3}")
        A(f"buffer_store_dwordx4 {v(a0,4)}, v5, s[32:35], s{SA} offen offset:{hh*1024} sc1")
        A(f"ds_write_b128 v9, {v(a0,4)} offset:{hh*1024}")
    flag_addr(A, SB, LY.FL_U, SS)
    publish_flag(A, SB, SRANK, 9)
    A.label(noU)
    noO = A.new("noO")
    A(f"s_cmp_lt_i32 s{SI}, 0"); A(f"s_cbranch_scc1 {noO}")
    A(f"s_mov_b32 s{SS}, s{SI}"); A(f"s_mov_b32 s{SK}, s{SS}")
    A(f"s_mul_i32 s44, s{SL}, {LY.LAG}"); A(f"s_add_u32 s44, s44, s{SS}"); A("s_mul_i32 s44, s44, 14336")
    A(f"s_add_u32 s44, s44, {LY.MB}"); A("v_add_u32 v9, s44, v4")
    A(f"s_cmp_lt_u32 s{SW}, 2"); A("s_cselect_b32 s46, 12288, s77")
    p = Poll(A, 41, sleep=1); p.begin()
    for q, so in enumerate(("0", "s76", "s77", "s46")):
        A(f"buffer_load_dwordx4 {v(STG+q*4,4)}, v9, s[32:35], {so} offen sc1")
    A("s_waitcnt vmcnt(0)")
    for t in chk_tree(A, range(STG, STG+16), 10): A(t)
    p.end()
    A("v_add_u32 v9, s46, v4")
    for q in range(3): A(f"ds_write_b128 v4, {v(STG+q*4,4)} offset:{LMS + q*4096}")
    A(f"ds_write_b128 v9, {v(STG+12,4)} offset:{LMS}")
    res = A.new("res"); resd = A.new("resd")
    A(f"s_cmp_eq_u32 s{SL}, 0"); A(f"s_cbranch_scc0 {res}")
    A(f"s_mul_i32 s44, s{SS}, 28672")
    A(f"buffer_load_dwordx2 {v(Y+2,2)}, v19, s[40:43], s44 offen")
    A(f"s_branch {resd}")
    A.label(res)
    task_off(A, SA, SS, 57344, LY.X2F, False)
    A(f"buffer_load_dwordx4 {v(Y,4)}, v18, s[32:35], s{SA} offen sc1")
    A.label(resd)
    A(f"s_and_b32 s44, s{SS}, 3"); A("s_lshl_b32 s44, s44, 14"); A(f"s_add_u32 s44, s44, {LRING}"); A("v_add_u32 v9, s44, v5")
    for hh in range(4): A(f"ds_read_b128 {v(UR+hh*4,4)}, v9 offset:{hh*1024}")
    A("s_waitcnt lgkmcnt(0)"); A("s_barrier")
    A(f"ds_read_b128 {v(FB,4)}, v2 offset:{LMS}")
    for kk in range(14):
        A("s_waitcnt lgkmcnt(0)")
        for hh in range(4):
            r = ACC + hh * 4
            A(f"{MM} {v(r,4)}, {v(FB+(kk&1)*4,4)}, {wreg(hh,kk)}, {v(r,4) if kk else 0}")
            if kk < 13 and hh == 0: A(f"ds_read_b128 {v(FB+((kk+1)&1)*4,4)}, v2 offset:{LMS + (kk+1)*1024}")
    for pq in range(2):
        a0 = ACC + pq * 8; b0 = a0 + 4
        A(f"v_cvt_pk_bf16_f32 v{a0}, v{a0}, v{a0+1}"); A(f"v_cvt_pk_bf16_f32 v{a0+1}, v{a0+2}, v{a0+3}")
        A(f"v_cvt_pk_bf16_f32 v{a0+2}, v{b0}, v{b0+1}"); A(f"v_cvt_pk_bf16_f32 v{a0+3}, v{b0+2}, v{b0+3}")
    flag_addr(A, SB, LY.FL_P, SS)
    poll_flags(A, 12, SB, 9, 42, sleep=0)
    task_off(A, SA, SS, 40960, LY.PT)
    vm = VM(A); idm = {}; idx = {}
    for half in range(2):
        A(f"s_add_u32 s{66+half}, s{SA}, {half*5120}"); A(f"s_add_u32 s{68+half}, s{SA}, {half*5120 + 2560}")
    so = lambda hh: f"s{66 + (hh >> 1) + 2 * (hh & 1)}"
    pm = lambda pq, tt: PM + (pq * 2 + tt) * 4
    for hh in range(4):
        for tt in range(2):
            idm[(hh, tt)] = vm.issue(f"buffer_load_dwordx2 {v(pm(hh>>1,tt)+(hh&1)*2,2)}, v7, s[32:35], {so(hh)} offen offset:{tt*1280} sc1")
    for hh in range(4):
        for tt in range(2):
            idx[(hh, tt)] = vm.issue(f"buffer_load_dwordx4 {v(PX+(hh*2+tt)*4,4)}, v6, s[32:35], {so(hh)} offen offset:{tt*1280} sc1")
    vm.wait(idm[(3, 1)])
    for pq in range(2):
        for tt in range(2):
            A(f"{MM} {v(D+tt*4,4)}, {v(ACC+pq*8,4)}, {v(pm(pq,tt),4)}, {v(D+tt*4,4) if pq else 0}")
    for hh in range(4):
        vm.wait(idx[(hh, 1)])
        for tt in range(2):
            A(f"{MM} {v(D+tt*4,4)}, {v(UR+hh*4,4)}, {v(PX+(hh*2+tt)*4,4)}, {v(D+tt*4,4)}")
    for tt in range(2): A(f"ds_write_b128 v13, {v(D+tt*4,4)} offset:{tt*1024}")
    A("s_waitcnt lgkmcnt(0)"); A("s_barrier")
    ne = A.new("noepi")
    A(f"s_cmp_ge_u32 s{SW}, 2"); A(f"s_cbranch_scc1 {ne}")
    for w in range(4): A(f"ds_read_b128 {v(PX+w*4,4)}, v14 offset:{w*2048}")
    r2 = A.new("r2")
    A(f"s_cmp_eq_u32 s{SL}, 0"); A(f"s_cbranch_scc0 {r2}")
    A(f"v_lshlrev_b32 v{Y}, 16, v{Y+2}"); A(f"v_and_b32 v{Y+1}, 0xffff0000, v{Y+2}")
    A(f"v_lshlrev_b32 v{Y+2}, 16, v{Y+3}"); A(f"v_and_b32 v{Y+3}, 0xffff0000, v{Y+3}")
    A.label(r2)
    A("s_waitcnt lgkmcnt(0)")
    for r in range(4):
        A(f"v_add_f32 v{PX+r}, v{PX+r}, v{PX+4+r}"); A(f"v_add_f32 v{PX+8+r}, v{PX+8+r}, v{PX+12+r}")
    for r in range(4): A(f"v_add_f32 v{PX+r}, v{PX+r}, v{PX+8+r}")
    for r in range(4): A(f"v_add_f32 v{Y+r}, v{Y+r}, v{PX+r}")
    task_off(A, SA, SS, 57344, LY.X1F)
    A(f"buffer_store_dwordx4 {v(Y,4)}, v18, s[32:35], s{SA} offen sc1")
    task_off(A, SA, SS, 7168, LY.ST)
    task_off(A, SC_, SS, 28672, LY.XN)
    ln_epilogue(A, Y, T, 15, 16, 17, SA, SC_, 43)
    A.label(ne)
    flag_addr(A, SB, LY.FL_XN, SS)
    publish_flag(A, SB, SRANK, 9)
    A.label(noO)
    A(f"s_add_i32 s{SI}, s{SI}, 1"); A(f"s_cmp_lt_i32 s{SI}, 64"); A(f"s_cbranch_scc1 {top}")
    A("s_endpgm")

def roleF1(A):
    SS, SA, SB = 61, 62, 63
    ACC, FB, STG = 24, 56, 72
    wreg = lambda n, kk: a((n * 14 + kk) * 4, 4)
    for n in range(4):
        mat, b = n >> 1, n & 1
        A(f"s_lshl_b32 s44, s{SRANK}, 2"); A(f"s_add_u32 s44, s44, s{SW}"); A("s_lshl_b32 s44, s44, 1"); A(f"s_add_u32 s44, s44, {b}")
        A("s_mul_i32 s44, s44, 14336"); A(f"s_add_u32 s44, s44, {LY.UFW if mat else LY.GF}")
        for kk in range(14):
            A(f"buffer_load_dwordx4 {wreg(n,kk)}, v2, s[32:35], s44 offen offset:{(kk%4)*1024}")
            if kk % 4 == 3: A("s_add_u32 s44, s44, 4096")
    A(f"s_mul_i32 s45, s{SW}, 7168"); A("v_add_u32 v3, s45, v2")
    A("v_min_u32 v8, 27, v1"); A("v_lshlrev_b32 v8, 2, v8")
    A(f"s_lshl_b32 s44, s{SRANK}, 2"); A(f"s_add_u32 s44, s44, s{SW}"); A("s_lshl_b32 s44, s44, 11"); A("v_add_u32 v4, s44, v2")
    A(f"s_mov_b32 s{SS}, 0")
    top = A.new("f1"); A.label(top)
    A(f"s_mov_b32 s{SK}, s{SS}")
    flag_addr(A, SA, LY.FL_XN, SS)
    poll_flags(A, 8, SA, 9, 50, sleep=0)
    task_off(A, SA, SS, 28672, LY.XN)
    stage28(A, SA, 3, STG, 0)
    for tt in range(2): A(f"ds_read_b128 {v(FB+tt*4,4)}, v2 offset:{tt*14336}")
    for kk in range(14):
        A("s_waitcnt lgkmcnt(0)")
        b = FB + (kk & 1) * 8; nb = FB + ((kk + 1) & 1) * 8; c = 0
        for n in range(4):
            for tt in range(2):
                r = ACC + (n * 2 + tt) * 4
                A(f"{MM} {v(r,4)}, {wreg(n,kk)}, {v(b+tt*4,4)}, {v(r,4) if kk else 0}")
                if kk < 13 and c in (0, 1): A(f"ds_read_b128 {v(nb+c*4,4)}, v2 offset:{c*14336 + (kk+1)*1024}")
                c += 1
    task_off(A, SA, SS, 114688, LY.HH)
    for tt in range(2):
        G = [ACC + (b * 2 + tt) * 4 + r for b in range(2) for r in range(4)]
        Uu = [ACC + ((2 + b) * 2 + tt) * 4 + r for b in range(2) for r in range(4)]
        for g in G: A(f"v_mul_f32 v{g}, {f32(-LY.LOG2E)}, v{g}")
        for g in G: A(f"v_exp_f32 v{g}, v{g}")
        for g in G: A(f"v_add_f32 v{g}, 1.0, v{g}")
        for g in G: A(f"v_rcp_f32 v{g}, v{g}")
        for g, u in zip(G, Uu): A(f"v_mul_f32 v{g}, v{g}, v{u}")
        o = STG + tt * 4
        for q in range(4): A(f"v_cvt_pk_bf16_f32 v{o+q}, v{G[2*q]}, v{G[2*q+1]}")
        A(f"buffer_store_dwordx4 {v(o,4)}, v4, s[32:35], s{SA} offen offset:{tt*1024} sc1")
    flag_addr(A, SB, LY.FL_HH, SS)
    publish_flag(A, SB, SRANK, 9)
    A(f"s_add_u32 s{SS}, s{SS}, 1"); A(f"s_cmp_lt_u32 s{SS}, 64"); A(f"s_cbranch_scc1 {top}")
    A("s_endpgm")

def roleF2(A):
    SS, SA, SB, SC_, SJ, STT, SSL = 61, 62, 63, 64, 65, 66, 67
    D, Y, T, HB = 24, 40, 44, 64
    wreg = lambda ct, i: a((ct * 14 + i) * 4, 4)
    srd(A, 40, "out")
    A(f"s_sub_u32 s{SJ}, s{SRANK}, 14")
    for ct in range(2):
        A(f"s_lshl_b32 s44, s{SJ}, 1"); A(f"s_add_u32 s44, s44, {ct}"); A("s_mul_i32 s44, s44, 56")
        A(f"s_mul_i32 s45, s{SW}, 14"); A("s_add_u32 s44, s44, s45"); A("s_lshl_b32 s44, s44, 10"); A(f"s_add_u32 s44, s44, {LY.DF}")
        for i in range(14):
            A(f"buffer_load_dwordx4 {wreg(ct,i)}, v2, s[32:35], s44 offen offset:{(i%4)*1024}")
            if i % 4 == 3: A("s_add_u32 s44, s44, 4096")
    A("v_and_b32 v9, 15, v1"); A("v_lshrrev_b32 v10, 4, v1")
    A(f"s_mul_i32 s45, s{SW}, 28672"); A("v_add_u32 v3, s45, v2")
    A("v_min_u32 v8, 13, v1"); A("v_lshlrev_b32 v8, 2, v8")
    A(f"s_lshl_b32 s45, s{SW}, 12"); A("v_add_u32 v13, s45, v2")
    A(f"s_and_b32 s{STT}, s{SW}, 1"); A(f"s_lshr_b32 s44, s{SW}, 1"); A(f"s_lshl_b32 s{SSL}, s{SJ}, 1"); A(f"s_add_u32 s{SSL}, s{SSL}, s44")
    A(f"s_lshl_b32 s45, s{SW}, 10"); A("v_add_u32 v14, s45, v2")
    epi_addrs(A, SSL, STT, 9, 10, 15, 16, 17, 18, 11)
    rowmajor_addr(A, SSL, STT, 9, 10, 19)
    A(f"s_mov_b32 s{SS}, 0")
    top = A.new("f2"); A.label(top)
    A(f"s_mov_b32 s{SK}, s{SS}")
    flag_addr(A, SA, LY.FL_HH, SS)
    poll_flags(A, 8, SA, 9, 60, sleep=0)
    task_off(A, SA, SS, 114688, LY.HH)
    vm = VM(A); ids = {}
    for n in range(28):
        ids[n] = vm.issue(f"buffer_load_dwordx4 {v(HB+n*4,4)}, v3, s[32:35], s{SA} offen offset:{(n%4)*1024} sc1")
        if n % 4 == 3: A(f"s_add_u32 s{SA}, s{SA}, 4096")
    task_off(A, SA, SS, 57344, LY.X1F)
    vm.issue(f"buffer_load_dwordx4 {v(Y,4)}, v18, s[32:35], s{SA} offen sc1")
    for i in range(14):
        vm.wait(ids[2*i+1])
        for ct in range(2):
            for tt in range(2):
                r = D + (ct * 2 + tt) * 4
                A(f"{MM} {v(r,4)}, {wreg(ct,i)}, {v(HB+(2*i+tt)*4,4)}, {v(r,4) if i else 0}")
    for q in range(4): A(f"ds_write_b128 v13, {v(D+q*4,4)} offset:{q*1024}")
    A("s_waitcnt lgkmcnt(0)"); A("s_barrier")
    for w in range(4): A(f"ds_read_b128 {v(HB+w*4,4)}, v14 offset:{w*4096}")
    A("s_waitcnt vmcnt(0) lgkmcnt(0)")
    for r in range(4):
        A(f"v_add_f32 v{HB+r}, v{HB+r}, v{HB+4+r}"); A(f"v_add_f32 v{HB+8+r}, v{HB+8+r}, v{HB+12+r}")
    for r in range(4): A(f"v_add_f32 v{HB+r}, v{HB+r}, v{HB+8+r}")
    for r in range(4): A(f"v_add_f32 v{Y+r}, v{Y+r}, v{HB+r}")
    last = A.new("last"); nxt = A.new("nxt")
    A(f"s_cmp_eq_u32 s{SL}, 0"); A(f"s_cbranch_scc0 {last}")
    task_off(A, SA, SS, 57344, LY.X2F, False)
    A(f"buffer_store_dwordx4 {v(Y,4)}, v18, s[32:35], s{SA} offen sc1")
    task_off(A, SA, SS, 7168, LY.ST + 2*64*7168, False)
    task_off(A, SC_, SS, 28672, LY.XS + 64*28672, False)
    ln_epilogue(A, Y, T, 15, 16, 17, SA, SC_, 61)
    flag_addr(A, SB, LY.FL_XS, SS, False)
    publish_flag(A, SB, SJ, 9)
    A(f"s_branch {nxt}")
    A.label(last)
    A(f"v_cvt_pk_bf16_f32 v{Y}, v{Y}, v{Y+1}"); A(f"v_cvt_pk_bf16_f32 v{Y+1}, v{Y+2}, v{Y+3}")
    A(f"s_mul_i32 s44, s{SS}, 28672")
    A(f"buffer_store_dwordx2 {v(Y,2)}, v19, s[40:43], s44 offen")
    A("s_barrier")
    A.label(nxt)
    A(f"s_add_u32 s{SS}, s{SS}, 1"); A(f"s_cmp_lt_u32 s{SS}, 64"); A(f"s_cbranch_scc1 {top}")
    A("s_endpgm")

def roleF(A):
    A(f"s_lshr_b32 s{SL}, s{SROLE}, 5"); A(f"s_sub_u32 s{SL}, s{SL}, 5")
    A(f"s_cmp_ge_u32 s{SRANK}, 14"); A("s_cbranch_scc1 r_F2")
    roleF1(A)
    A.label("r_F2"); roleF2(A)

def gen_all(A, n0, n1):
    import gen_k0
    d0 = gen_k0.gen_k0(A, n0)
    d1 = gen_k1(A, n1, [(32, 96, "r_TA"), (96, 160, "r_UO"), (160, 224, "r_F")])
    A.label("r_TA"); roleTA(A)
    A.label("r_UO"); roleUO(A)
    A.label("r_F"); roleF(A)
    return d0 + d1
```

```python
import struct
from asmlib import *
import layout as LY

def f32(x): return "0x%08x" % struct.unpack("<I", struct.pack("<f", x))[0]

ARG = dict(x=4, mem0=6, wq=8, wk=10, wv=12, wo=14, wg=20, wu=22, wd=24, out=26, dbg=28, ws=30)
NB = dict(x=2048*448*2, mem0=8*448*2, wq=448*4096*2, wk=448*4096*2, wv=448*4096*2, wo=448*4096*2,
          wg=448*1792*2, wu=448*1792*2, wd=448*1792*2, out=2048*448*2, dbg=256, ws=LY.WS_BYTES)
WS = 32

def load_args(A):
    A("s_load_dwordx16 s[4:19], s[0:1], 0")
    A("s_load_dwordx8 s[20:27], s[0:1], 64")
    A("s_load_dwordx4 s[28:31], s[0:1], 96")
    A("s_waitcnt lgkmcnt(0)")

def srd(A, d, name, nbytes=None):
    p = ARG[name]
    A(f"s_mov_b32 s{d}, s{p}")
    A(f"s_and_b32 s{d+1}, s{p+1}, 0xffff")
    A(f"s_mov_b32 s{d+2}, {nbytes if nbytes is not None else NB[name]}")
    A(f"s_mov_b32 s{d+3}, 0x20000")

def sdiv(A, q, r, x, d, tmp):
    A(f"s_mov_b32 s{tmp}, {-(-(1 << 32) // d)}")
    A(f"s_mul_hi_u32 s{q}, s{x}, s{tmp}")
    A(f"s_mul_i32 s{tmp}, s{q}, {d}")
    A(f"s_sub_u32 s{r}, s{x}, s{tmp}")

def kernel_head(A, name):
    A.raw(".text"); A.raw(f".globl {name}"); A.raw(".p2align 8"); A.raw(f".type {name},@function"); A.label(name)

def kernel_desc(name, nvgpr, accum, nsgpr=102):
    return f""".section .rodata,"a"
.p2align 6
.amdhsa_kernel {name}
  .amdhsa_next_free_vgpr {nvgpr}
  .amdhsa_next_free_sgpr {nsgpr}
  .amdhsa_accum_offset {accum}
  .amdhsa_group_segment_fixed_size 0
  .amdhsa_kernarg_size 112
  .amdhsa_user_sgpr_count 2
  .amdhsa_user_sgpr_kernarg_segment_ptr 1
  .amdhsa_system_sgpr_workgroup_id_x 1
.end_amdhsa_kernel
"""

def wave_lane(A, sw, vl):
    A(f"v_lshrrev_b32 v{vl}, 6, v0")
    A(f"v_readfirstlane_b32 s{sw}, v{vl}")
    A(f"v_and_b32 v{vl}, 63, v0")

def dpp_reduce8(A, op, x, t):
    for ctl in ("quad_perm:[1,0,3,2]", "quad_perm:[2,3,0,1]", "row_half_mirror"):
        A(f"{op}_dpp v{x}, v{x}, v{x} {ctl} row_mask:0xf bank_mask:0xf")

def dpp_reduce16(A, op, x):
    for ctl in ("quad_perm:[1,0,3,2]", "quad_perm:[2,3,0,1]", "row_half_mirror", "row_mirror"):
        A(f"{op}_dpp v{x}, v{x}, v{x} {ctl} row_mask:0xf bank_mask:0xf")
```

```python
from gen_common import *

K0_NWG = 520
K0_LDS = 2 * 30720
MM = "v_mfma_f32_16x16x32_bf16"

def stage_addrs(A, vg, vl, stride, tmp, st):
    A(f"s_mov_b32 s{st}, {-(-(1 << 32) // 56)}")
    for i in range(7):
        A(f"v_add_u32 v{tmp}, {256*i}, v0")
        A(f"v_mul_hi_u32 v{tmp+1}, v{tmp}, s{st}")
        A(f"v_mul_u32_u24 v{tmp+2}, 56, v{tmp+1}")
        A(f"v_sub_u32 v{tmp}, v{tmp}, v{tmp+2}")
        A(f"v_lshlrev_b32 v{tmp}, 4, v{tmp}")
        A(f"v_mul_u32_u24 v{tmp+2}, {stride}, v{tmp+1}")
        A(f"v_add_u32 v{vg+i}, v{tmp}, v{tmp+2}")
        A(f"v_mul_u32_u24 v{tmp+2}, 960, v{tmp+1}")
        A(f"v_add_u32 v{vl+i}, v{tmp}, v{tmp+2}")

def tr_addrs(A, vt, vlane, sw, tmp, st):
    A(f"v_lshrrev_b32 v{tmp}, 4, v{vlane}")
    A(f"v_lshlrev_b32 v{tmp}, 3, v{tmp}")
    A(f"v_bfe_u32 v{tmp+1}, v{vlane}, 2, 2")
    A(f"v_add_u32 v{tmp}, v{tmp}, v{tmp+1}")
    A(f"v_mul_u32_u24 v{tmp}, 960, v{tmp}")
    A(f"v_and_b32 v{tmp+1}, 3, v{vlane}")
    A(f"v_lshlrev_b32 v{tmp+1}, 4, v{tmp+1}")
    A(f"v_add_u32 v{tmp}, v{tmp}, v{tmp+1}")
    for j in range(7):
        A(f"s_mul_i32 s{st}, s{sw}, 7")
        A(f"s_add_u32 s{st}, s{st}, {j}")
        A(f"s_and_b32 s{st+1}, s{st}, 1")
        A(f"s_lshl_b32 s{st+1}, s{st+1}, 3")
        A(f"s_lshr_b32 s{st}, s{st}, 1")
        A(f"s_lshl_b32 s{st}, s{st}, 6")
        A(f"s_add_u32 s{st}, s{st}, s{st+1}")
        A(f"v_add_u32 v{vt+j}, s{st}, v{tmp}")

def rowperm_off(A, vd, vlane, stride, tmp):
    A(f"v_bfe_u32 v{tmp}, v{vlane}, 2, 2")
    A(f"v_lshlrev_b32 v{tmp}, 3, v{tmp}")
    A(f"v_and_b32 v{vd}, 3, v{vlane}")
    A(f"v_add_u32 v{vd}, v{vd}, v{tmp}")
    A(f"v_mul_u32_u24 v{vd}, {stride}, v{vd}")
    A(f"v_lshrrev_b32 v{tmp}, 4, v{vlane}")
    A(f"v_lshlrev_b32 v{tmp}, 4, v{tmp}")
    A(f"v_add_u32 v{vd}, v{vd}, v{tmp}")

def gemm(A, isB):
    sdiv(A, 49, 50, 48, 7, 52)
    srd(A, 36, "wv" if isB else "wq")
    srd(A, 40, "wo" if isB else "wk")
    wave_lane(A, 51, 1)
    rowperm_off(A, 2, 1, 8192, 3)
    A("v_lshlrev_b32 v3, 4, v1")
    A("s_lshl_b32 s52, s49, 9")
    for u in range(2):
        for b in range(2):
            A(f"s_lshl_b32 s53, s50, 6")
            A(f"s_add_u32 s53, s53, {32*u + 4*b}")
            A(f"s_lshl_b32 s53, s53, 13")
            A(f"s_add_u32 s{56+2*u+b}, s53, s52")
    ACC = 8
    def acc(rt, j): return v(ACC + (rt * 7 + j) * 4, 4)
    RF = 120
    CF = 152
    if not isB:
        for j in range(7):
            A(f"s_mul_i32 s53, s51, 7")
            A(f"s_add_u32 s53, s53, {j}")
            A(f"s_and_b32 s54, s53, 1")
            A(f"s_lshl_b32 s54, s54, 2")
            A(f"s_lshr_b32 s53, s53, 1")
            A(f"s_lshl_b32 s53, s53, 5")
            A(f"s_add_u32 s53, s53, s54")
            A(f"s_lshl_b32 s53, s53, 13")
            A(f"s_add_u32 s{60+j}, s53, s52")
        def loads(es):
            bs = es & 1
            for rt in range(4):
                A(f"buffer_load_dwordx4 {v(RF+bs*16+rt*4,4)}, v2, s[36:39], s{56+rt} offen offset:{es*64}")
            for j in range(7):
                A(f"buffer_load_dwordx4 {v(CF+bs*28+j*4,4)}, v2, s[40:43], s{60+j} offen offset:{es*64}")
        loads(0)
        for es in range(8):
            if es < 7:
                loads(es + 1); A("s_waitcnt vmcnt(11)")
            else: A("s_waitcnt vmcnt(0)")
            bs = es & 1
            for rt in range(4):
                for j in range(7):
                    A(f"{MM} {acc(rt,j)}, {v(RF+bs*16+rt*4,4)}, {v(CF+bs*28+j*4,4)}, {acc(rt,j) if es else 0}")
    else:
        VG, VL, VT = 208, 215, 222
        stage_addrs(A, VG, VL, 896, 4, 53)
        tr_addrs(A, VT, 1, 51, 4, 53)
        A("s_mul_i32 s60, s49, 229376")
        SG = CF + 28
        def gl(es):
            bs = es & 1
            for i in range(7):
                A(f"buffer_load_dwordx4 {v(SG+i*4,4)}, v{VG+i}, s[40:43], s60 offen")
            A("s_add_u32 s60, s60, 28672")
            for rt in range(4):
                A(f"buffer_load_dwordx4 {v(RF+bs*16+rt*4,4)}, v2, s[36:39], s{56+rt} offen offset:{es*64}")
        def lw(es):
            A("s_waitcnt vmcnt(4)")
            for i in range(7):
                A(f"ds_write_b128 v{VL+i}, {v(SG+i*4,4)} offset:{(es&1)*30720}")
            A("s_waitcnt lgkmcnt(0)")
            A("s_barrier")
        gl(0); lw(0)
        for es in range(8):
            bs = es & 1
            for j in range(7):
                for hh in range(2):
                    A(f"ds_read_b64_tr_b16 {v(CF+j*4+hh*2,2)}, v{VT+j} offset:{bs*30720 + hh*3840}")
            A("s_waitcnt vmcnt(0)")
            if es < 7: gl(es + 1)
            A("s_waitcnt lgkmcnt(0)")
            for rt in range(4):
                for j in range(7):
                    A(f"{MM} {acc(rt,j)}, {v(RF+bs*16+rt*4,4)}, {v(CF+j*4,4)}, {acc(rt,j) if es else 0}")
            if es < 7: lw(es + 1)
    if not isB: A(f"s_mov_b32 s55, {f32(LY.LOG2E / 16.0)}")
    for u in range(2):
        for j in range(7):
            a0 = ACC + ((2*u) * 7 + j) * 4; b0 = ACC + ((2*u+1) * 7 + j) * 4
            if not isB:
                for r in range(4):
                    A(f"v_mul_f32 v{a0+r}, s55, v{a0+r}")
                    A(f"v_mul_f32 v{b0+r}, s55, v{b0+r}")
            A(f"v_cvt_pk_bf16_f32 v{a0}, v{a0}, v{a0+1}")
            A(f"v_cvt_pk_bf16_f32 v{a0+1}, v{a0+2}, v{a0+3}")
            A(f"v_cvt_pk_bf16_f32 v{a0+2}, v{b0}, v{b0+1}")
            A(f"v_cvt_pk_bf16_f32 v{a0+3}, v{b0+2}, v{b0+3}")
            A(f"s_mul_i32 s53, s51, 7")
            A(f"s_add_u32 s53, s53, {j}")
            if not isB:
                A("s_mul_i32 s54, s49, 28"); A("s_add_u32 s53, s53, s54")
            else:
                A("s_lshl_b32 s53, s53, 4"); A("s_add_u32 s53, s53, s49")
            A("s_mul_i32 s53, s53, 14")
            A("s_lshl_b32 s54, s50, 1")
            A(f"s_add_u32 s53, s53, s54")
            A(f"s_add_u32 s53, s53, {u + (LY.BF if isB else LY.AF)//1024}")
            A("s_lshl_b32 s53, s53, 10")
            A(f"buffer_store_dwordx4 {v(a0,4)}, v3, s[32:35], s53 offen")
    A("s_endpgm")

def transp(A, down):
    wave_lane(A, 51, 1)
    A("v_lshlrev_b32 v3, 4, v1")
    VG, VL, VT, SG = 8, 15, 22, 32
    if not down:
        sdiv(A, 49, 50, 48, 56, 52)
        srd(A, 36, "wg")
        A("s_cmp_eq_u32 s49, 0")
        A(f"s_cselect_b32 s36, s36, s{ARG['wu']}")
        A(f"s_and_b32 s52, s{ARG['wu']+1}, 0xffff")
        A("s_cmp_eq_u32 s49, 0")
        A(f"s_cselect_b32 s37, s37, s52")
        A("s_lshr_b32 s54, s50, 2")
        A("s_and_b32 s55, s50, 3")
        A("s_mul_i32 s60, s54, 114688")
        A("s_mul_i32 s52, s55, 896")
        A("s_add_u32 s60, s60, s52")
        stage_addrs(A, VG, VL, 3584, 4, 53)
    else:
        srd(A, 36, "wd")
        A("s_mov_b32 s54, s48")
        A("s_mul_i32 s60, s54, 28672")
        stage_addrs(A, VG, VL, 896, 4, 53)
    for i in range(7):
        A(f"buffer_load_dwordx4 {v(SG+i*4,4)}, v{VG+i}, s[36:39], s60 offen")
    tr_addrs(A, VT, 1, 51, 4, 52)
    A("s_waitcnt vmcnt(0)")
    for i in range(7):
        A(f"ds_write_b128 v{VL+i}, {v(SG+i*4,4)}")
    A("s_waitcnt lgkmcnt(0)")
    A("s_barrier")
    for j in range(7):
        for hh in range(2):
            A(f"ds_read_b64_tr_b16 {v(SG+j*4+hh*2,2)}, v{VT+j} offset:{hh*3840}")
    A("s_waitcnt lgkmcnt(0)")
    for j in range(7):
        A(f"s_mul_i32 s53, s51, 7")
        A(f"s_add_u32 s53, s53, {j}")
        if not down:
            A("s_mul_i32 s52, s55, 28"); A("s_add_u32 s53, s53, s52")
            A("s_mul_i32 s53, s53, 14")
            A("s_mul_i32 s52, s49, 1568"); A("s_add_u32 s53, s53, s52")
            assert LY.UFW == LY.GF + 1568 * 1024
            base = LY.GF
        else:
            A("s_mul_i32 s53, s53, 56")
            base = LY.DF
        A("s_add_u32 s53, s53, s54")
        A(f"s_add_u32 s53, s53, {base//1024}")
        A("s_lshl_b32 s53, s53, 10")
        A(f"buffer_store_dwordx4 {v(SG+j*4,4)}, v3, s[32:35], s53 offen")
    A("s_endpgm")

def ln1(A):
    srd(A, 36, "x")
    wave_lane(A, 51, 1)
    A("v_lshrrev_b32 v2, 3, v0")
    A("v_and_b32 v3, 7, v0")
    A("v_mul_u32_u24 v4, 896, v2")
    A("v_lshl_add_u32 v4, v3, 4, v4")
    A("s_mul_i32 s52, s48, 28672")
    for i in range(7):
        A(f"buffer_load_dwordx4 {v(8+i*4,4)}, v4, s[36:39], s52 offen offset:{i*128}")
    A("v_lshrrev_b32 v5, 4, v2")
    A("v_mul_u32_u24 v5, 14, v5")
    A("v_lshrrev_b32 v6, 2, v3")
    A("v_add_u32 v5, v5, v6")
    A("v_lshlrev_b32 v5, 10, v5")
    A("v_and_b32 v6, 3, v3")
    A("v_lshlrev_b32 v6, 4, v6")
    A("v_and_b32 v7, 15, v2")
    A("v_add_u32 v6, v6, v7")
    A("v_lshl_add_u32 v5, v6, 4, v5")
    A("s_waitcnt vmcnt(0)")
    X = 40
    for n in range(28):
        A(f"v_lshlrev_b32 v{X+2*n}, 16, v{8+n}")
        A(f"v_and_b32 v{X+2*n+1}, 0xffff0000, v{8+n}")
    A(f"v_add_f32 v6, v{X}, v{X+1}")
    A(f"v_add_f32 v7, v{X+2}, v{X+3}")
    for n in range(4, 56, 2):
        A(f"v_add_f32 v6, v6, v{X+n}")
        A(f"v_add_f32 v7, v7, v{X+n+1}")
    A("v_add_f32 v6, v6, v7")
    dpp_reduce8(A, "v_add_f32", 6, 7)
    A(f"v_mul_f32 v6, {f32(1/448)}, v6")
    for n in range(56):
        A(f"v_sub_f32 v{X+n}, v{X+n}, v6")
    A(f"v_mul_f32 v6, v{X}, v{X}")
    A(f"v_mul_f32 v7, v{X+1}, v{X+1}")
    for n in range(2, 56, 2):
        A(f"v_fmac_f32 v6, v{X+n}, v{X+n}")
        A(f"v_fmac_f32 v7, v{X+n+1}, v{X+n+1}")
    A("v_add_f32 v6, v6, v7")
    dpp_reduce8(A, "v_add_f32", 6, 7)
    A(f"v_mov_b32 v7, {f32(1e-5)}")
    A(f"v_fmac_f32 v7, {f32(1/448)}, v6")
    A("v_rsq_f32 v7, v7")
    for n in range(56):
        A(f"v_mul_f32 v{X+n}, v{X+n}, v7")
    for n in range(28):
        A(f"v_cvt_pk_bf16_f32 v{8+n}, v{X+2*n}, v{X+2*n+1}")
    A(f"s_add_u32 s52, s52, {LY.XS}")
    for i in range(7):
        A(f"buffer_store_dwordx4 {v(8+i*4,4)}, v5, s[32:35], s52 offen")
        A("s_add_u32 s52, s52, 2048")
    A("s_endpgm")

def fills(A):
    A("s_lshl_b32 s49, s48, 12")
    A("v_lshl_add_u32 v2, v0, 4, s49")
    for r in range(4): A(f"v_mov_b32 v{4+r}, -1")
    for r in range(4): A(f"v_mov_b32 v{8+r}, 0")
    for (lo, hi, reg) in ((LY.M + 14*1024, LY.MB, 4), (LY.MB + 14*1024, LY.SENT_END, 4), (LY.FL, LY.FL_END, 8)):
        A(f"s_mov_b32 s34, {hi}")
        A(f"s_mov_b32 s50, {lo}")
        L = A.new("fill")
        A.label(L)
        A(f"buffer_store_dwordx4 {v(reg,4)}, v2, s[32:35], s50 offen")
        A("s_add_u32 s50, s50, 262144")
        A(f"s_cmp_lt_u32 s50, {hi}")
        A(f"s_cbranch_scc1 {L}")
    A(f"s_mov_b32 s34, {LY.WS_BYTES}")
    done = A.new("done")
    A("s_cmp_ge_u32 s48, 14"); A(f"s_cbranch_scc1 {done}")
    srd(A, 36, "mem0")
    A("v_and_b32 v1, 63, v0")
    A("v_and_b32 v3, 7, v1")
    A("v_mul_u32_u24 v3, 896, v3")
    A("v_lshrrev_b32 v12, 4, v1")
    A("v_lshl_add_u32 v3, v12, 4, v3")
    A("s_lshl_b32 s50, s48, 6")
    A("buffer_load_dwordx4 v[12:15], v3, s[36:39], s50 offen")
    A("v_lshlrev_b32 v3, 4, v1")
    A("s_lshl_b32 s50, s48, 10")
    A(f"s_add_u32 s51, s50, {LY.M}")
    A(f"s_add_u32 s52, s50, {LY.MB}")
    A("s_waitcnt vmcnt(0)")
    A("buffer_store_dwordx4 v[12:15], v3, s[32:35], s51 offen")
    A("buffer_store_dwordx4 v[12:15], v3, s[32:35], s52 offen")
    A.label(done)
    A("s_endpgm")

def gen_k0(A, name):
    kernel_head(A, name)
    A(f"s_cmp_ge_u32 s2, {K0_NWG}")
    A("s_cbranch_scc1 k0_exit")
    load_args(A)
    srd(A, WS, "ws")
    parts = [(0, 112, "k0_ga"), (112, 224, "k0_gb"), (224, 336, "k0_tu"), (336, 392, "k0_td"), (392, 456, "k0_ln"), (456, 520, "k0_fill")]
    for lo, hi, lab in parts:
        A(f"s_sub_u32 s48, s2, {lo}")
        A(f"s_cmp_lt_u32 s2, {hi}")
        A(f"s_cbranch_scc1 {lab}")
    A.label("k0_exit")
    A("s_endpgm")
    A.label("k0_ga"); gemm(A, False)
    A.label("k0_gb"); gemm(A, True)
    A.label("k0_tu"); transp(A, False)
    A.label("k0_td"); transp(A, True)
    A.label("k0_ln"); ln1(A)
    A.label("k0_fill"); fills(A)
    return kernel_desc(name, 232, 232)
```

```python
from gen_common import *
MM = "v_mfma_f32_16x16x32_bf16"
MM16 = "v_mfma_f32_16x16x16_bf16"
K1_LDS = 160 * 1024 - 512
CAPS = [30, 32, 32, 28, 28, 28, 28, 0]
TMO = 60000
OOB = 0x40000000
SW, SROLE, SRANK, SK, STMO, SFAST = 48, 49, 50, 51, 52, 53
DIAG = False

def fail(A, code):
    A(f"s_mov_b32 s54, {code}")
    A("s_branch k1_fail")

class Poll:
    def __init__(self, A, code, sleep=0):
        self.A = A; self.code = code; self.sleep = sleep
        self.top = A.new("poll"); self.ok = A.new("pok")
    def begin(self):
        self.A(f"s_mov_b32 s{STMO}, {TMO}")
        self.A.label(self.top)
    def end(self):
        A = self.A
        A(f"s_cbranch_vccz {self.ok}")
        if self.sleep: A(f"s_sleep {self.sleep}")
        A(f"s_sub_u32 s{STMO}, s{STMO}, 1")
        A(f"s_cbranch_scc0 {self.top}")
        fail(A, self.code)
        A.label(self.ok)

def chk_tree(A, regs_, t):
    out = []; rs = list(regs_)
    if len(rs) >= 3:
        out.append(f"v_max3_u32 v{t}, v{rs[0]}, v{rs[1]}, v{rs[2]}"); rs = rs[3:]
    else:
        out.append(f"v_max_u32 v{t}, v{rs[0]}, v{rs[1]}"); rs = rs[2:]
    while len(rs) >= 2:
        out.append(f"v_max3_u32 v{t}, v{t}, v{rs[0]}, v{rs[1]}"); rs = rs[2:]
    if rs: out.append(f"v_max_u32 v{t}, v{t}, v{rs[0]}")
    out.append(f"v_cmp_eq_u32 vcc, -1, v{t}")
    return out

def stamp(A, slot, vt=None):
    if not DIAG: return
    A(f"s_memrealtime s[{90+2*slot}:{91+2*slot}]")

def stamp_flush(A, vt):
    if not DIAG: return
    A(f"s_mul_i32 s100, s{SROLE}, {LY.MAXSTEP}")
    A(f"s_add_u32 s100, s100, s{SK}")
    A(f"s_lshl_b32 s100, s100, 2")
    A(f"s_add_u32 s100, s100, s{SW}")
    A(f"s_lshl_b32 s100, s100, 4")
    A(f"s_add_u32 s100, s100, {LY.DBG}")
    A("s_waitcnt lgkmcnt(0)")
    for i in range(4): A(f"v_mov_b32 v{vt+i}, s{90+2*i}")
    A(f"v_mov_b32 v{vt+4}, 0")
    A(f"buffer_store_dwordx4 {v(vt,4)}, v{vt+4}, s[32:35], s100 offen")

def dispatch(A):
    A("s_cmp_ge_u32 s2, 256"); A("s_cbranch_scc1 k1_exit")
    load_args(A)
    srd(A, WS, "ws"); srd(A, 36, "dbg")
    wave_lane(A, SW, 1)
    A("v_lshlrev_b32 v2, 4, v1")
    A(f"s_mov_b32 s{SK}, 0")
    A(f"s_mov_b32 s{SFAST}, 0")
    A(f"s_mov_b32 s{SROLE}, 255")
    A(f"s_cmp_lg_u32 s{SW}, 0"); A("s_cbranch_scc1 k1_role_wait")
    A("s_getreg_b32 s55, hwreg(HW_REG_XCC_ID, 0, 4)")
    A("s_lshl_b32 s56, s55, 7")
    A(f"s_add_u32 s56, s56, {LY.CNT}")
    A("v_mov_b32 v3, 1")
    A(f"v_cmp_eq_u32 vcc, 0, v1")
    A(f"v_mov_b32 v4, {OOB}")
    A("v_cndmask_b32 v4, v4, 0, vcc" if False else "v_cndmask_b32 v4, v4, v1, vcc")
    A("buffer_atomic_add v3, v4, s[32:35], s56 offen sc0 sc1")
    A("s_waitcnt vmcnt(0)")
    A(f"v_readfirstlane_b32 s{SRANK}, v3")
    A("s_mov_b32 s57, 0")
    for x, c in enumerate(CAPS):
        A(f"s_cmp_eq_u32 s55, {x}"); A(f"s_cselect_b32 s57, {c}, s57")
    A(f"s_cmp_lt_u32 s{SRANK}, s57"); A("s_cbranch_scc0 k1_left")
    A(f"s_lshl_b32 s{SROLE}, s55, 5")
    A(f"s_add_u32 s{SROLE}, s{SROLE}, s{SRANK}")
    A("s_branch k1_role_put")
    A.label("k1_left")
    A("v_mov_b32 v3, 1")
    A(f"s_mov_b32 s56, {LY.CNT + 16*128}")
    A("buffer_atomic_add v3, v4, s[32:35], s56 offen sc0 sc1")
    A("s_waitcnt vmcnt(0)")
    A("v_readfirstlane_b32 s58, v3")
    wait_all_registered(A, 1)
    for x, c in enumerate(CAPS):
        if c == 0: continue
        nxt = A.new("lf")
        A(f"v_readlane_b32 s59, v5, {x}")
        A(f"s_min_u32 s59, s59, {c}")
        A(f"s_sub_u32 s60, {c}, s59")
        A(f"s_cmp_lt_u32 s58, s60"); A(f"s_cbranch_scc0 {nxt}")
        A(f"s_add_u32 s{SROLE}, s59, s58")
        A(f"s_add_u32 s{SROLE}, s{SROLE}, {x*32}")
        A("s_branch k1_role_put")
        A.label(nxt)
        A("s_sub_u32 s58, s58, s60")
    A.label("k1_role_put")
    A(f"v_mov_b32 v3, s{SROLE}")
    A("v_mov_b32 v4, 0")
    A("ds_write_b32 v4, v3")
    A("s_waitcnt lgkmcnt(0)")
    A.label("k1_role_wait")
    A("s_barrier")
    A("v_mov_b32 v4, 0")
    A("ds_read_b32 v3, v4")
    A("s_waitcnt lgkmcnt(0)")
    A(f"v_readfirstlane_b32 s{SROLE}, v3")
    A("s_barrier")
    A(f"s_and_b32 s{SRANK}, s{SROLE}, 31")

def wait_all_registered(A, code, or_chain_full=False):
    A("v_and_b32 v6, 15, v1"); A("v_lshlrev_b32 v6, 7, v6")
    A(f"s_mov_b32 s56, {LY.CNT}")
    p = Poll(A, code, sleep=4); p.begin()
    A("buffer_load_dword v5, v6, s[32:35], s56 offen sc1")
    A("s_waitcnt vmcnt(0)")
    A("v_mov_b32 v7, v5")
    dpp_reduce16(A, "v_add_u32", 7)
    A("v_cmp_ne_u32 vcc, 0x100, v7")
    if or_chain_full:
        A("v_readlane_b32 s59, v5, 0")
        A(f"s_cmp_ge_u32 s59, {CAPS[0]}")
        A(f"s_cselect_b32 s{SFAST}, 1, 0")
        A("s_cselect_b64 vcc, 0, vcc")
    p.end()

def wregA(j, slot):
    n = j * 14 + slot
    return a(n * 4, 4) if n < 64 else v(120 + (n - 64) * 4, 4)

def a_slots_setup(A, SM, ST_, hreg):
    A(f"s_and_b32 s46, s{SW}, 1")
    A(f"s_mul_i32 s47, s{SW}, 7")
    A(f"s_lshr_b32 s44, s47, 1")
    for i in range(14):
        if i < 10:
            A(f"s_add_u32 s45, s44, {4+i}")
            A(f"s_cmp_ge_u32 s45, 14"); A(f"s_cselect_b32 s55, 14, 0"); A(f"s_sub_u32 s45, s45, s55")
        elif i < 13:
            A(f"s_add_u32 s45, s44, {i-10}"); A(f"s_add_u32 s45, s45, s46")
        else:
            A(f"s_cmp_eq_u32 s46, 0"); A(f"s_cselect_b32 s55, 3, 0"); A(f"s_add_u32 s45, s44, s55")
        A(f"s_lshl_b32 s{SM+i}, s45, 10")
    for j in range(7):
        if j < 6:
            A(f"s_add_u32 s45, s47, {j}"); A(f"s_add_u32 s45, s45, s46")
        else:
            A(f"s_cmp_eq_u32 s46, 0"); A(f"s_cselect_b32 s55, 6, 0"); A(f"s_add_u32 s45, s47, s55")
        A(f"s_mul_i32 s55, s{hreg}, 28"); A("s_add_u32 s45, s45, s55")
        A(f"s_mul_i32 s45, s45, 14336")
        A(f"s_add_u32 s{ST_+j}, s45, {LY.AF}")

def load_A_weights(A, SM, ST_, wreg):
    for j in range(7):
        for i in range(14):
            A(f"s_add_u32 s45, s{ST_+j}, s{SM+i}")
            A(f"buffer_load_dwordx4 {wreg(j,i)}, v2, s[32:35], s45 offen")

def chainA(A):
    SM, ST_ = 60, 74
    SX1, SX2, SFL, SPC, SBUF, SLO = 82, 83, 84, 85, 86, 88
    RING, ACC, KB_, SC, KH = 16, 48, 76, 92, 112
    KEYB, PART = 0, 131072
    a_slots_setup(A, SM, ST_, SRANK)
    load_A_weights(A, SM, ST_, wregA)
    A("v_and_b32 v9, 15, v1"); A("v_lshrrev_b32 v10, 4, v1")
    A(f"s_mul_i32 s45, s{SW}, 3584"); A(f"s_add_u32 s45, s45, {PART}")
    A("v_mul_u32_u24 v3, 208, v9"); A("v_lshl_add_u32 v3, v10, 4, v3"); A("v_add_u32 v3, s45, v3")
    A(f"s_lshl_b32 s45, s{SW}, 2"); A("v_add_u32 v11, s45, v10")
    A("v_mul_u32_u24 v12, 208, v11"); A(f"v_add_u32 v12, {PART}, v12")
    A("v_lshrrev_b32 v13, 2, v9"); A("v_lshlrev_b32 v13, 2, v13")
    A("v_and_b32 v14, 1, v9"); A("v_lshl_add_u32 v13, v14, 1, v13")
    A("v_bfe_u32 v14, v9, 1, 1"); A("v_lshl_add_u32 v13, v14, 4, v13")
    A("v_add_u32 v13, 16, v13"); A("v_lshl_add_u32 v4, v13, 2, v12")
    A(f"s_lshr_b32 s45, s{SW}, 1"); A("s_lshl_b32 s45, s45, 5")
    A("v_and_b32 v13, 3, v9"); A("v_lshl_add_u32 v5, v13, 3, v12"); A("v_add_u32 v5, s45, v5")
    A(f"s_mul_i32 s45, s{SRANK}, 1280")
    A("v_mul_u32_u24 v6, 80, v11"); A("v_lshl_add_u32 v6, v9, 2, v6"); A("v_add_u32 v6, s45, v6")
    A("v_add_u32 v7, 64, v6"); A(f"v_mov_b32 v13, {OOB}"); A("v_cmp_gt_u32 vcc, 4, v9")
    A("v_cndmask_b32 v7, v13, v7, vcc")
    A("v_mov_b32 v13, 0"); A("v_cndmask_b32 v15, v13, 1.0, vcc" if False else "v_mov_b32 v14, 1.0")
    A("v_cndmask_b32 v13, v13, v14, vcc")
    A("v_min_u32 v8, 13, v1"); A("v_lshlrev_b32 v8, 2, v8")
    A(f"s_lshl_b32 s45, s{SW}, 14"); A("v_add_u32 v11, s45, v2")
    A("s_lshl_b32 s45, s46, 3"); A("v_add_u32 v12, s45, v11")
    A(f"v_add_u32 v0, {LY.M}, v2")
    A(f"s_mov_b32 s{SLO}, 0x00ff00ff"); A(f"s_mov_b32 s{SLO+1}, 0x00ff00ff")
    A(f"s_mov_b32 s{SPC}, {LY.PC}")
    A(f"s_lshl_b32 s{SBUF}, s{SW}, 14")
    A(f"s_mov_b32 s{SX1}, {LY.XS}"); A(f"s_mov_b32 s{SX2}, {LY.XS}")
    def dma(n):
        ks, lt = n >> 2, n & 3
        l, tt = lt >> 1, lt & 1
        return [f"s_add_u32 s45, s{SX2 if l else SX1}, s{SM+10+ks}",
                f"s_add_u32 m0, s{SBUF}, {n*1024}",
                *( [f"s_add_u32 s45, s45, 14336"] if tt else ["s_nop 0"] ),
                f"buffer_load_dwordx4 v2, s[32:35], s45 offen sc1 lds"]
    for n in range(16):
        for t in dma(n): A(t)
    wait_all_registered_saved = None
    A("v_mov_b32 v100, v5"); A("v_mov_b32 v101, v6"); A("v_mov_b32 v102, v7")
    wait_all_registered(A, 2, True)
    A("v_mov_b32 v5, v100"); A("v_mov_b32 v6, v101"); A("v_mov_b32 v7, v102")
    A("s_waitcnt vmcnt(0)")
    A(f"s_cmp_eq_u32 s{SFAST}, 1"); A("s_cbranch_scc0 chainA_slow")
    for fast in (True, False):
        if not fast: A.label("chainA_slow")
        SF = "" if fast else " sc1"
        top = A.new("caloop"); A.label(top)
        stubs = []
        ring = lambda i: RING + (i % 8) * 4
        mload = lambda i: f"buffer_load_dwordx4 {v(ring(i),4)}, v0, s[32:35], s{SM+i} offen sc1"
        A(f"s_add_u32 s45, s{SK}, 1"); A("s_min_u32 s45, s45, 63")
        A(f"s_mul_i32 s45, s45, 28672"); A(f"s_add_u32 s{SX1}, s45, {LY.XS}")
        A(f"s_add_i32 s44, s{SK}, {1 - LY.LAG}")
        A(f"s_max_i32 s45, s44, 0")
        A(f"s_lshl_b32 s{SFL}, s45, 7"); A(f"s_add_u32 s{SFL}, s{SFL}, {LY.flag_off(LY.FL_XS,0,0)}")
        A(f"s_mul_i32 s45, s45, 28672"); A(f"s_add_u32 s45, s45, {LY.XS + 64*28672}")
        A(f"s_cmp_ge_i32 s44, 0"); A(f"s_cselect_b32 s{SX2}, s45, s{SX1}")
        A(f"s_xor_b32 s{SBUF}, s{SBUF}, 65536")
        A(f"buffer_load_dword v15, v8, s[32:35], s{SFL} offen sc1")
        p = Poll(A, 10); p.begin()
        for i in range(4): A(mload(i))
        A("s_waitcnt vmcnt(0)")
        for t in chk_tree(A, range(RING, RING+16), 9): A(t)
        p.end()
        stamp(A, 0, 9)
        vm = VM(A); ids = {}
        for i in range(4, 8): ids[i] = vm.issue(mload(i))
        keyaddr = lambda ks, lt: (ks * 4 + lt) * 1024
        bufA = [ring(0), ring(1), ring(6), ring(7)]
        for i in range(14):
            extra = {}
            if 4 <= i + 1 <= 13:
                r = ring(i + 1)
                ct = chk_tree(A, range(r, r+4), 9)
                rl, bl = A.new("rt"), A.new("bk")
                stubs.append((rl, bl, i + 1))
                extra[3] = [("wait", i + 1), ct[0]]; extra[4] = [ct[1]]; extra[5] = [ct[2]]
                extra[6] = [f"s_cbranch_vccnz {rl}", bl + ":"]
            if i == 8:
                for lt in range(4): extra.setdefault(lt, []).append(f"ds_read_b128 {v(KB_+lt*4,4)}, v11 offset:{keyaddr(1,lt)}")
            if i == 9:
                for lt in range(4): extra.setdefault(lt, []).append(f"ds_read_b64 {v(KH+lt*2,2)}, v12 offset:{keyaddr(3,lt)}")
            if i == 10:
                for lt in range(4): extra.setdefault(lt, []).append(f"ds_read_b128 {v(bufA[lt],4)}, v11 offset:{keyaddr(0,lt)}")
            for j in range(7):
                A(f"{MM} {v(ACC+j*4,4)}, {wregA(j,i)}, {v(ring(i),4)}, {v(ACC+j*4,4) if i else 0}")
                for t in extra.get(j, []):
                    if isinstance(t, tuple): vm.wait(ids[t[1]])
                    else: A(t)
            if i + 8 <= 13: ids[i + 8] = vm.issue(mload(i + 8))
        r13 = ring(13)
        A(f"s_cmp_eq_u32 s46, 0")
        A(f"s_cselect_b64 vcc, -1, 0")
        A(f"v_cndmask_b32 v{ring(13)}, v{r13+2}, v{r13}, vcc")
        A(f"v_cndmask_b32 v{ring(13)+1}, v{r13+3}, v{r13+1}, vcc")
        def pack(pq):
            a0 = ACC + pq * 8; b0 = a0 + 4
            A(f"v_cvt_pk_bf16_f32 v{a0}, v{a0}, v{a0+1}"); A(f"v_cvt_pk_bf16_f32 v{a0+1}, v{a0+2}, v{a0+3}")
            if pq < 3:
                A(f"v_cvt_pk_bf16_f32 v{a0+2}, v{b0}, v{b0+1}"); A(f"v_cvt_pk_bf16_f32 v{a0+3}, v{b0+2}, v{b0+3}")
        stamp(A, 1, 9)
        pack(0)
        A("s_waitcnt lgkmcnt(0)")
        pack(1)
        A(f"{MM} {v(SC,4)}, {v(ring(10),4)}, {v(ACC,4)}, 0")
        for lt in range(4): A(f"{MM} {v(SC+4+lt*4,4)}, {v(bufA[lt],4)}, {v(ACC,4)}, 0")
        for lt in range(4): A(f"ds_read_b128 {v(bufA[lt],4)}, v11 offset:{keyaddr(2,lt)}")
        pack(3)
        A(f"{MM} {v(SC,4)}, {v(ring(11),4)}, {v(ACC+8,4)}, {v(SC,4)}")
        for lt in range(4): A(f"{MM} {v(SC+4+lt*4,4)}, {v(KB_+lt*4,4)}, {v(ACC+8,4)}, {v(SC+4+lt*4,4)}")
        pack(2)
        A(f"{MM16} {v(SC,4)}, {v(r13,2)}, {v(ACC+24,2)}, {v(SC,4)}")
        for lt in range(4): A(f"{MM16} {v(SC+4+lt*4,4)}, {v(KH+lt*2,2)}, {v(ACC+24,2)}, {v(SC+4+lt*4,4)}")
        A("s_waitcnt lgkmcnt(0)")
        A(f"{MM} {v(SC,4)}, {v(ring(12),4)}, {v(ACC+16,4)}, {v(SC,4)}")
        for lt in (0, 2, 1, 3): A(f"{MM} {v(SC+4+lt*4,4)}, {v(bufA[lt],4)}, {v(ACC+16,4)}, {v(SC+4+lt*4,4)}")
        A(f"ds_write_b128 v3, {v(SC,4)}")
        for tt in range(2):
            for r in range(4):
                A(f"v_cndmask_b32 v{SC+4+tt*4+r}, v{SC+12+tt*4+r}, v{SC+4+tt*4+r}, s[{SLO}:{SLO+1}]")
            A(f"ds_write_b128 v3, {v(SC+4+tt*4,4)} offset:{64+tt*64}")
        A("s_waitcnt lgkmcnt(0)")
        A("s_barrier")
        T = RING
        A(f"ds_read2st64_b64 {v(T,4)}, v4 offset0:0 offset1:7")
        A(f"ds_read2st64_b64 {v(T+4,4)}, v4 offset0:14 offset1:21")
        A(f"ds_read2st64_b64 {v(T+8,4)}, v5 offset0:0 offset1:7")
        A(f"ds_read2st64_b64 {v(T+12,4)}, v5 offset0:14 offset1:21")
        stamp(A, 2, 9)
        A("s_waitcnt lgkmcnt(2)")
        A(f"v_pk_add_f32 {v(T,2)}, {v(T,2)}, {v(T+2,2)}")
        A(f"v_pk_add_f32 {v(T+4,2)}, {v(T+4,2)}, {v(T+6,2)}")
        A("s_waitcnt lgkmcnt(0)")
        A(f"v_pk_add_f32 {v(T+8,2)}, {v(T+8,2)}, {v(T+10,2)}")
        A(f"v_pk_add_f32 {v(T+12,2)}, {v(T+12,2)}, {v(T+14,2)}")
        A(f"v_pk_add_f32 {v(T,2)}, {v(T,2)}, {v(T+4,2)}")
        A(f"v_pk_add_f32 {v(T+8,2)}, {v(T+8,2)}, {v(T+12,2)}")
        A(f"v_max_f32 v{T+2}, v{T}, v{T+1}")
        A(f"v_max3_f32 v{T+2}, v{T+2}, v{T+8}, v{T+9}")
        dpp_reduce16(A, "v_max_f32", T+2)
        for r in (T, T+1, T+8, T+9): A(f"v_sub_f32 v{r}, v{r}, v{T+2}")
        for r in (T+8, T+9, T, T+1): A(f"v_exp_f32 v{r}, v{r}")
        A(f"v_add_f32 v{T+3}, v{T+8}, v{T+9}")
        A(f"v_add_f32 v{T+2}, v{T}, v{T+1}")
        A(f"v_fmac_f32 v{T+2}, v13, v{T+3}")
        dpp_reduce16(A, "v_add_f32", T+2)
        A(f"v_rcp_f32 v{T+2}, v{T+2}")
        for r in (T, T+1, T+8, T+9): A(f"v_mul_f32 v{r}, v{r}, v{T+2}")
        A(f"v_cvt_pk_bf16_f32 v{T}, v{T}, v{T+1}")
        A(f"v_cvt_pk_bf16_f32 v{T+8}, v{T+8}, v{T+9}")
        A(f"v_min_u32 v{T}, -2, v{T}")
        A(f"buffer_store_dword v{T}, v6, s[32:35], s{SPC} offen{SF}")
        A(f"v_min_u32 v{T+8}, -2, v{T+8}")
        A(f"buffer_store_dword v{T+8}, v7, s[32:35], s{SPC} offen{SF}")
        stamp(A, 3, 9)
        stamp_flush(A, 20)
        sk = A.new("nofl")
        A(f"s_add_i32 s44, s{SK}, {1 - LY.LAG}")
        A("s_cmp_lt_i32 s44, 0"); A(f"s_cbranch_scc1 {sk}")
        A("v_cmp_ne_u32 vcc, 1, v15"); A(f"s_cbranch_vccz {sk}")
        p = Poll(A, 11, sleep=2); p.begin()
        A(f"buffer_load_dword v15, v8, s[32:35], s{SFL} offen sc1")
        A("s_waitcnt vmcnt(0)")
        A("v_cmp_ne_u32 vcc, 1, v15")
        p.end()
        A.label(sk)
        for n in range(16):
            for t in dma(n): A(t)
        A("v_xor_b32 v11, 0x10000, v11"); A("v_xor_b32 v12, 0x10000, v12")
        A("v_add_u32 v0, 14336, v0")
        A(f"s_add_u32 s{SPC}, s{SPC}, 20480")
        A(f"s_add_u32 s{SK}, s{SK}, 1")
        A(f"s_cmp_lt_u32 s{SK}, {LY.KEND}"); A(f"s_cbranch_scc1 {top}")
        A("s_endpgm")
        for rl, bl, i in stubs:
            A.label(rl)
            p = Poll(A, 12); p.begin()
            A(mload(i)); A("s_waitcnt vmcnt(0)")
            for t in chk_tree(A, range(ring(i), ring(i)+4), 9): A(t)
            p.end()
            A(f"s_branch {bl}")

LK = (2, 5, 8, 11)
def chainB(A):
    SJ, SU, SFL, SPC, SMB = 60, 62, 66, 68, 69
    SHI, SLO, SOV = 70, 72, 74
    MBUF, WACC, PX, PM, WBUF = 16, 24, 56, 72, 80
    UREG = 0
    LW, LMS, LRED = 0, 131072, 131072 + 14336
    regk = [kk for kk in range(14) if kk not in LK]
    def wreg(kk, n):
        idx = regk.index(kk) * 8 + n
        return a(64 + idx * 4, 4) if idx < 48 else v(112 + (idx - 48) * 4, 4)
    A(f"s_sub_u32 s{SJ}, s{SRANK}, 16")
    A(f"s_lshl_b32 s45, s{SW}, 15"); A(f"v_add_u32 v3, s45, v2")
    for n in range(8):
        hh, ct = n >> 1, n & 1
        A(f"s_lshl_b32 s44, s{SJ}, 1"); A(f"s_add_u32 s44, s44, {ct}"); A("s_lshl_b32 s44, s44, 4")
        A(f"s_lshl_b32 s45, s{SW}, 2"); A("s_add_u32 s44, s44, s45"); A(f"s_add_u32 s44, s44, {hh}")
        A("s_mul_i32 s44, s44, 14336"); A(f"s_add_u32 s44, s44, {LY.BF}")
        for kk in range(14):
            A(f"s_add_u32 s45, s44, {kk*1024}")
            if kk in LK:
                A(f"s_lshl_b32 s47, s{SW}, 15"); A(f"s_add_u32 m0, s47, {(LK.index(kk)*8 + n)*1024}")
                A("s_nop 0")
                A(f"buffer_load_dwordx4 v2, s[32:35], s45 offen lds")
            else:
                A(f"buffer_load_dwordx4 {wreg(kk,n)}, v2, s[32:35], s45 offen")
    A("v_and_b32 v9, 15, v1"); A("v_lshrrev_b32 v10, 4, v1")
    A(f"s_lshl_b32 s45, s{SW}, 10"); A("v_add_u32 v4, s45, v2")
    A(f"v_add_u32 v0, {LY.M}, v4"); A(f"v_add_u32 v4, {LMS}, v4")
    A(f"v_add_u32 v5, {LMS}, v2")
    A(f"s_mul_i32 s45, s{SW}, 5120")
    A("v_mul_u32_u24 v6, 80, v9"); A("v_add_u32 v6, s45, v6")
    A("v_and_b32 v11, 1, v10"); A("v_lshl_add_u32 v7, v11, 3, v6"); A("v_add_u32 v7, 64, v7")
    A("v_lshl_add_u32 v6, v10, 4, v6")
    A("v_lshrrev_b32 v11, 3, v9"); A("v_lshrrev_b32 v12, 1, v10"); A("v_cmp_eq_u32 vcc, v11, v12")
    A(f"v_mov_b32 v11, {OOB}"); A("v_cndmask_b32 v7, v11, v7, vcc")
    A(f"s_lshl_b32 s45, s{SW}, 12"); A("v_add_u32 v8, s45, v2")
    A(f"s_lshl_b32 s45, s{SW}, 11"); A(f"s_add_u32 s45, s45, {LRED}"); A("v_add_u32 v11, s45, v2")
    A(f"s_lshr_b32 s45, s{SW}, 1"); A("s_lshl_b32 s45, s45, 10"); A(f"s_and_b32 s44, s{SW}, 1"); A("s_lshl_b32 s44, s44, 3")
    A("s_add_u32 s45, s45, s44"); A(f"s_add_u32 s45, s45, {LRED}"); A("v_add_u32 v12, s45, v2")
    A(f"s_lshl_b32 s45, s{SJ}, 10"); A(f"s_lshl_b32 s44, s{SW}, 2"); A("s_add_u32 s45, s45, s44")
    A("v_add_u32 v13, s45, v2"); A(f"v_add_u32 v13, {LY.M}, v13")
    A("buffer_load_dword v14, v13, s[32:35], 0 offen")
    A("v_add_u32 v13, 14336, v13")
    A(f"s_lshl_b32 s45, s{SJ}, 10"); A(f"s_add_u32 s{SMB}, s45, {LY.MB}")
    A(f"v_add_u32 v15, s45, v5")
    A(f"s_mov_b32 s{SLO}, 0x00ff00ff"); A(f"s_mov_b32 s{SLO+1}, 0x00ff00ff")
    A(f"s_mov_b32 s{SHI}, 0xff00ff00"); A(f"s_mov_b32 s{SHI+1}, 0xff00ff00")
    A(f"s_mov_b32 s{SPC}, {LY.PC}")
    A("v_mov_b32 v100, v5"); A("v_mov_b32 v101, v6"); A("v_mov_b32 v102, v7")
    wait_all_registered(A, 3, True)
    A("v_mov_b32 v5, v100"); A("v_mov_b32 v6, v101"); A("v_mov_b32 v7, v102")
    A("v_mov_b32 v1, 0")
    A("s_waitcnt vmcnt(0)")
    A(f"s_cmp_eq_u32 s{SFAST}, 1"); A("s_cbranch_scc0 chainB_slow")
    for fast in (True, False):
        if not fast: A.label("chainB_slow")
        SF = "" if fast else " sc1"
        top = A.new("cbloop"); A.label(top)
        A(f"s_min_u32 s44, s{SK}, 63")
        A(f"s_add_i32 s45, s{SK}, {64 - LY.LAG}"); A("s_min_u32 s45, s45, 127")
        A(f"s_cmp_ge_u32 s{SK}, {LY.LAG}"); A("s_cselect_b32 s45, s45, s44")
        for l, r in ((0, 44), (1, 45)):
            A(f"s_lshl_b32 s47, s{r}, 7"); A(f"s_lshl_b32 s46, s{SJ}, 3"); A("s_add_u32 s47, s47, s46")
            A(f"s_add_u32 s{SFL+l}, s47, {LY.flag_off(LY.FL_U,0,0)}")
            A(f"s_mul_i32 s47, s{r}, {448*1024}"); A(f"s_lshl_b32 s46, s{SJ}, 15"); A("s_add_u32 s47, s47, s46")
            A(f"s_add_u32 s{SU+2*l}, s47, {LY.U}"); A(f"s_add_u32 s{SU+2*l+1}, s47, {LY.U + 16384}")
        A(f"buffer_load_dwordx2 v[{WBUF}:{WBUF+1}], v1, s[32:35], s{SFL} offen sc1")
        A(f"buffer_load_dwordx2 v[{WBUF+2}:{WBUF+3}], v1, s[32:35], s{SFL+1} offen sc1")
        A(f"s_cmp_lt_u32 s{SW}, 2"); A("s_cselect_b32 s46, 12288, s77")
        p = Poll(A, 20); p.begin()
        A(f"buffer_load_dwordx4 {v(PX,4)}, v0, s[32:35], 0 offen sc1")
        A(f"buffer_load_dwordx4 {v(PX+4,4)}, v0, s[32:35], s76 offen sc1")
        A(f"buffer_load_dwordx4 {v(PX+8,4)}, v0, s[32:35], s77 offen sc1")
        A(f"buffer_load_dwordx4 {v(PX+12,4)}, v0, s[32:35], s46 offen sc1")
        A("s_waitcnt vmcnt(0)")
        for t in chk_tree(A, range(PX, PX+16), 9): A(t)
        p.end()
        stamp(A, 0, 9)
        A(f"v_add_u32 v9, s46, v4")
        for q in range(3): A(f"ds_write_b128 v4, {v(PX+q*4,4)} offset:{q*4096}")
        A(f"ds_write_b128 v9, {v(PX+12,4)}")
        A("s_waitcnt lgkmcnt(0)"); A("s_barrier")
        nomb = A.new("nomb")
        A(f"s_cmp_lg_u32 s{SW}, 0"); A(f"s_cbranch_scc1 {nomb}")
        A(f"ds_read_b128 {v(PX,4)}, v15"); A("s_waitcnt lgkmcnt(0)")
        A(f"buffer_store_dwordx4 {v(PX,4)}, v2, s[32:35], s{SMB} offen sc1")
        A.label(nomb)
        fin = A.new("cbfin")
        A(f"s_cmp_ge_u32 s{SK}, {LY.KEND}"); A(f"s_cbranch_scc1 {fin}")
        sk = A.new("ufl")
        A(f"v_and_b32 v9, v{WBUF}, v{WBUF+1}"); A(f"v_and_b32 v10, v{WBUF+2}, v{WBUF+3}"); A("v_and_b32 v9, v9, v10")
        A("v_cmp_ne_u32 vcc, 1, v9"); A(f"s_cbranch_vccz {sk}")
        p = Poll(A, 21, sleep=2); p.begin()
        A(f"buffer_load_dwordx2 v[{WBUF}:{WBUF+1}], v1, s[32:35], s{SFL} offen sc1")
        A(f"buffer_load_dwordx2 v[{WBUF+2}:{WBUF+3}], v1, s[32:35], s{SFL+1} offen sc1")
        A("s_waitcnt vmcnt(0)")
        A(f"v_and_b32 v9, v{WBUF}, v{WBUF+1}"); A(f"v_and_b32 v10, v{WBUF+2}, v{WBUF+3}"); A("v_and_b32 v9, v9, v10")
        A("v_cmp_ne_u32 vcc, 1, v9")
        p.end()
        A.label(sk)
        ureg = lambda hh, ct, l: a(UREG + ((hh * 2 + ct) * 2 + l) * 4, 4)
        uloads = [(hh, ct, l) for hh in range(4) for ct in range(2) for l in range(2)]
        A(f"ds_read_b128 {v(MBUF,4)}, v5")
        nl = 1
        for kk in range(14):
            A("s_waitcnt lgkmcnt(0)")
            pre = []
            if kk < 13: pre.append(f"ds_read_b128 {v(MBUF+((kk+1)&1)*4,4)}, v5 offset:{(kk+1)*1024}")
            for d in (2, 1):
                if kk + d in LK:
                    q = LK.index(kk + d)
                    for n in range(4 * (2 - d), 4 * (2 - d) + 4):
                        pre.append(f"ds_read_b128 {v(WBUF+n*4,4)}, v3 offset:{(q*8+n)*1024}")
            for n in range(8):
                w = v(WBUF + n*4, 4) if kk in LK else wreg(kk, n)
                A(f"{MM} {v(WACC+n*4,4)}, {v(MBUF+(kk&1)*4,4)}, {w}, {v(WACC+n*4,4) if kk else 0}")
                if n < len(pre): A(pre[n])
                if n == 6 and uloads:
                    hh, ct, l = uloads.pop(0)
                    A(f"buffer_load_dwordx4 {ureg(hh,ct,l)}, v8, s[32:35], s{SU+2*l+ct} offen offset:{hh*1024} sc1")
                if n == 2 and kk < 2:
                    hh, ct, l = uloads.pop(0)
                    A(f"buffer_load_dwordx4 {ureg(hh,ct,l)}, v8, s[32:35], s{SU+2*l+ct} offen offset:{hh*1024} sc1")
        assert not uloads
        A(f"s_cmp_lt_u32 s{SK}, {LY.LAG}"); A(f"s_cselect_b64 s[{SOV}:{SOV+1}], s[{SHI}:{SHI+1}], 0")
        A(f"s_cmp_ge_u32 s{SK}, 63"); A(f"s_cselect_b64 s[44:45], s[{SLO}:{SLO+1}], 0")
        A(f"s_or_b64 s[{SOV}:{SOV+1}], s[{SOV}:{SOV+1}], s[44:45]")
        for pq in range(2):
            for ct in range(2):
                a0 = WACC + ((2*pq)*2 + ct) * 4; b0 = WACC + ((2*pq+1)*2 + ct) * 4
                A(f"v_cvt_pk_bf16_f32 v{a0}, v{a0}, v{a0+1}"); A(f"v_cvt_pk_bf16_f32 v{a0+1}, v{a0+2}, v{a0+3}")
                A(f"v_cvt_pk_bf16_f32 v{a0+2}, v{b0}, v{b0+1}"); A(f"v_cvt_pk_bf16_f32 v{a0+3}, v{b0+2}, v{b0+3}")
        stamp(A, 1, 9)
        D0 = [MBUF, MBUF + 4]; D1 = [WACC + 8, WACC + 12]; D2 = [WACC + 24, WACC + 28]
        p = Poll(A, 22); p.begin()
        for hh in range(4):
            A(f"buffer_load_dwordx2 {v(PM+hh*2,2)}, v7, s[32:35], s{SPC} offen offset:{hh*1280} sc1")
        for hh in range(4):
            A(f"buffer_load_dwordx4 {v(PX+hh*4,4)}, v6, s[32:35], s{SPC} offen offset:{hh*1280} sc1")
        A("s_waitcnt vmcnt(0)")
        for t in chk_tree(A, range(PX, PX+24), 9): A(t)
        p.end()
        stamp(A, 2, 9)
        for pq in range(2):
            for ct in range(2):
                A(f"{MM} {v(D0[ct],4)}, {v(WACC+((2*pq)*2+ct)*4,4)}, {v(PM+pq*4,4)}, {v(D0[ct],4) if pq else 0}")
        for hh in range(4):
            for ct in range(2):
                A(f"{MM} {v(D1[ct],4)}, {ureg(hh,ct,0)}, {v(PX+hh*4,4)}, {v(D1[ct],4) if hh else v(D0[ct],4)}")
                A(f"{MM} {v(D2[ct],4)}, {ureg(hh,ct,1)}, {v(PX+hh*4,4)}, {v(D2[ct],4) if hh else v(D0[ct],4)}")
        for ct in range(2):
            for r in range(4):
                A(f"v_cndmask_b32 v{D1[ct]+r}, v{D2[ct]+r}, v{D1[ct]+r}, s[{SLO}:{SLO+1}]")
            A(f"ds_write_b128 v11, {v(D1[ct],4)} offset:{ct*1024}")
        A("s_waitcnt lgkmcnt(0)"); A("s_barrier")
        T = PX
        A(f"ds_read2st64_b64 {v(T,4)}, v12 offset0:0 offset1:4")
        A(f"ds_read2st64_b64 {v(T+4,4)}, v12 offset0:8 offset1:12")
        A("s_waitcnt lgkmcnt(0)")
        A(f"v_pk_add_f32 {v(T,2)}, {v(T,2)}, {v(T+2,2)}")
        A(f"v_pk_add_f32 {v(T+4,2)}, {v(T+4,2)}, {v(T+6,2)}")
        A(f"v_pk_add_f32 {v(T,2)}, {v(T,2)}, {v(T+4,2)}")
        A(f"v_cvt_pk_bf16_f32 v{T}, v{T}, v{T+1}")
        A(f"v_cndmask_b32 v{T}, v{T}, v14, s[{SOV}:{SOV+1}]")
        A(f"v_min_u32 v{T}, -2, v{T}")
        A(f"buffer_store_dword v{T}, v13, s[32:35], 0 offen{SF}")
        stamp(A, 3, 9)
        stamp_flush(A, 60)
        A("v_add_u32 v13, 14336, v13"); A("v_add_u32 v0, 14336, v0")
        A(f"s_add_u32 s{SPC}, s{SPC}, 20480"); A(f"s_add_u32 s{SMB}, s{SMB}, 14336")
        A(f"s_add_u32 s{SK}, s{SK}, 1")
        A(f"s_branch {top}")
        A.label(fin)
        A("s_endpgm")

def gen_k1(A, name, roles):
    kernel_head(A, name)
    dispatch(A)
    A("s_mov_b32 s76, 4096"); A("s_mov_b32 s77, 8192")
    A(f"s_cmp_lt_u32 s{SROLE}, 16"); A("s_cbranch_scc1 r_chainA")
    A(f"s_cmp_lt_u32 s{SROLE}, 32"); A("s_cbranch_scc1 r_chainB")
    for lo, hi, lab in roles:
        A(f"s_cmp_lt_u32 s{SROLE}, {hi}"); A(f"s_cbranch_scc1 {lab}")
    A.label("k1_exit")
    A("s_endpgm")
    A.label("k1_fail")
    A(f"s_lshl_b32 s55, s{SROLE}, 16"); A(f"s_lshl_b32 s56, s{SK}, 8"); A("s_or_b32 s54, s54, s55"); A("s_or_b32 s54, s54, s56")
    A("v_mov_b32 v3, s54"); A("s_and_b32 s55, s54, 15"); A("s_lshl_b32 s55, s55, 2"); A("v_mov_b32 v4, s55")
    A("buffer_store_dword v3, v4, s[36:39], 0 offen")
    A("s_endpgm")
    A.label("r_chainA"); chainA(A)
    A.label("r_chainB"); chainB(A)
    return kernel_desc(name, 512, 256)
```

```python
KB = 1024
LAG = 7
NSEG = 64
KEND = 63 + LAG
off = 0
def alloc(n):
    global off
    o = off; off += (n + 255) // 256 * 256; return o
AF  = alloc(6272 * KB)
BF  = alloc(6272 * KB)
GF  = alloc(1568 * KB)
UFW = alloc(1568 * KB)
DF  = alloc(1568 * KB)
XS  = alloc(2 * 64 * 28 * KB)
XN  = alloc(2 * 64 * 28 * KB)
X1F = alloc(2 * 64 * 56 * KB)
X2F = alloc(64 * 56 * KB)
U   = alloc(2 * 64 * 448 * KB)
PT  = alloc(2 * 64 * 40 * KB)
HH  = alloc(2 * 64 * 112 * KB)
MAXSTEP = 64 + 16
M   = alloc((MAXSTEP + 1) * 14 * KB)
MB  = alloc((MAXSTEP + 1) * 14 * KB)
PC  = alloc(MAXSTEP * 20 * KB)
ST  = alloc(3 * 64 * 7 * KB)
SENT_END = off
FL  = alloc(5 * 2 * 64 * 128)
CNT = alloc(17 * 128)
FL_END = off
FL_U, FL_XS, FL_XN, FL_P, FL_HH = range(5)
def flag_off(t, l, seg): return FL + ((t * 2 + l) * 64 + seg) * 128
DBG = alloc(256 * 80 * 64)
WS_USED = off
WS_BYTES = 268435456
SENT = 0xFFFFFFFF
LOG2E = 1.4426950408889634
def col(t, i): return 32 * (t >> 1) + 8 * (i >> 2) + 4 * (t & 1) + (i & 3)
if __name__ == "__main__":
    for k, x in list(globals().items()):
        if isinstance(x, int): print(k, x, hex(x))
```

```python
import sys
import gen_k0, gen_main, gen_bulk
from gen_common import *
NAME = "interleave_layers__memory_aug_recurrent_mem_tr__glu_gated_glu__prompt"
def make(path):
    ref = open(f"cdna_kernels/{NAME}.s.ref").read().split("\n")
    head = [l for l in ref[:ref.index('.amdgcn_target "amdgcn-amd-amdhsa--gfx950"')] if "@launch" not in l and "Override launch" not in l and "grid=ceil" not in l]
    A = Asm(); A.raw('.amdgcn_target "amdgcn-amd-amdhsa--gfx950"')
    d = gen_bulk.gen_all(A, "prep_kernel", NAME + "_kernel")
    A.pad()
    launches = [f"; @launch kernel=prep_kernel grid=({gen_k0.K0_NWG},1,1) block=(256,1,1) lds={gen_k0.K0_LDS}",
                f"; @launch kernel={NAME}_kernel grid=(256,1,1) block=(256,1,1) lds={gen_main.K1_LDS}"]
    open(path, "w").write("\n".join(head + launches) + "\n" + A.text() + d)
if __name__ == "__main__":
    make(sys.argv[1] if len(sys.argv) > 1 else f"cdna_kernels/{NAME}.s")
```

```python
import re

def R(p, n, c=1):
    return f"{p}{n}" if c == 1 else f"{p}[{n}:{n+c-1}]"
def v(n, c=1): return R("v", n, c)
def a(n, c=1): return R("a", n, c)
def s(n, c=1): return R("s", n, c)

_reg = re.compile(r"^(-|abs\()?([vas])(?:(\d+)|\[(\d+):(\d+)\])\)?$")
def regs(op):
    op = op.strip()
    if op in ("vcc",): return {("s", 106), ("s", 107)}
    if op == "vcc_lo": return {("s", 106)}
    if op == "vcc_hi": return {("s", 107)}
    if op == "exec": return {("s", 126), ("s", 127)}
    if op == "m0": return {("s", 124)}
    m = _reg.match(op)
    if not m: return set()
    k = m.group(2)
    if m.group(3) is not None: return {(k, int(m.group(3)))}
    return {(k, i) for i in range(int(m.group(4)), int(m.group(5)) + 1)}

def split_ops(rest):
    out, depth, cur = [], 0, ""
    for ch in rest:
        if ch in "[(": depth += 1
        if ch in "])": depth -= 1
        if ch == "," and depth == 0:
            out.append(cur.strip()); cur = ""
        else: cur += ch
    if cur.strip(): out.append(cur.strip())
    return out

TRANS = ("v_exp_", "v_log_", "v_rcp_", "v_rsq_", "v_sqrt_", "v_sin_", "v_cos_")

class Ins:
    __slots__ = ("text", "mn", "kind", "w", "r", "srcC", "srcAB", "passes", "dpp", "perm", "rdlane", "trans", "stdata", "wide", "sread", "states", "target", "ldst", "ldsdma")
    def __init__(self, text):
        self.text = text
        t = text.split(";")[0].strip()
        parts = t.split(None, 1)
        mn = parts[0]; rest = parts[1] if len(parts) > 1 else ""
        self.mn = mn
        ops = split_ops(rest)
        if ops:
            last = ops[-1].split()
            mods = last[1:]; ops[-1] = last[0] if last else ""
        else: mods = []
        self.w = set(); self.r = set(); self.srcC = set(); self.srcAB = set(); self.passes = 0
        self.dpp = False; self.perm = False; self.rdlane = False; self.trans = False
        self.stdata = set(); self.wide = False; self.states = 1; self.target = None; self.ldst = set(); self.ldsdma = False
        allm = " ".join(mods) + " " + rest
        if mn.startswith("v_smfmac"):
            self.kind = "mfma"
            self.w = regs(ops[0]); self.srcAB = regs(ops[1]) | regs(ops[2]) | regs(ops[3]); self.srcC = regs(ops[0])
            self.r = self.srcAB | self.srcC
            self.passes = 8 if "32x32" in mn else 4
        elif mn.startswith("v_mfma"):
            self.kind = "mfma"
            self.w = regs(ops[0]); self.srcAB = regs(ops[1]) | regs(ops[2]); self.srcC = regs(ops[3])
            self.r = self.srcAB | self.srcC
            self.passes = 8 if "32x32" in mn else 4
        elif mn.startswith("v_"):
            self.kind = "valu"
            self.w = regs(ops[0])
            srcs = ops[1:]
            if "_co_" in mn or mn.startswith("v_div_scale"):
                self.w |= regs(ops[1]); srcs = ops[2:]
            for o in srcs: self.r |= regs(o)
            if mn.startswith("v_permlane"):
                self.perm = True; self.w |= regs(ops[1]); self.r |= regs(ops[0])
            if mn.startswith(("v_fmac", "v_pk_fmac", "v_writelane")): self.r |= regs(ops[0])
            if mn.startswith(("v_readlane", "v_readfirstlane")): self.rdlane = True
            if "_dpp" in mn or "row_" in allm or "quad_perm" in allm:
                self.dpp = True; self.r |= regs(ops[0])
            if mn.startswith(TRANS): self.trans = True
            if mn.startswith("v_cndmask") and len(ops) == 3: self.r |= regs("vcc")
            if mn.startswith("v_cmpx"): self.w |= regs("exec")
        elif mn.startswith(("buffer_", "global_")):
            self.kind = "vmem"
            if mn in ("buffer_inv", "buffer_wbl2"): pass
            elif "load" in mn:
                if " lds" in (" " + allm) or "_lds_" in mn:
                    self.ldsdma = True
                    for o in ops: self.r |= regs(o)
                    self.r |= regs("m0")
                else:
                    self.ldst = regs(ops[0]); self.w = set(self.ldst)
                    for o in ops[1:]: self.r |= regs(o)
            elif "store" in mn:
                if mn.startswith("buffer_"): self.stdata = regs(ops[0])
                else: self.stdata = regs(ops[1])
                self.wide = len(self.stdata) >= 3
                for o in ops: self.r |= regs(o)
            else:
                for o in ops: self.r |= regs(o)
                if "sc0" in allm: self.ldst = regs(ops[0]); self.w = set(self.ldst)
        elif mn.startswith("ds_"):
            self.kind = "ds"
            if mn.startswith(("ds_read", "ds_bpermute", "ds_permute", "ds_swizzle")):
                self.ldst = regs(ops[0]); self.w = set(self.ldst)
                for o in ops[1:]: self.r |= regs(o)
            else:
                for o in ops: self.r |= regs(o)
        elif mn.startswith("s_"):
            self.kind = "salu"
            if mn == "s_nop": self.states = int(ops[0], 0) + 1
            elif mn.startswith(("s_cbranch", "s_branch")): self.target = ops[0]
            elif mn.startswith(("s_cmp", "s_waitcnt", "s_barrier", "s_sleep", "s_endpgm", "s_setprio", "s_bitcmp")):
                for o in ops: self.r |= regs(o)
            else:
                if ops: self.w = regs(ops[0])
                for o in ops[1:]: self.r |= regs(o)
                if "saveexec" in mn: self.w |= regs("exec")
        else:
            raise ValueError("unknown instr " + text)

def isv(x): return x[0] in "va"
def need(p, c):
    n = 0
    vw = {x for x in p.w if isv(x)}; sw = {x for x in p.w if x[0] == "s"}
    if p.kind == "valu":
        if c.kind == "mfma" and vw & c.r: n = max(n, 2)
        if c.kind == "valu":
            if (c.dpp or c.perm) and vw & c.r: n = max(n, 2)
            if c.rdlane and vw & c.r: n = max(n, 1)
            if p.trans and not c.trans and vw & c.r: n = max(n, 1)
            if p.trans and c.trans and vw & c.r: n = max(n, 1)
            if sw & c.r: n = max(n, 4 if c.rdlane or c.mn.startswith("v_writelane") else 2)
            if c.mn.startswith("v_div_fmas") and sw: n = max(n, 4)
            if regs("exec") & sw: n = max(n, 5 if c.dpp else 4 if (c.rdlane or c.perm) else 0)
        if c.kind == "mfma" and regs("exec") & sw: n = max(n, 4)
        if c.kind == "vmem" and sw & c.r: n = max(n, 5)
        if c.kind == "salu" and sw & c.r: n = max(n, 1)
    if p.kind == "mfma":
        big = {4: 8, 8: 12}[p.passes]
        if c.kind == "mfma":
            if p.w & c.srcAB: n = max(n, big)
            if p.w & c.srcC and not (p.w == c.srcC and p.passes == c.passes): n = max(n, {4: 6, 8: 10}[p.passes])
            if p.w & c.w and not (p.w == c.srcC and p.passes == c.passes): n = max(n, {4: 6, 8: 10}[p.passes])
        elif c.kind in ("valu", "vmem", "ds"):
            if p.w & (c.r | c.w): n = max(n, big)
            if c.kind == "valu" and p.srcC & c.w: n = max(n, {4: 3, 8: 7}[p.passes])
            if c.kind in ("vmem", "ds") and p.srcC & c.ldst: n = max(n, {4: 3, 8: 7}[p.passes])
    if p.kind == "vmem" and p.wide:
        if p.stdata & c.w: n = max(n, 2 if c.kind in ("valu", "mfma") else 1)
    if p.kind == "salu" and ("s", 124) in p.w and (c.ldsdma or "addtid" in c.mn): n = max(n, 1)
    return n

WIN = 14
class Asm:
    def __init__(self):
        self.items = []
        self.uid = 0
    def __call__(self, text):
        for line in text.split("\n"):
            line = line.strip()
            if not line or line.startswith(";"): continue
            if line.endswith(":"): self.items.append(("l", line[:-1]))
            elif line.startswith("."): self.items.append(("t", line))
            else: self.items.append(("i", Ins(line)))
    def label(self, name): self.items.append(("l", name))
    def raw(self, text): self.items.append(("t", text))
    def new(self, base="L"):
        self.uid += 1; return f"{base}_{self.uid}"

    def _following(self, idx, limit):
        out = []; d = 0
        while idx < len(self.items) and d < limit:
            k, x = self.items[idx]
            if k == "i":
                out.append((d, x)); d += x.states
                if x.mn in ("s_branch", "s_endpgm"): break
            idx += 1
        return out

    def pad(self):
        changed = True; total = 0
        while changed:
            changed = False
            labels = {x: i for i, (k, x) in enumerate(self.items) if k == "l"}
            i = 0
            n = len(self.items)
            new_items = []
            hist = []
            for i in range(n):
                k, x = self.items[i]
                if k != "i":
                    new_items.append((k, x)); continue
                req = 0; d = 0
                for p in reversed(hist):
                    if d >= WIN: break
                    req = max(req, need(p, x) - d)
                    d += p.states
                if x.target is not None and x.target in labels:
                    foll = self._following(labels[x.target], WIN)
                    d = 1
                    for p in reversed(hist):
                        if d >= WIN: break
                        for (fd, c) in foll:
                            req = max(req, need(p, c) - d - fd)
                        d += p.states
                if req > 0:
                    while req > 0:
                        q = min(req, 16)
                        nop = Ins(f"s_nop {q-1}")
                        new_items.append(("i", nop)); hist.append(nop); req -= q
                    changed = True; total += 1
                new_items.append((k, x)); hist.append(x)
                if x.mn in ("s_branch", "s_endpgm"): hist = []
                if len(hist) > 40: hist = hist[-24:]
            self.items = new_items
        return total

    def text(self):
        out = []
        for k, x in self.items:
            if k == "i": out.append("  " + x.text)
            elif k == "l": out.append(x + ":")
            else: out.append(x)
        return "\n".join(out) + "\n"

class VM:
    def __init__(self, A): self.A = A; self.n = 0
    def issue(self, text):
        self.A(text); self.n += 1; return self.n
    def wait(self, idn):
        self.A(f"s_waitcnt vmcnt({self.n - idn})")
    def reset(self): self.n = 0
```

```python
from gen_common import *
from gen_main import *
import gen_main as GM
SL = 58
NEG = -1e9 * LY.LOG2E
NFILL = GM.NFILL

def task_off(A, sd, sseg, bytes_per, base, use_layer=True):
    if use_layer:
        A(f"s_lshl_b32 s{sd}, s{SL}, 6"); A(f"s_add_u32 s{sd}, s{sd}, s{sseg}"); A(f"s_mul_i32 s{sd}, s{sd}, {bytes_per}")
    else:
        A(f"s_mul_i32 s{sd}, s{sseg}, {bytes_per}")
    A(f"s_add_u32 s{sd}, s{sd}, {base}")

def rec_off(A, sd, sseg, field, per_layer=0, step=False):
    if step:
        A(f"s_mul_i32 s{sd}, s{SL}, {LY.LAG}"); A(f"s_add_u32 s{sd}, s{sd}, s{sseg}"); A(f"s_mul_i32 s{sd}, s{sd}, {LY.RS}")
    else:
        A(f"s_mul_i32 s{sd}, s{sseg}, {LY.RS}")
    if per_layer:
        A(f"s_mul_i32 s43, s{SL}, {per_layer}") if False else None
        A(f"s_cmp_eq_u32 s{SL}, 0"); A(f"s_cselect_b32 s47, 0, {per_layer}"); A(f"s_add_u32 s{sd}, s{sd}, s47")
    A(f"s_add_u32 s{sd}, s{sd}, {LY.S1_BEG + field}")

def step_off(A, sd, sseg, bytes_per, base):
    A(f"s_mul_i32 s{sd}, s{SL}, {LY.LAG}"); A(f"s_add_u32 s{sd}, s{sd}, s{sseg}"); A(f"s_mul_i32 s{sd}, s{sd}, {bytes_per}")
    A(f"s_add_u32 s{sd}, s{sd}, {base}")

def wait_ready(A, vt, code, sseg, stride=1):
    sk = A.new("rdy")
    A(f"s_and_b32 s44, s{sseg}, 7"); A(f"s_cmp_ge_u32 s44, {stride}"); A(f"s_cbranch_scc1 {sk}")
    A(f"s_lshr_b32 s44, s{sseg}, 3"); A("s_lshl_b32 s44, s44, 7"); A(f"s_add_u32 s44, s44, {LY.CNT + 17*128}")
    A(f"v_mov_b32 v{vt}, 0")
    p = Poll(A, code, sleep=8); p.begin()
    A(f"buffer_load_dword v{vt+1}, v{vt}, s[32:35], s44 offen sc1")
    A("s_waitcnt vmcnt(0)")
    A(f"v_cmp_ne_u32 vcc, {NFILL}, v{vt+1}")
    p.end()
    A.label(sk)

def loads7(A, ssrc, stmp, vwl, regs0, flags=" sc1"):
    A(f"s_add_u32 s{stmp}, s{ssrc}, 4096")
    for i in range(7):
        A(f"buffer_load_dwordx4 {v(regs0+i*4,4)}, v{vwl}, s[32:35], s{ssrc if i < 4 else stmp} offen offset:{(i%4)*1024}{flags}")

def xorsum(A, x, t):
    for op in ("v_permlane16_swap_b32", "v_permlane32_swap_b32"):
        A(f"v_mov_b32 v{t}, v{x}")
        A(f"{op} v{x}, v{t}")
        A(f"v_add_f32 v{x}, v{x}, v{t}")

def stat_addrs(A, vj, vg, va, va4, vmask, t):
    A(f"s_lshr_b32 s44, s{SW}, 1"); A("s_lshl_b32 s44, s44, 11")
    A(f"v_lshlrev_b32 v{va}, 7, v{vg}"); A(f"v_lshl_add_u32 v{va}, v{vj}, 3, v{va}"); A(f"v_add_u32 v{va}, s44, v{va}")
    A(f"v_add_u32 v{va4}, 1536, v{va}"); A(f"v_mov_b32 v{t}, {OOB}"); A(f"v_cmp_gt_u32 vcc, 2, v{vg}")
    A(f"v_cndmask_b32 v{va4}, v{t}, v{va4}, vcc")
    A(f"v_mov_b32 v{t}, 1.0"); A(f"v_mov_b32 v{vmask}, 0"); A(f"v_cndmask_b32 v{vmask}, v{vmask}, v{t}, vcc")

def stat_loads(A, R_, va, va4, sst):
    for q in range(3): A(f"buffer_load_dwordx2 {v(R_+2*q,2)}, v{va}, s[32:35], s{sst} offen offset:{q*512} sc1")
    A(f"buffer_load_dwordx2 {v(R_+6,2)}, v{va4}, s[32:35], s{sst} offen sc1")

def stat_combine(A, R_, vmask, T):
    A(f"v_add_f32 v{T}, v{R_}, v{R_+2}"); A(f"v_add_f32 v{T+1}, v{R_+4}, v{R_+6}"); A(f"v_add_f32 v{T}, v{T}, v{T+1}")
    xorsum(A, T, T+2)
    A(f"v_mul_f32 v{T}, {f32(1/14)}, v{T}")
    A(f"v_add_f32 v{T+1}, v{R_+1}, v{R_+3}"); A(f"v_add_f32 v{T+2}, v{R_+5}, v{R_+7}"); A(f"v_add_f32 v{T+1}, v{T+1}, v{T+2}")
    for q in range(4): A(f"v_sub_f32 v{R_+2*q}, v{R_+2*q}, v{T}")
    A(f"v_mul_f32 v{R_+6}, v{R_+6}, v{vmask}")
    A(f"v_mul_f32 v{T+2}, v{R_}, v{R_}")
    for q in range(1, 4): A(f"v_fmac_f32 v{T+2}, v{R_+2*q}, v{R_+2*q}")
    A(f"v_fmac_f32 v{T+1}, {f32(32.0)}, v{T+2}")
    xorsum(A, T+1, T+2)
    A(f"v_mov_b32 v{T+2}, {f32(1e-5)}")
    A(f"v_fmac_f32 v{T+2}, {f32(1/448)}, v{T+1}")
    A(f"v_rsq_f32 v{T+2}, v{T+2}")
    A(f"v_mul_f32 v{T+1}, v{T}, v{T+2}"); A(f"v_sub_f32 v{T+1}, 0, v{T+1}")
    A(f"v_mov_b32 v{T}, v{T+2}")

def checked_stage(A, ssrc, sst, vwl, STG, R_, va, va4, vmask, T, vtab, ldsbase, code, tchk):
    p = Poll(A, code, sleep=1); p.begin()
    stat_loads(A, R_, va, va4, sst)
    loads7(A, ssrc, 47, vwl, STG)
    A("s_waitcnt vmcnt(0)")
    for t in chk_tree(A, list(range(STG, STG+28)) + list(range(R_, R_+8)), tchk): A(t)
    p.end()
    for i in range(7): A(f"ds_write_b128 v{vwl}, {v(STG+i*4,4)} offset:{ldsbase+i*1024}")
    stat_combine(A, R_, vmask, T)
    A(f"ds_write_b32 v{vtab}, v{T}"); A(f"ds_write_b32 v{vtab}, v{T+1} offset:128")
    A("s_waitcnt lgkmcnt(0)"); A("s_barrier")

def lds_gemm(A, nk, nfr, rd, FB, mf, fill=(), every=2, start=1):
    fill = list(fill); cnt = 0
    buf = lambda kk, f: FB + ((kk % 3) * nfr + f) * 4
    for kk in range(min(2, nk)):
        for f in range(nfr): A(rd(kk, f, buf(kk, f)))
    for kk in range(nk):
        A(f"s_waitcnt lgkmcnt({nfr if kk + 1 < nk else 0})")
        for n, m in enumerate(mf(kk, [buf(kk, f) for f in range(nfr)])):
            A(m)
            if kk + 2 < nk and n < nfr: A(rd(kk + 2, n, buf(kk + 2, n)))
            cnt += 1
            if fill and cnt >= start and (cnt - start) % every == 0:
                x = fill.pop(0)
                for y in (x if isinstance(x, (list, tuple)) else [x]): A(y)
    return fill

def loads7_list(ssrc, stmp, vwl, regs0, flags=" sc1"):
    return [f"buffer_load_dwordx4 {v(regs0+i*4,4)}, v{vwl}, s[32:35], s{ssrc if i < 4 else stmp} offen offset:{(i%4)*1024}{flags}" for i in range(7)]

def stat_loads_list(R_, va, va4, sst):
    return [f"buffer_load_dwordx2 {v(R_+2*q,2)}, v{va}, s[32:35], s{sst} offen offset:{q*512} sc1" for q in range(3)] + \
           [f"buffer_load_dwordx2 {v(R_+6,2)}, v{va4}, s[32:35], s{sst} offen sc1"]

def staged_input(A, loads, nyoung, STG, R_, vwl, vmask, T, vtab, code, tchk, on_miss=None):
    ok = A.new("sok")
    regs_ = list(range(STG, STG+28)) + list(range(R_, R_+8))
    A(f"s_waitcnt vmcnt({nyoung})")
    for t in chk_tree(A, regs_, tchk): A(t)
    A(f"s_cbranch_vccz {ok}")
    if on_miss: on_miss()
    p = Poll(A, code); p.begin()
    for t in loads: A(t)
    A("s_waitcnt vmcnt(0)")
    for t in chk_tree(A, regs_, tchk): A(t)
    p.end()
    A.label(ok)
    for i in range(7): A(f"ds_write_b128 v{vwl}, {v(STG+i*4,4)} offset:{i*1024}")
    stat_combine(A, R_, vmask, T)
    A(f"ds_write_b32 v{vtab}, v{T}"); A(f"ds_write_b32 v{vtab}, v{T+1} offset:128")
    A("s_waitcnt lgkmcnt(0)"); A("s_barrier")

def unpack8(A, src, dst):
    for q in range(4):
        A(f"v_lshlrev_b32 v{dst+2*q}, 16, v{src+q}"); A(f"v_and_b32 v{dst+2*q+1}, 0xffff0000, v{src+q}")

def final_addrs(A, sj, vj, vg, vred_w, vred_r, vfrag, vrec, vrow, lred, t):
    A(f"s_lshl_b32 s45, s{SW}, 12"); A(f"s_add_u32 s45, s45, {lred}"); A(f"v_add_u32 v{vred_w}, s45, v2")
    A(f"s_and_b32 s46, s{SW}, 1")
    A(f"s_lshl_b32 s45, s46, 10"); A(f"s_add_u32 s45, s45, {lred}"); A(f"v_add_u32 v{vred_r}, s45, v2")
    A(f"s_mul_i32 s45, s46, 14"); A(f"s_add_u32 s45, s45, s{sj}"); A("s_lshl_b32 s45, s45, 10"); A(f"v_add_u32 v{vfrag}, s45, v2")
    A(f"s_lshl_b32 s45, s46, 11"); A(f"s_lshl_b32 s44, s{sj}, 7"); A("s_add_u32 s45, s45, s44")
    A(f"v_lshlrev_b32 v{vrec}, 3, v{vj}"); A(f"v_add_u32 v{vrec}, s45, v{vrec}")
    A(f"v_mov_b32 v{t}, {OOB}"); A(f"v_cmp_eq_u32 vcc, 0, v{vg}"); A(f"v_cndmask_b32 v{vrec}, v{t}, v{vrec}, vcc")
    A(f"s_lshl_b32 s45, s46, 4"); A(f"v_add_u32 v{vrow}, s45, v{vj}"); A(f"v_mul_u32_u24 v{vrow}, 896, v{vrow}")
    A(f"v_lshl_add_u32 v{vrow}, v{vg}, 4, v{vrow}"); A(f"s_lshl_b32 s45, s{sj}, 6"); A(f"v_add_u32 v{vrow}, s45, v{vrow}")

def final_sum(A, vred_r, PR, RES, Y):
    for ct in range(2):
        for w in range(4): A(f"ds_read_b128 {v(PR+(ct*4+w)*4,4)}, v{vred_r} offset:{w*4096 + ct*2048}")
    unpack8(A, RES, Y)
    for ct in range(2):
        A(f"s_waitcnt lgkmcnt({4 - 4*ct})")
        b = PR + ct * 16
        for r in (0, 2):
            A(f"v_pk_add_f32 {v(b+r,2)}, {v(b+r,2)}, {v(b+4+r,2)}"); A(f"v_pk_add_f32 {v(b+8+r,2)}, {v(b+8+r,2)}, {v(b+12+r,2)}")
        for r in (0, 2): A(f"v_pk_add_f32 {v(b+r,2)}, {v(b+r,2)}, {v(b+8+r,2)}")
        for r in (0, 2): A(f"v_pk_add_f32 {v(Y+ct*4+r,2)}, {v(Y+ct*4+r,2)}, {v(b+r,2)}")

def final_publish(A, Y, T, vfrag, vrec, sdst, sst):
    for q in range(4): A(f"v_cvt_pk_bf16_f32 v{T+4+q}, v{Y+2*q}, v{Y+2*q+1}")
    for q in range(4): A(f"v_min_u32 v{T+4+q}, -2, v{T+4+q}")
    A(f"buffer_store_dwordx4 {v(T+4,4)}, v{vfrag}, s[32:35], s{sdst} offen sc1")
    A(f"v_add_f32 v{T}, v{Y}, v{Y+1}"); A(f"v_add_f32 v{T+1}, v{Y+2}, v{Y+3}")
    A(f"v_add_f32 v{T+2}, v{Y+4}, v{Y+5}"); A(f"v_add_f32 v{T+3}, v{Y+6}, v{Y+7}")
    A(f"v_add_f32 v{T}, v{T}, v{T+1}"); A(f"v_add_f32 v{T+2}, v{T+2}, v{T+3}"); A(f"v_add_f32 v{T}, v{T}, v{T+2}")
    xorsum(A, T, T+2)
    A(f"v_mul_f32 v{T}, {f32(1/32)}, v{T}")
    for r in range(8): A(f"v_sub_f32 v{Y+r}, v{Y+r}, v{T}")
    A(f"v_mul_f32 v{T+1}, v{Y}, v{Y}"); A(f"v_mul_f32 v{T+3}, v{Y+1}, v{Y+1}")
    for r in range(2, 8, 2):
        A(f"v_fmac_f32 v{T+1}, v{Y+r}, v{Y+r}"); A(f"v_fmac_f32 v{T+3}, v{Y+r+1}, v{Y+r+1}")
    A(f"v_add_f32 v{T+1}, v{T+1}, v{T+3}")
    xorsum(A, T+1, T+2)
    A(f"v_min_u32 v{T}, -2, v{T}"); A(f"v_min_u32 v{T+1}, -2, v{T+1}")
    A(f"buffer_store_dwordx2 {v(T,2)}, v{vrec}, s[32:35], s{sst} offen sc1")

def pack2(A, a0, b0):
    A(f"v_cvt_pk_bf16_f32 v{a0}, v{a0}, v{a0+1}"); A(f"v_cvt_pk_bf16_f32 v{a0+1}, v{a0+2}, v{a0+3}")
    A(f"v_cvt_pk_bf16_f32 v{a0+2}, v{b0}, v{b0+1}"); A(f"v_cvt_pk_bf16_f32 v{a0+3}, v{b0+2}, v{b0+3}")

def roleFill(A):
    A(f"s_lshr_b32 s44, s{SROLE}, 5"); A("s_sub_u32 s44, s44, 3"); A("s_lshl_b32 s44, s44, 2")
    A(f"s_add_u32 s44, s44, s{SRANK}"); A("s_sub_u32 s44, s44, 28")
    A("s_lshl_b32 s60, s44, 12"); A(f"s_add_u32 s60, s60, {LY.S1_BEG}")
    A(f"s_mov_b32 s61, {LY.S1_BEG + 8*LY.RS}"); A(f"s_mov_b32 s62, {LY.CNT + 17*128}")
    A("v_lshlrev_b32 v3, 4, v0")
    for r in range(4): A(f"v_mov_b32 v{4+r}, -1")
    A("v_mov_b32 v8, 0"); A("v_mov_b32 v9, 1")
    G = A.new("fgrp"); A.label(G)
    L = A.new("fill"); A.label(L)
    A("buffer_store_dwordx4 v[4:7], v3, s[32:35], s60 offen sc1")
    A(f"s_add_u32 s60, s60, {NFILL*4096}"); A("s_cmp_lt_u32 s60, s61"); A(f"s_cbranch_scc1 {L}")
    A("s_waitcnt vmcnt(0)"); A("s_barrier")
    sk = A.new("fd")
    A(f"s_cmp_lg_u32 s{SW}, 0"); A(f"s_cbranch_scc1 {sk}")
    A("s_mov_b64 exec, 1")
    A("buffer_atomic_add v9, v8, s[32:35], s62 offen sc1")
    A("s_mov_b64 exec, -1")
    A.label(sk)
    A(f"s_add_u32 s61, s61, {8*LY.RS}"); A("s_add_u32 s62, s62, 128")
    A(f"s_cmp_le_u32 s61, {LY.S1_END}"); A(f"s_cbranch_scc1 {G}")
    A("s_endpgm")

def roleTA(A):
    SM, ST_, SH, SOWN, SMK = 60, 74, 59, 82, 86
    SS, SA, SB = 94, 95, 96
    ACC, FB, SC = 16, 72, 96
    acc = lambda j, tt: ACC + (j * 2 + tt) * 4
    LXS, LP = 0, 28672
    A(f"s_lshr_b32 s{SL}, s{SROLE}, 5"); A(f"s_sub_u32 s{SL}, s{SL}, 1")
    A(f"s_and_b32 s{SH}, s{SRANK}, 15")
    a_slots_setup(A, SM, ST_, SH)
    for i in range(4): A(f"s_mov_b32 s{SOWN+i}, s{SM+10+i}")
    for i in range(14): A(f"s_mov_b32 s{SM+i}, {i*1024}")
    load_A_weights(A, SM, ST_, wregA)
    A(f"s_lshl_b32 s97, s46, 3")
    A(f"s_mov_b32 s98, s46")
    A("v_and_b32 v9, 15, v1"); A("v_lshrrev_b32 v10, 4, v1")
    A(f"s_mul_i32 s45, s{SW}, 7168"); A("v_add_u32 v3, s45, v2")
    A(f"s_mul_i32 s45, s{SW}, 6656"); A(f"s_add_u32 s45, s45, {LP}")
    A("v_mul_u32_u24 v4, 208, v9"); A("v_lshl_add_u32 v4, v10, 4, v4"); A("v_add_u32 v4, s45, v4")
    A("v_lshrrev_b32 v9, 3, v0"); A("v_and_b32 v10, 7, v0")
    A("v_lshrrev_b32 v11, 1, v10"); A("v_lshlrev_b32 v11, 2, v11"); A("v_and_b32 v12, 1, v10"); A("v_lshl_add_u32 v11, v12, 4, v11")
    for r in range(4):
        A(f"v_add_u32 v12, {r}, v11"); A(f"v_cmp_le_u32 s[{SMK+2*r}:{SMK+2*r+1}], v12, v9")
    A("v_mul_u32_u24 v12, 208, v9"); A(f"v_add_u32 v12, {LP}, v12")
    A("v_lshl_add_u32 v5, v11, 2, v12"); A("v_add_u32 v5, 64, v5")
    A("v_lshl_add_u32 v6, v10, 2, v12")
    A("v_and_b32 v11, 15, v9"); A("v_lshrrev_b32 v12, 4, v9")
    A("v_lshrrev_b32 v7, 1, v10"); A("v_lshl_add_u32 v7, v7, 4, v11"); A("v_lshlrev_b32 v7, 4, v7")
    A("v_lshl_add_u32 v7, v12, 10, v7"); A("v_and_b32 v13, 1, v10"); A("v_lshl_add_u32 v7, v13, 3, v7")
    A(f"s_lshl_b32 s45, s{SH}, 11"); A("v_add_u32 v7, s45, v7")
    A("v_lshrrev_b32 v8, 1, v10"); A("v_lshl_add_u32 v8, v8, 4, v11"); A("v_lshlrev_b32 v8, 2, v8")
    A("v_lshl_add_u32 v8, v12, 8, v8")
    A(f"s_lshl_b32 s45, s{SH}, 9"); A("s_add_u32 s45, s45, 32768"); A("v_add_u32 v8, s45, v8")
    A("v_cmp_eq_u32 vcc, 0, v13"); A(f"v_mov_b32 v12, {OOB}"); A("v_cndmask_b32 v8, v12, v8, vcc")
    A("v_and_b32 v9, 15, v1"); A("v_lshrrev_b32 v10, 4, v1")
    A("v_lshl_add_u32 v15, v10, 3, v9"); A("v_lshlrev_b32 v15, 4, v15"); A("v_cmp_gt_u32 vcc, 8, v9"); A("v_cndmask_b32 v15, v12, v15, vcc")
    for i in range(4): A(f"s_lshr_b32 s{74+i}, s{SOWN+i}, 1")
    A("v_min_u32 v13, 27, v1"); A("v_lshlrev_b32 v13, 7, v13")
    A(f"v_mov_b32 v14, {f32(NEG)}")
    A(f"s_lshr_b32 s{SS}, s{SRANK}, 4")
    top = A.new("ta"); A.label(top)
    A(f"s_mov_b32 s{SK}, s{SS}")
    stampB(A, 0, 116)
    nf = A.new("nf")
    A(f"s_cmp_eq_u32 s{SL}, 0"); A(f"s_cbranch_scc1 {nf}")
    task_off(A, SA, SS, 3584, LY.FX, False)
    p = Poll(A, 30, sleep=2); p.begin()
    A(f"buffer_load_dword v9, v13, s[32:35], s{SA} offen sc1"); A("s_waitcnt vmcnt(0)"); A("v_cmp_ne_u32 vcc, 1, v9")
    p.end()
    A.label(nf)
    stampB(A, 1, 116)
    task_off(A, SA, SS, 28672, LY.XS)
    loads7(A, SA, 47, 3, ACC)
    for i in range(7):
        A(f"s_waitcnt vmcnt({6-i})"); A(f"ds_write_b128 v3, {v(ACC+i*4,4)} offset:{LXS+i*1024}")
    A("s_waitcnt lgkmcnt(0)"); A("s_barrier")
    stampB(A, 2, 116)
    lds_gemm(A, 14, 2, lambda kk, f, d: f"ds_read_b128 {v(d,4)}, v2 offset:{LXS + f*14336 + kk*1024}", FB,
             lambda kk, fr: [f"{MM} {v(acc(j,tt),4)}, {wregA(j,kk)}, {v(fr[tt],4)}, {v(acc(j,tt),4) if kk else 0}" for j in range(7) for tt in range(2)])
    def pack(q, tt):
        a0 = acc(2*q, tt)
        if q < 3: pack2(A, a0, acc(2*q+1, tt))
        else:
            A(f"v_cvt_pk_bf16_f32 v{a0}, v{a0}, v{a0+1}"); A(f"v_cvt_pk_bf16_f32 v{a0+1}, v{a0+2}, v{a0+3}")
    sc = lambda kt, tt: SC + {(0,0): 0, (1,0): 4, (0,1): 8, (1,1): 12, (2,1): 16}[(kt, tt)]
    def keyread(ks):
        b = FB + 16 - (ks & 1) * 16
        A(f"v_add_u32 v9, s{SOWN+ks}, v2")
        if ks == 3: A("v_add_u32 v9, s97, v9")
        for tt in range(2):
            if ks < 3: A(f"ds_read_b128 {v(b+tt*4,4)}, v9 offset:{LXS + tt*14336}")
            else: A(f"ds_read_b64 {v(b+tt*4,2)}, v9 offset:{LXS + tt*14336}")
    keyread(0)
    for q in range(4):
        for tt in range(2): pack(q, tt)
    for ks in range(4):
        A("s_waitcnt lgkmcnt(0)")
        if ks < 3: keyread(ks + 1)
        b = FB + 16 - (ks & 1) * 16; w = 4 if ks < 3 else 2; op = MM if ks < 3 else MM16
        for (kt, tt) in ((1,0), (1,1), (2,1)):
            A(f"{op} {v(sc(kt,tt),4)}, {v(b+(kt-1)*4,w)}, {v(acc(2*ks,tt),w)}, {v(sc(kt,tt),4) if ks else 0}")
    for (kt, tt) in ((1,0), (1,1), (2,1)):
        A(f"ds_write_b128 v4, {v(sc(kt,tt),4)} offset:{tt*16*208 + kt*64}")
    stampB(A, 3, 116)
    MF = [acc(1,0), acc(1,1), acc(3,0), acc(3,1)]
    wait_ready(A, 9, 32, SS, 2)
    task_off(A, SB, SS, 7168, LY.MB); A(f"v_add_u32 v9, s{SB}, v15")
    rec_off(A, SA, SS, LY.R_PT, 40960)
    p = Poll(A, 31, sleep=1); p.begin()
    for ks in range(4): A(f"buffer_load_dwordx4 {v(MF[ks],4)}, v9, s[32:35], s{74+ks} offen sc1")
    A("s_waitcnt vmcnt(0)")
    for t in chk_tree(A, [MF[ks]+r for ks in range(4) for r in range(4)], 10): A(t)
    p.end()
    stampB(A, 4, 116)
    A(f"s_cmp_eq_u32 s98, 0"); A("s_cselect_b64 vcc, -1, 0")
    A(f"v_cndmask_b32 v{MF[3]}, v{MF[3]+2}, v{MF[3]}, vcc"); A(f"v_cndmask_b32 v{MF[3]+1}, v{MF[3]+3}, v{MF[3]+1}, vcc")
    for ks in range(4):
        w = 4 if ks < 3 else 2; op = MM if ks < 3 else MM16
        for tt in range(2):
            A(f"{op} {v(sc(0,tt),4)}, {v(MF[ks],w)}, {v(acc(2*ks,tt),w)}, {v(sc(0,tt),4) if ks else 0}")
    for tt in range(2):
        A(f"ds_write_b128 v4, {v(sc(0,tt),4)} offset:{tt*16*208}")
    A("s_waitcnt lgkmcnt(0)"); A("s_barrier")
    T = ACC
    for w in range(4): A(f"ds_read_b128 {v(T+w*4,4)}, v5 offset:{w*6656}")
    for w in range(4): A(f"ds_read_b32 v{T+16+w}, v6 offset:{w*6656}")
    A("s_waitcnt lgkmcnt(4)")
    for r in (0, 2):
        A(f"v_pk_add_f32 {v(T+r,2)}, {v(T+r,2)}, {v(T+4+r,2)}"); A(f"v_pk_add_f32 {v(T+8+r,2)}, {v(T+8+r,2)}, {v(T+12+r,2)}")
    for r in (0, 2): A(f"v_pk_add_f32 {v(T+r,2)}, {v(T+r,2)}, {v(T+8+r,2)}")
    A("s_waitcnt lgkmcnt(0)")
    A("s_barrier")
    A(f"v_add_f32 v{T+16}, v{T+16}, v{T+17}"); A(f"v_add_f32 v{T+18}, v{T+18}, v{T+19}")
    for r in range(4): A(f"v_cndmask_b32 v{T+r}, v14, v{T+r}, s[{SMK+2*r}:{SMK+2*r+1}]")
    A(f"v_add_f32 v{T+4}, v{T+16}, v{T+18}")
    A(f"v_max3_f32 v{T+5}, v{T}, v{T+1}, v{T+2}"); A(f"v_max3_f32 v{T+5}, v{T+5}, v{T+3}, v{T+4}")
    dpp_reduce8(A, "v_max_f32", T+5, None)
    for r in range(5): A(f"v_sub_f32 v{T+r}, v{T+r}, v{T+5}")
    for r in range(5): A(f"v_exp_f32 v{T+r}, v{T+r}")
    A(f"v_add_f32 v{T+5}, v{T}, v{T+1}"); A(f"v_add_f32 v{T+6}, v{T+2}, v{T+3}")
    A(f"v_add_f32 v{T+5}, v{T+5}, v{T+4}"); A(f"v_add_f32 v{T+5}, v{T+5}, v{T+6}")
    dpp_reduce8(A, "v_add_f32", T+5, None)
    A(f"v_rcp_f32 v{T+5}, v{T+5}")
    for r in range(5): A(f"v_mul_f32 v{T+r}, v{T+r}, v{T+5}")
    A(f"v_mov_b32_dpp v{T+6}, v{T+4} quad_perm:[1,0,3,2] row_mask:0xf bank_mask:0xf")
    A(f"v_cvt_pk_bf16_f32 v{T}, v{T}, v{T+1}"); A(f"v_cvt_pk_bf16_f32 v{T+1}, v{T+2}, v{T+3}")
    A(f"v_cvt_pk_bf16_f32 v{T+4}, v{T+4}, v{T+6}")
    for r in (0, 1, 4): A(f"v_min_u32 v{T+r}, -2, v{T+r}")
    A(f"buffer_store_dwordx2 {v(T,2)}, v7, s[32:35], s{SA} offen sc1")
    A(f"buffer_store_dword v{T+4}, v8, s[32:35], s{SA} offen sc1")
    stampB(A, 5, 116)
    A(f"s_add_u32 s{SS}, s{SS}, 2"); A(f"s_cmp_lt_u32 s{SS}, 64"); A(f"s_cbranch_scc1 {top}")
    A("s_endpgm")

def roleU(A):
    SS, SA, SB, SC_, SN, SN2, SST, SFP, SFX_ = 61, 62, 63, 64, 65, 66, 67, 68, 69
    ACC, FB, STG, R_, T, CS, TB, ONE = 24, 56, 80, 108, 116, 124, 128, 144
    LTAB = 65536
    wreg = lambda hh, kk: a((hh * 14 + kk) * 4, 4)
    A(f"s_lshr_b32 s{SL}, s{SROLE}, 5"); A(f"s_sub_u32 s{SL}, s{SL}, 3")
    for hh in range(4):
        A(f"s_lshl_b32 s44, s{SRANK}, 4"); A(f"s_lshl_b32 s45, s{SW}, 2"); A("s_add_u32 s44, s44, s45"); A(f"s_add_u32 s44, s44, {hh}")
        A("s_mul_i32 s44, s44, 14336"); A(f"s_add_u32 s44, s44, {LY.BF}")
        for kk in range(14):
            A(f"buffer_load_dwordx4 {wreg(hh,kk)}, v2, s[32:35], s44 offen offset:{(kk%4)*1024}")
            if kk % 4 == 3: A("s_add_u32 s44, s44, 4096")
    A("v_and_b32 v9, 15, v1"); A("v_lshrrev_b32 v10, 4, v1")
    A(f"s_mul_i32 s45, s{SW}, 7168"); A("v_add_u32 v3, s45, v2")
    A(f"s_lshl_b32 s45, s{SW}, 12"); A("v_add_u32 v5, s45, v2")
    A(f"v_mov_b32 v11, {OOB}"); A(f"s_lshl_b32 s45, s{SW}, 2"); A("v_mov_b32 v6, s45"); A("v_cmp_eq_u32 vcc, 0, v1")
    A("v_cndmask_b32 v6, v11, v6, vcc"); A("v_mov_b32 v7, 1")
    A("v_mov_b32 v4, v3"); A("v_mov_b32 v20, v2")
    def gemm(fill, every, start=1):
        return lds_gemm(A, 14, 2, lambda kk, f, d: f"ds_read_b128 {v(d,4)}, v20 offset:{f*14336 + kk*1024}", FB,
                 lambda kk, fr: [f"{MM} {v(ACC+(hh*2+tt)*4,4)}, {v(fr[tt],4)}, {wreg(hh,kk)}, {v(ACC+(hh*2+tt)*4,4) if kk else 0}" for hh in range(4) for tt in range(2)],
                 fill, every, start)
    task_off(A, SA, SK, 448 * 1024, LY.U); A(f"s_lshl_b32 s44, s{SRANK}, 14"); A(f"s_add_u32 s{SA}, s{SA}, s44")
    task_off(A, SB, SK, 3584, LY.FU); A(f"s_lshl_b32 s44, s{SRANK}, 7"); A(f"s_add_u32 s{SB}, s{SB}, s44")
    A(f"s_mov_b32 s{SFP}, {OOB}")
    flag = f"buffer_store_dword v7, v6, s[32:35], s{SFP} offen sc1"
    toggle = ["v_xor_b32 v4, 0x8000, v4", "v_xor_b32 v20, 0x8000, v20"]
    A(f"s_mov_b32 s{SS}, 0")
    A(f"s_cmp_eq_u32 s{SL}, 0"); A("s_cbranch_scc0 r_U1")
    A(f"s_mov_b32 s{SN}, {LY.XS}"); A(f"s_mov_b32 s{SN2}, {LY.XS + 4096}")
    nl = loads7_list(SN, SN2, 3, STG, "")
    for t in nl: A(t)
    for _ in range(4): A(f"buffer_store_dword v7, v11, s[32:35], 0 offen")
    top = A.new("u0"); A.label(top)
    A(f"s_mov_b32 s{SK}, s{SS}")
    stampB(A, 0, 210)
    A("s_waitcnt vmcnt(4)" if not (GM.DIAG and GM.DIAGB) else "s_waitcnt vmcnt(0)")
    for i in range(7): A(f"ds_write_b128 v4, {v(STG+i*4,4)} offset:{i*1024}")
    A(f"s_add_u32 s{SN}, s{SN}, 28672"); A(f"s_add_u32 s{SN2}, s{SN2}, 28672")
    A("s_waitcnt lgkmcnt(0)"); A("s_barrier")
    stampB(A, 1, 210)
    rest = gemm(nl + [["s_waitcnt vmcnt(7)", flag]], 8, 4); assert not rest
    for hh in range(4):
        pack2(A, ACC + hh*8, ACC + hh*8 + 4)
        A(f"buffer_store_dwordx4 {v(ACC+hh*8,4)}, v5, s[32:35], s{SA} offen offset:{hh*1024} sc1")
    stampB(A, 2, 210)
    for x in toggle: A(x)
    A(f"s_mov_b32 s{SFP}, s{SB}"); A(f"s_add_u32 s{SA}, s{SA}, {448*1024}"); A(f"s_add_u32 s{SB}, s{SB}, 3584")
    stampB(A, 3, 210)
    A(f"s_add_u32 s{SS}, s{SS}, 1"); A(f"s_cmp_lt_u32 s{SS}, 64"); A(f"s_cbranch_scc1 {top}")
    A("s_waitcnt vmcnt(0)"); A(flag)
    A("s_endpgm")
    A.label("r_U1")
    stat_addrs(A, 9, 10, 12, 13, 14, 11)
    A(f"s_lshr_b32 s44, s{SW}, 1"); A("s_lshl_b32 s44, s44, 6"); A(f"s_add_u32 s44, s44, {LTAB}")
    A("v_lshlrev_b32 v15, 2, v9"); A("v_add_u32 v15, s44, v15")
    A("v_lshlrev_b32 v16, 4, v10"); A(f"v_add_u32 v16, {LTAB}, v16")
    A(f"s_lshl_b32 s44, s{SRANK}, 10"); A("v_add_u32 v17, s44, v2"); A("v_mov_b32 v23, v17")
    A(f"s_cmp_ge_u32 s{SRANK}, 14"); A(f"s_cselect_b32 s44, {LTAB + 64}, {0}"); A(f"s_max_u32 s44, s44, {LTAB}")
    A("v_lshlrev_b32 v18, 2, v9"); A("v_add_u32 v18, s44, v18")
    A(f"s_cmp_eq_u32 s{SW}, 3"); A("s_cselect_b64 vcc, 1, 0"); A(f"v_mov_b32 v11, {OOB}"); A("v_mov_b32 v19, 0"); A("v_cndmask_b32 v19, v11, v19, vcc")
    toggle += ["v_xor_b32 v15, 0x100, v15", "v_xor_b32 v16, 0x100, v16", "v_xor_b32 v18, 0x100, v18", "v_xor_b32 v23, 0x8000, v23"]
    for q in range(4): A(f"v_mov_b32 v{ONE+q}, 0x3f803f80")
    A("s_waitcnt vmcnt(0)")
    for kk in range(14):
        for hh in range(4):
            A(f"{MM} {v(ACC+hh*4,4)}, {v(ONE,4)}, {wreg(hh,kk)}, {v(ACC+hh*4,4) if kk else 0}")
    for hh in range(4): A(f"v_mov_b32 v{CS+hh}, v{ACC+hh*4}")
    A(f"s_mov_b32 s{SN}, {LY.S1_BEG + LY.R_X2B}"); A(f"s_mov_b32 s{SN2}, {LY.S1_BEG + LY.R_X2B + 4096}"); A(f"s_mov_b32 s{SST}, {LY.S1_BEG + LY.R_ST + 8192}")
    A(f"s_mov_b32 s{SC_}, {LY.XS + 64*28672}")
    A(f"s_lshl_b32 s44, s{SRANK}, 7"); A(f"s_add_u32 s70, s44, {LY.FX}"); A(f"s_mov_b32 s{SFX_}, {OOB}")
    nl = stat_loads_list(R_, 12, 13, SST) + loads7_list(SN, SN2, 3, STG)
    flags = [flag, f"buffer_store_dword v7, v19, s[32:35], s{SFX_} offen sc1", f"s_mov_b32 s{SFP}, {OOB}", f"s_mov_b32 s{SFX_}, {OOB}"]
    A(f"v_mov_b32 v{STG}, -1")
    top = A.new("u1"); A.label(top)
    A(f"s_mov_b32 s{SK}, s{SS}")
    stampB(A, 0, 210)
    def miss():
        A("s_waitcnt vmcnt(0)")
        for x in flags: A(x)
        wait_ready(A, 21, 44, SS)
    staged_input(A, nl, 0 if (GM.DIAG and GM.DIAGB) else 4, STG, R_, 4, 14, T, 15, 40, 21, miss)
    stampB(A, 1, 210)
    A("s_waitcnt vmcnt(0)")
    for x in flags: A(x)
    nn = A.new("nn")
    A(f"s_cmp_lg_u32 s{SW}, 3"); A(f"s_cbranch_scc1 {nn}")
    A(f"ds_read_b128 {v(STG,4)}, v23"); A(f"ds_read_b32 v{T}, v18"); A(f"ds_read_b32 v{T+1}, v18 offset:128")
    A("s_waitcnt lgkmcnt(0)")
    unpack8(A, STG, STG+4)
    for r in range(8): A(f"v_fma_f32 v{STG+4+r}, v{STG+4+r}, v{T}, v{T+1}")
    for q in range(4): A(f"v_cvt_pk_bf16_f32 v{ONE+q}, v{STG+4+2*q}, v{STG+5+2*q}")
    A(f"buffer_store_dwordx4 {v(ONE,4)}, v17, s[32:35], s{SC_} offen sc1")
    A.label(nn)
    for tt in range(2):
        A(f"ds_read_b128 {v(TB+tt*8,4)}, v16 offset:{tt*64}"); A(f"ds_read_b128 {v(TB+tt*8+4,4)}, v16 offset:{128 + tt*64}")
    A(f"s_add_u32 s44, s{SS}, 1"); A("s_and_b32 s44, s44, 7"); A("s_cmp_eq_u32 s44, 0")
    A(f"s_cselect_b32 s44, {8*LY.RS}, 0")
    for r in (SN, SN2, SST): A(f"s_add_u32 s{r}, s{r}, {LY.RS}")
    rest = gemm(nl, 8, 30); assert not rest
    ng = A.new("ng")
    A("s_cmp_eq_u32 s44, 0"); A(f"s_cbranch_scc1 {ng}")
    A("s_waitcnt vmcnt(0)"); A(f"v_mov_b32 v{STG}, -1")
    A.label(ng)
    for hh in range(4):
        for tt in range(2):
            r = ACC + (hh*2+tt) * 4
            cs = CS + (hh & ~1); sel = "op_sel:[0,1,0] op_sel_hi:[1,1,1]" if hh & 1 else "op_sel_hi:[1,0,1]"
            for q in (0, 2):
                A(f"v_pk_mul_f32 {v(r+q,2)}, {v(r+q,2)}, {v(TB+tt*8+q,2)}")
            for q in (0, 2):
                A(f"v_pk_fma_f32 {v(r+q,2)}, {v(TB+tt*8+4+q,2)}, {v(cs,2)}, {v(r+q,2)} {sel}")
        pack2(A, ACC + hh*8, ACC + hh*8 + 4)
        A(f"buffer_store_dwordx4 {v(ACC+hh*8,4)}, v5, s[32:35], s{SA} offen offset:{hh*1024} sc1")
    stampB(A, 2, 210)
    for x in toggle: A(x)
    A(f"s_mov_b32 s{SFP}, s{SB}"); A(f"s_mov_b32 s{SFX_}, s70")
    A(f"s_add_u32 s{SA}, s{SA}, {448*1024}"); A(f"s_add_u32 s{SB}, s{SB}, 3584"); A("s_add_u32 s70, s70, 3584"); A(f"s_add_u32 s{SC_}, s{SC_}, 28672")
    stampB(A, 3, 210)
    A(f"s_add_u32 s{SS}, s{SS}, 1"); A(f"s_cmp_lt_u32 s{SS}, 64"); A(f"s_cbranch_scc1 {top}")
    A("s_waitcnt vmcnt(0)")
    for x in flags: A(x)
    A("s_endpgm")

def roleO(A):
    SS, SA, SB, SC_, SJ, SMB_ = 61, 62, 63, 64, 65, 66
    MR, WACC, WBUF, UR, PX, SG, FG, IDX = 24, 52, 84, 116, 148, 180, 188, 190
    D, RES = MR, MR + 24
    WP, Y, T = WACC, WACC + 8, WACC + 16
    MST, LRED = 131072, 131072 + 7168 + 1024
    regp = [p_ for p_ in range(7) if p_ not in LP]
    def wreg(p_, n, hf=None):
        idx = regp.index(p_) * 8 + n
        o, c = (0, 8) if hf is None else (hf * 4, 4)
        return a(idx * 8 + o, c) if idx < 32 else v(192 + (idx - 32) * 8 + o, c)
    A(f"s_cmp_ge_u32 s{SRANK}, 14"); A(f"s_cselect_b32 s{SL}, 1, 0"); A(f"s_mul_i32 s44, s{SL}, 14"); A(f"s_sub_u32 s{SJ}, s{SRANK}, s44")
    srd(A, 40, "x")
    load_B64_weights(A, SJ, wreg)
    sparse_idx(A, IDX, 9)
    A("v_and_b32 v9, 15, v1"); A("v_lshrrev_b32 v10, 4, v1")
    A(f"s_lshl_b32 s45, s{SW}, 15"); A(f"v_add_u32 v3, s45, v2")
    A(f"s_lshl_b32 s45, s{SW}, 12"); A("v_add_u32 v5, s45, v2")
    A(f"s_lshl_b32 s45, s{SW}, 13"); A("v_add_u32 v6, s45, v2")
    A("v_lshlrev_b32 v7, 2, v1"); A(f"s_lshl_b32 s45, s{SW}, 11"); A("v_add_u32 v4, s45, v2")
    A("s_add_u32 s45, s45, 32768"); A("v_add_u32 v7, s45, v7")
    A(f"s_cmp_eq_u32 s{SW}, 3"); A("s_cselect_b32 s45, 0, 1024"); A("v_add_u32 v18, s45, v4")
    A(f"v_add_u32 v19, {MST}, v4"); A(f"v_add_u32 v20, {MST}, v18")
    A("v_lshrrev_b32 v21, 1, v10"); A("v_lshlrev_b32 v21, 9, v21"); A("v_and_b32 v11, 1, v10"); A("v_lshl_add_u32 v21, v11, 8, v21")
    A("v_lshrrev_b32 v11, 1, v9"); A("v_lshl_add_u32 v21, v11, 4, v21"); A("v_and_b32 v11, 1, v9"); A("v_lshl_add_u32 v21, v11, 2, v21")
    A(f"v_add_u32 v21, {MST}, v21")
    A(f"s_lshl_b32 s45, s{SW}, 2"); A("v_mov_b32 v8, s45")
    final_addrs(A, SJ, 9, 10, 13, 14, 15, 16, 17, LRED, 11)
    zero = [f"v_mov_b32 v{WACC+r}, 0" for r in range(32)]
    SFU_, SU_, SPT, SX1, SST, SRS = 67, 68, 70, 72, 73, 74
    PM = SG
    A(f"s_mov_b32 s{SS}, 0")
    task_off(A, SMB_, SS, 7168, LY.MB)
    task_off(A, SFU_, SS, 3584, LY.FU); A(f"s_lshl_b32 s44, s{SJ}, 8"); A(f"s_add_u32 s{SFU_}, s{SFU_}, s44")
    task_off(A, SU_, SS, 448*1024, LY.U); A(f"s_lshl_b32 s44, s{SJ}, 15"); A(f"s_add_u32 s{SU_}, s{SU_}, s44"); A(f"s_add_u32 s{SU_+1}, s{SU_}, 16384")
    rec_off(A, SPT, SS, LY.R_PT, 40960); A(f"s_add_u32 s{SPT+1}, s{SPT}, 4096")
    rec_off(A, SX1, SS, LY.R_X1B, 28672); rec_off(A, SST, SS, LY.R_ST, 4096)
    A(f"s_cmp_eq_u32 s{SL}, 0"); A(f"s_cselect_b32 s{SRS}, 0, {LY.S1_BEG + LY.R_X2B}")
    fl = [f"buffer_load_dword v{FG}, v8, s[32:35], s{SFU_} offen sc1", f"buffer_load_dword v{FG+1}, v8, s[32:35], s{SFU_} offen offset:128 sc1"]
    ml = [f"buffer_load_dwordx4 {v(SG,4)}, v4, s[32:35], s{SMB_} offen sc1", f"buffer_load_dwordx4 {v(SG+4,4)}, v18, s[32:35], s{SMB_} offen sc1"]
    pml = [f"buffer_load_dword v{PM+tt*4+hh}, v7, s[32:35], s{SPT} offen offset:{(hh*2+tt)*256} sc1" for hh in range(4) for tt in range(2)]
    pxl = [f"buffer_load_dwordx4 {v(PX+n*4,4)}, v6, s[32:35], s{SPT + (n >> 2)} offen offset:{(n%4)*1024} sc1" for n in range(8)]
    for t in fl + ml: A(t)
    A("s_waitcnt vmcnt(0)")
    top = A.new("o"); A.label(top)
    A(f"s_mov_b32 s{SK}, s{SS}")
    stampB(A, 0, 22)
    for t in zero: A(t)
    for q in range(8): A(f"ds_read_b128 {v(WBUF+q*4,4)}, v3 offset:{q*1024}")
    ok = A.new("mok")
    A("s_waitcnt vmcnt(0)" if (GM.DIAG and GM.DIAGB) else "s_waitcnt vmcnt(2)")
    for t in chk_tree(A, range(SG, SG+8), 10): A(t)
    A(f"s_cbranch_vccz {ok}")
    p = Poll(A, 41); p.begin()
    for t in fl + ml: A(t)
    A("s_waitcnt vmcnt(0)")
    for t in chk_tree(A, range(SG, SG+8), 10): A(t)
    p.end()
    A.label(ok)
    stampB(A, 1, 22)
    A(f"ds_write_b128 v19, {v(SG,4)}"); A(f"ds_write_b128 v20, {v(SG+4,4)}")
    ok = A.new("fok")
    A(f"v_and_b32 v{FG}, v{FG}, v{FG+1}"); A(f"v_cmp_ne_u32 vcc, 1, v{FG}"); A(f"s_cbranch_vccz {ok}")
    p = Poll(A, 46, sleep=2); p.begin()
    for t in fl: A(t)
    A("s_waitcnt vmcnt(0)"); A(f"v_and_b32 v{FG}, v{FG}, v{FG+1}"); A(f"v_cmp_ne_u32 vcc, 1, v{FG}")
    p.end()
    A.label(ok)
    wait_ready(A, 10, 45, SS)
    A("s_waitcnt lgkmcnt(0)"); A("s_barrier")
    for i in (2, 0, 1, 3, 4, 5, 6):
        A(f"v_add_u32 v10, {i*1024}, v21")
        A(f"ds_read2_b32 {v(MR+i*4,2)}, v10 offset0:0 offset1:2"); A(f"ds_read2_b32 {v(MR+i*4+2,2)}, v10 offset0:32 offset1:34")
    ul = [f"buffer_load_dwordx4 {v(UR+(hh*2+ct)*4,4)}, v5, s[32:35], s{SU_+ct} offen offset:{hh*1024} sc1" for hh in range(4) for ct in range(2)]
    w_smf(A, MR, WACC, WBUF, wreg, IDX, 3, ul + pml + pxl, [1 + 3*q for q in range(8)] + [25 + q for q in range(8)] + [33 + 3*q for q in range(8)])
    for n in range(8):
        r = WACC + n*4
        A(f"v_add_f32 v{r}, v{r}, v{r+1}"); A(f"v_add_f32 v{r+2}, v{r+2}, v{r+3}")
    for n in range(8):
        hh, ct = n >> 1, n & 1
        A(f"v_cvt_pk_bf16_f32 v{WP+ct*4+hh}, v{WACC+n*4}, v{WACC+n*4+2}")
    stampB(A, 2, 22)
    A(f"s_add_u32 s{SMB_}, s{SMB_}, 7168"); A(f"s_add_u32 s{SFU_}, s{SFU_}, 3584")
    A(f"s_add_u32 s{SU_}, s{SU_}, {448*1024}"); A(f"s_add_u32 s{SU_+1}, s{SU_+1}, {448*1024}")
    res = A.new("res"); resd = A.new("resd")
    A(f"s_cmp_eq_u32 s{SL}, 0"); A(f"s_cbranch_scc0 {res}")
    A(f"buffer_load_dwordx4 {v(RES,4)}, v17, s[40:43], s{SRS} offen"); A(f"s_add_u32 s{SRS}, s{SRS}, 28672")
    A(f"s_branch {resd}")
    A.label(res)
    A(f"buffer_load_dwordx4 {v(RES,4)}, v15, s[32:35], s{SRS} offen sc1"); A(f"s_add_u32 s{SRS}, s{SRS}, {LY.RS}")
    A.label(resd)
    ok = A.new("pmok")
    A("s_waitcnt vmcnt(9)")
    for t in chk_tree(A, range(PM, PM+8), 11): A(t)
    A(f"s_cbranch_vccz {ok}")
    p = Poll(A, 47); p.begin()
    for t in pml + pxl: A(t)
    A("s_waitcnt vmcnt(8)")
    for t in chk_tree(A, range(PM, PM+8), 11): A(t)
    p.end()
    A.label(ok)
    for ct in range(2):
        for tt in range(2):
            A(f"{MM} {v(D+(ct*2+tt)*4,4)}, {v(WP+ct*4,4)}, {v(PM+tt*4,4)}, 0")
    A("s_waitcnt vmcnt(0)")
    for t in chk_tree(A, range(PX, PX+32), 11): A(t)
    ok = A.new("pxok")
    A(f"s_cbranch_vccz {ok}")
    p = Poll(A, 48); p.begin()
    for t in pxl: A(t)
    A("s_waitcnt vmcnt(0)")
    for t in chk_tree(A, range(PX, PX+32), 11): A(t)
    p.end()
    A.label(ok)
    stampB(A, 3, 22)
    nx = fl + ml
    for hh in range(4):
        for ct in range(2):
            for tt in range(2):
                r = D + (ct*2+tt)*4
                A(f"{MM} {v(r,4)}, {v(UR+(hh*2+ct)*4,4)}, {v(PX+(hh*2+tt)*4,4)}, {v(r,4)}")
        A(nx[hh])
    for q in range(4): A(f"ds_write_b128 v13, {v(D+q*4,4)} offset:{q*1024}")
    A(f"s_add_u32 s{SPT}, s{SPT}, {LY.RS}"); A(f"s_add_u32 s{SPT+1}, s{SPT+1}, {LY.RS}")
    A("s_waitcnt lgkmcnt(0)"); A("s_barrier")
    ne = A.new("noepi")
    A(f"s_cmp_ge_u32 s{SW}, 2"); A(f"s_cbranch_scc1 {ne}")
    final_sum(A, 14, PX, RES, Y)
    final_publish(A, Y, T, 15, 16, SX1, SST)
    A(f"s_branch {ne}_j")
    A.label(ne)
    A("s_waitcnt vmcnt(0)")
    A.label(ne + "_j")
    stampB(A, 4, 22)
    A(f"s_add_u32 s{SX1}, s{SX1}, {LY.RS}"); A(f"s_add_u32 s{SST}, s{SST}, {LY.RS}")
    A(f"s_add_u32 s{SS}, s{SS}, 1"); A(f"s_cmp_lt_u32 s{SS}, 64"); A(f"s_cbranch_scc1 {top}")
    A("s_endpgm")

def roleF1(A):
    SS, SA, SN, SN2, SST = 61, 62, 65, 66, 67
    ACC, FB, STG, R_, T, CS, TB, ONE, OUT = 24, 56, 80, 108, 116, 124, 140, 148, 152
    LTAB = 65536
    wreg = lambda n, kk: a((n * 14 + kk) * 4, 4)
    for n in range(4):
        mat, b = n >> 1, n & 1
        A(f"s_lshl_b32 s44, s{SRANK}, 2"); A(f"s_add_u32 s44, s44, s{SW}"); A("s_lshl_b32 s44, s44, 1"); A(f"s_add_u32 s44, s44, {b}")
        A("s_mul_i32 s44, s44, 14336"); A(f"s_add_u32 s44, s44, {LY.UFW if mat else LY.GF}")
        for kk in range(14):
            A(f"buffer_load_dwordx4 {wreg(n,kk)}, v2, s[32:35], s44 offen offset:{(kk%4)*1024}")
            if kk % 4 == 3: A("s_add_u32 s44, s44, 4096")
    A("v_and_b32 v9, 15, v1"); A("v_lshrrev_b32 v10, 4, v1")
    A(f"s_mul_i32 s45, s{SW}, 7168"); A("v_add_u32 v3, s45, v2"); A("v_mov_b32 v5, v3"); A("v_mov_b32 v20, v2")
    A(f"s_lshl_b32 s44, s{SRANK}, 2"); A(f"s_add_u32 s44, s44, s{SW}"); A("s_lshl_b32 s44, s44, 11"); A("v_add_u32 v4, s44, v2")
    stat_addrs(A, 9, 10, 12, 13, 14, 11)
    A(f"s_lshr_b32 s44, s{SW}, 1"); A("s_lshl_b32 s44, s44, 6"); A(f"s_add_u32 s44, s44, {LTAB}")
    A("v_lshlrev_b32 v15, 2, v9"); A(f"v_add_u32 v16, {LTAB}, v15"); A("v_add_u32 v15, s44, v15")
    toggle = ["v_xor_b32 v5, 0x8000, v5", "v_xor_b32 v20, 0x8000, v20", "v_xor_b32 v15, 0x100, v15", "v_xor_b32 v16, 0x100, v16"]
    for q in range(4): A(f"v_mov_b32 v{ONE+q}, 0x3f803f80")
    A("s_waitcnt vmcnt(0)")
    for kk in range(14):
        for n in range(4):
            A(f"{MM} {v(CS+n*4,4)}, {wreg(n,kk)}, {v(ONE,4)}, {v(CS+n*4,4) if kk else 0}")
    A(f"s_mov_b32 s{SS}, 0")
    rec_off(A, SN, SS, LY.R_X1B, 28672); A(f"s_add_u32 s{SN2}, s{SN}, 4096"); rec_off(A, SST, SS, LY.R_ST, 4096); rec_off(A, SA, SS, LY.R_HH, 114688)
    nl = stat_loads_list(R_, 12, 13, SST) + loads7_list(SN, SN2, 3, STG)
    A(f"v_mov_b32 v{STG}, -1")
    top = A.new("f1"); A.label(top)
    A(f"s_mov_b32 s{SK}, s{SS}")
    stampB(A, 0, 210)
    staged_input(A, nl, 0 if (GM.DIAG and GM.DIAGB) else 2, STG, R_, 5, 14, T, 15, 50, 21, lambda: wait_ready(A, 21, 51, SS))
    stampB(A, 2, 210)
    for tt in range(2):
        A(f"ds_read_b32 v{TB+tt*4}, v16 offset:{tt*64}"); A(f"ds_read_b32 v{TB+tt*4+1}, v16 offset:{128+tt*64}")
    A(f"s_add_u32 s44, s{SS}, 1"); A("s_and_b32 s44, s44, 7"); A("s_cmp_eq_u32 s44, 0"); A("s_cselect_b32 s44, 1, 0")
    for r in (SN, SN2, SST): A(f"s_add_u32 s{r}, s{r}, {LY.RS}")
    def epi(tt):
        out = []
        for q in range(2): out.append(f"v_mul_f32 v{TB+tt*4+2+q}, {f32(-LY.LOG2E)}, v{TB+tt*4+q}")
        for n in range(4):
            r = ACC + (n*2+tt)*4; tb = TB + tt*4 + (0 if n >= 2 else 2)
            for q in (0, 2): out.append(f"v_pk_mul_f32 {v(r+q,2)}, {v(r+q,2)}, {v(tb,2)} op_sel_hi:[1,0]")
            for q in (0, 2): out.append(f"v_pk_fma_f32 {v(r+q,2)}, {v(CS+n*4+q,2)}, {v(tb,2)}, {v(r+q,2)} op_sel:[0,1,0] op_sel_hi:[1,1,1]")
        G = [ACC + (b * 2 + tt) * 4 + r for b in range(2) for r in range(4)]
        Uu = [ACC + ((2 + b) * 2 + tt) * 4 + r for b in range(2) for r in range(4)]
        out += [f"v_exp_f32 v{g}, v{g}" for g in G] + [f"v_add_f32 v{g}, 1.0, v{g}" for g in G] + [f"v_rcp_f32 v{g}, v{g}" for g in G]
        out += [f"v_mul_f32 v{g}, v{g}, v{u}" for g, u in zip(G, Uu)]
        o = OUT + tt * 4
        out += [f"v_cvt_pk_bf16_f32 v{o+q}, v{G[2*q]}, v{G[2*q+1]}" for q in range(4)] + [f"v_min_u32 v{o+q}, -2, v{o+q}" for q in range(4)]
        return out
    st = lambda tt: f"buffer_store_dwordx4 {v(OUT+tt*4,4)}, v4, s[32:35], s{SA} offen offset:{tt*1024} sc1"
    def half(tt, fill, every, start):
        return lds_gemm(A, 14, 1, lambda kk, f, d: f"ds_read_b128 {v(d,4)}, v20 offset:{tt*14336 + kk*1024}", FB + tt*12,
                        lambda kk, fr: [f"{MM} {v(ACC+(n*2+tt)*4,4)}, {wreg(n,kk)}, {v(fr[0],4)}, {v(ACC+(n*2+tt)*4,4) if kk else 0}" for n in range(4)],
                        fill, every, start)
    rest = half(0, nl, 5, 2); assert not rest
    rest = half(1, epi(0), 1, 3)
    stampB(A, 3, 210)
    ng = A.new("ng")
    A("s_cmp_eq_u32 s44, 0"); A(f"s_cbranch_scc1 {ng}")
    A("s_waitcnt vmcnt(0)"); A(f"v_mov_b32 v{STG}, -1")
    A.label(ng)
    for x in rest: A(x)
    A(st(0))
    for x in epi(1): A(x)
    A(st(1))
    stampB(A, 4, 210)
    for x in toggle: A(x)
    A(f"s_add_u32 s{SA}, s{SA}, {LY.RS}")
    A(f"s_add_u32 s{SS}, s{SS}, 1"); A(f"s_cmp_lt_u32 s{SS}, 64"); A(f"s_cbranch_scc1 {top}")
    A("s_endpgm")

def roleF2(A):
    SS, SA, SB, SC_, SJ = 61, 62, 63, 64, 65
    D, RES, Y, T, HB = 24, 40, 44, 52, 64
    wreg = lambda ct, i: a((ct * 14 + i) * 4, 4)
    srd(A, 40, "out")
    A(f"s_sub_u32 s{SJ}, s{SRANK}, 14")
    for ct in range(2):
        A(f"s_lshl_b32 s44, s{SJ}, 1"); A(f"s_add_u32 s44, s44, {ct}"); A("s_mul_i32 s44, s44, 56")
        A(f"s_mul_i32 s45, s{SW}, 14"); A("s_add_u32 s44, s44, s45"); A("s_lshl_b32 s44, s44, 10"); A(f"s_add_u32 s44, s44, {LY.DF}")
        for i in range(14):
            A(f"buffer_load_dwordx4 {wreg(ct,i)}, v2, s[32:35], s44 offen offset:{(i%4)*1024}")
            if i % 4 == 3: A("s_add_u32 s44, s44, 4096")
    A("v_and_b32 v9, 15, v1"); A("v_lshrrev_b32 v10, 4, v1")
    A(f"s_mul_i32 s45, s{SW}, 28672"); A("v_add_u32 v3, s45, v2")
    final_addrs(A, SJ, 9, 10, 13, 14, 15, 16, 17, 0, 11)
    A(f"s_mov_b32 s{SS}, 0")
    rec_off(A, 66, SS, LY.R_HH, 114688)
    for q in range(1, 7): A(f"s_add_u32 s{66+q}, s66, {q*4096}"); A(f"s_add_u32 s{80+q}, s{66+q}, {LY.RS}")
    A(f"s_add_u32 s80, s66, {LY.RS}")
    hl = lambda n, base=66: f"buffer_load_dwordx4 {v(HB+n*4,4)}, v3, s[32:35], s{base+n//4} offen offset:{(n%4)*1024} sc1"
    A(f"v_mov_b32 v{HB}, -1")
    top = A.new("f2"); A.label(top)
    A(f"s_mov_b32 s{SK}, s{SS}")
    stampB(A, 0, 210)
    rec_off(A, SA, SS, LY.R_X1B, 28672)
    go = A.new("go")
    A("s_waitcnt vmcnt(26)")
    for t in chk_tree(A, range(HB, HB+8), 11): A(t)
    A(f"s_cbranch_vccz {go}")
    wait_ready(A, 11, 62, SS)
    p = Poll(A, 60); p.begin()
    A(hl(0)); A(hl(1)); A("s_waitcnt vmcnt(0)")
    for t in chk_tree(A, range(HB, HB+8), 11): A(t)
    p.end()
    for n in range(2, 28): A(hl(n))
    A.label(go)
    stampB(A, 1, 210)
    vm = VM(A); ids = {}
    for n in range(2, 28): vm.n += 1; ids[n] = vm.n
    idr = vm.issue(f"buffer_load_dwordx4 {v(RES,4)}, v15, s[32:35], s{SA} offen sc1")
    stubs = []
    for i in range(14):
        nxt = chk_tree(A, range(HB+(2*i+2)*4, HB+(2*i+4)*4), 11) if i < 13 else []
        for ct in range(2):
            for tt in range(2):
                r = D + (ct * 2 + tt) * 4
                A(f"{MM} {v(r,4)}, {wreg(ct,i)}, {v(HB+(2*i+tt)*4,4)}, {v(r,4) if i else 0}")
        if nxt:
            vm.wait(ids[2*i+3])
            for t in nxt: A(t)
        vm.issue(hl(2*i, 80)); vm.issue(hl(2*i+1, 80))
        if nxt:
            rl, bl = A.new("rt"), A.new("bk"); stubs.append((rl, bl, i + 1))
            A(f"s_cbranch_vccnz {rl}"); A.label(bl)
    for q in range(7): A(f"s_mov_b32 s{66+q}, s{80+q}"); A(f"s_add_u32 s{80+q}, s{80+q}, {LY.RS}")
    ng = A.new("ng")
    A(f"s_add_u32 s44, s{SS}, 1"); A("s_and_b32 s44, s44, 7"); A("s_cmp_eq_u32 s44, 0"); A(f"s_cbranch_scc0 {ng}")
    A("s_waitcnt vmcnt(0)"); A(f"v_mov_b32 v{HB}, -1")
    A.label(ng)
    stampB(A, 2, 210)
    for q in range(4): A(f"ds_write_b128 v13, {v(D+q*4,4)} offset:{q*1024}")
    A("s_waitcnt vmcnt(28) lgkmcnt(0)"); A("s_barrier")
    ne = A.new("noepi"); last = A.new("last")
    A(f"s_cmp_ge_u32 s{SW}, 2"); A(f"s_cbranch_scc1 {ne}")
    final_sum(A, 14, 176, RES, Y)
    stampB(A, 3, 210)
    A(f"s_cmp_eq_u32 s{SL}, 0"); A(f"s_cbranch_scc0 {last}")
    rec_off(A, SA, SS, LY.R_X2B)
    rec_off(A, SB, SS, LY.R_ST + 8192)
    final_publish(A, Y, T, 15, 16, SA, SB)
    A(f"s_branch {ne}")
    A.label(last)
    for q in range(4): A(f"v_cvt_pk_bf16_f32 v{T+q}, v{Y+2*q}, v{Y+2*q+1}")
    A(f"s_mul_i32 s44, s{SS}, 28672")
    A(f"buffer_store_dwordx4 {v(T,4)}, v17, s[40:43], s44 offen")
    A.label(ne)
    stampB(A, 4, 210)
    A("v_xor_b32 v13, 0x4000, v13"); A("v_xor_b32 v14, 0x4000, v14")
    A(f"s_add_u32 s{SS}, s{SS}, 1"); A(f"s_cmp_lt_u32 s{SS}, 64"); A(f"s_cbranch_scc1 {top}")
    A("s_endpgm")
    for rl, bl, i in stubs:
        A.label(rl)
        p = Poll(A, 63); p.begin()
        A(hl(2*i)); A(hl(2*i+1)); A("s_waitcnt vmcnt(0)")
        for t in chk_tree(A, range(HB+2*i*4, HB+(2*i+2)*4), 11): A(t)
        p.end()
        A(f"s_branch {bl}")

def roleF(A):
    A(f"s_lshr_b32 s{SL}, s{SROLE}, 5"); A(f"s_sub_u32 s{SL}, s{SL}, 5")
    A(f"s_cmp_ge_u32 s{SRANK}, 14"); A("s_cbranch_scc1 r_F2")
    roleF1(A)
    A.label("r_F2"); roleF2(A)

def gen_all(A, n0, n1):
    import gen_k0
    d0 = gen_k0.gen_k0(A, n0)
    d1 = gen_k1(A, n1, [(32, 96, "r_TA"), (96, 256, "r_rest")])
    A.label("r_rest")
    A(f"s_cmp_ge_u32 s{SRANK}, 28"); A("s_cbranch_scc1 r_fill")
    A(f"s_cmp_lt_u32 s{SROLE}, 160"); A("s_cbranch_scc1 r_U")
    A(f"s_cmp_lt_u32 s{SROLE}, 224"); A("s_cbranch_scc1 r_F")
    roleO(A)
    A.label("r_fill"); roleFill(A)
    A.label("r_TA"); roleTA(A)
    A.label("r_U"); roleU(A)
    A.label("r_F"); roleF(A)
    return d0 + d1
```

```python
from gen_common import *

K0_NWG = 520
K0_LDS = 2 * 30720
MM = "v_mfma_f32_16x16x32_bf16"

def stage_addrs(A, vg, vl, stride, tmp, st):
    A(f"s_mov_b32 s{st}, {-(-(1 << 32) // 56)}")
    for i in range(7):
        A(f"v_add_u32 v{tmp}, {256*i}, v0")
        A(f"v_mul_hi_u32 v{tmp+1}, v{tmp}, s{st}")
        A(f"v_mul_u32_u24 v{tmp+2}, 56, v{tmp+1}")
        A(f"v_sub_u32 v{tmp}, v{tmp}, v{tmp+2}")
        A(f"v_lshlrev_b32 v{tmp}, 4, v{tmp}")
        A(f"v_mul_u32_u24 v{tmp+2}, {stride}, v{tmp+1}")
        A(f"v_add_u32 v{vg+i}, v{tmp}, v{tmp+2}")
        A(f"v_mul_u32_u24 v{tmp+2}, 960, v{tmp+1}")
        A(f"v_add_u32 v{vl+i}, v{tmp}, v{tmp+2}")

def tr_addrs(A, vt, vlane, sw, tmp, st):
    A(f"v_lshrrev_b32 v{tmp}, 4, v{vlane}")
    A(f"v_lshlrev_b32 v{tmp}, 3, v{tmp}")
    A(f"v_bfe_u32 v{tmp+1}, v{vlane}, 2, 2")
    A(f"v_add_u32 v{tmp}, v{tmp}, v{tmp+1}")
    A(f"v_mul_u32_u24 v{tmp}, 960, v{tmp}")
    A(f"v_and_b32 v{tmp+1}, 3, v{vlane}")
    A(f"v_lshlrev_b32 v{tmp+1}, 4, v{tmp+1}")
    A(f"v_add_u32 v{tmp}, v{tmp}, v{tmp+1}")
    for j in range(7):
        A(f"s_mul_i32 s{st}, s{sw}, 7")
        A(f"s_add_u32 s{st}, s{st}, {j}")
        A(f"s_and_b32 s{st+1}, s{st}, 1")
        A(f"s_lshl_b32 s{st+1}, s{st+1}, 3")
        A(f"s_lshr_b32 s{st}, s{st}, 1")
        A(f"s_lshl_b32 s{st}, s{st}, 6")
        A(f"s_add_u32 s{st}, s{st}, s{st+1}")
        A(f"v_add_u32 v{vt+j}, s{st}, v{tmp}")

def rowperm_off(A, vd, vlane, stride, tmp):
    A(f"v_bfe_u32 v{tmp}, v{vlane}, 2, 2")
    A(f"v_lshlrev_b32 v{tmp}, 3, v{tmp}")
    A(f"v_and_b32 v{vd}, 3, v{vlane}")
    A(f"v_add_u32 v{vd}, v{vd}, v{tmp}")
    A(f"v_mul_u32_u24 v{vd}, {stride}, v{vd}")
    A(f"v_lshrrev_b32 v{tmp}, 4, v{vlane}")
    A(f"v_lshlrev_b32 v{tmp}, 4, v{tmp}")
    A(f"v_add_u32 v{vd}, v{vd}, v{tmp}")

def gemm(A, isB):
    sdiv(A, 49, 50, 48, 7, 52)
    srd(A, 36, "wv" if isB else "wq")
    srd(A, 40, "wo" if isB else "wk")
    wave_lane(A, 51, 1)
    rowperm_off(A, 2, 1, 8192, 3)
    A("v_lshlrev_b32 v3, 4, v1")
    A("s_lshl_b32 s52, s49, 9")
    for u in range(2):
        for b in range(2):
            A(f"s_lshl_b32 s53, s50, 6")
            A(f"s_add_u32 s53, s53, {32*u + 4*b}")
            A(f"s_lshl_b32 s53, s53, 13")
            A(f"s_add_u32 s{56+2*u+b}, s53, s52")
    ACC = 8
    def acc(rt, j): return v(ACC + (rt * 7 + j) * 4, 4)
    RF = 120
    CF = 152
    if not isB:
        for j in range(7):
            A(f"s_mul_i32 s53, s51, 7")
            A(f"s_add_u32 s53, s53, {j}")
            A(f"s_and_b32 s54, s53, 1")
            A(f"s_lshl_b32 s54, s54, 2")
            A(f"s_lshr_b32 s53, s53, 1")
            A(f"s_lshl_b32 s53, s53, 5")
            A(f"s_add_u32 s53, s53, s54")
            A(f"s_lshl_b32 s53, s53, 13")
            A(f"s_add_u32 s{60+j}, s53, s52")
        def loads(es):
            bs = es & 1
            for rt in range(4):
                A(f"buffer_load_dwordx4 {v(RF+bs*16+rt*4,4)}, v2, s[36:39], s{56+rt} offen offset:{es*64}")
            for j in range(7):
                A(f"buffer_load_dwordx4 {v(CF+bs*28+j*4,4)}, v2, s[40:43], s{60+j} offen offset:{es*64}")
        loads(0)
        for es in range(8):
            if es < 7:
                loads(es + 1); A("s_waitcnt vmcnt(11)")
            else: A("s_waitcnt vmcnt(0)")
            bs = es & 1
            for rt in range(4):
                for j in range(7):
                    A(f"{MM} {acc(rt,j)}, {v(RF+bs*16+rt*4,4)}, {v(CF+bs*28+j*4,4)}, {acc(rt,j) if es else 0}")
    else:
        VG, VL, VT = 208, 215, 222
        stage_addrs(A, VG, VL, 896, 4, 53)
        tr_addrs(A, VT, 1, 51, 4, 53)
        A("s_mul_i32 s60, s49, 229376")
        SG = CF + 28
        def gl(es):
            bs = es & 1
            for i in range(7):
                A(f"buffer_load_dwordx4 {v(SG+i*4,4)}, v{VG+i}, s[40:43], s60 offen")
            A("s_add_u32 s60, s60, 28672")
            for rt in range(4):
                A(f"buffer_load_dwordx4 {v(RF+bs*16+rt*4,4)}, v2, s[36:39], s{56+rt} offen offset:{es*64}")
        def lw(es):
            A("s_waitcnt vmcnt(4)")
            for i in range(7):
                A(f"ds_write_b128 v{VL+i}, {v(SG+i*4,4)} offset:{(es&1)*30720}")
            A("s_waitcnt lgkmcnt(0)")
            A("s_barrier")
        gl(0); lw(0)
        for es in range(8):
            bs = es & 1
            for j in range(7):
                for hh in range(2):
                    A(f"ds_read_b64_tr_b16 {v(CF+j*4+hh*2,2)}, v{VT+j} offset:{bs*30720 + hh*3840}")
            A("s_waitcnt vmcnt(0)")
            if es < 7: gl(es + 1)
            A("s_waitcnt lgkmcnt(0)")
            for rt in range(4):
                for j in range(7):
                    A(f"{MM} {acc(rt,j)}, {v(RF+bs*16+rt*4,4)}, {v(CF+j*4,4)}, {acc(rt,j) if es else 0}")
            if es < 7: lw(es + 1)
    if not isB: A(f"s_mov_b32 s55, {f32(LY.LOG2E / 16.0)}")
    for u in range(2):
        for j in range(7):
            a0 = ACC + ((2*u) * 7 + j) * 4; b0 = ACC + ((2*u+1) * 7 + j) * 4
            if not isB:
                for r in range(4):
                    A(f"v_mul_f32 v{a0+r}, s55, v{a0+r}")
                    A(f"v_mul_f32 v{b0+r}, s55, v{b0+r}")
            A(f"v_cvt_pk_bf16_f32 v{a0}, v{a0}, v{a0+1}")
            A(f"v_cvt_pk_bf16_f32 v{a0+1}, v{a0+2}, v{a0+3}")
            A(f"v_cvt_pk_bf16_f32 v{a0+2}, v{b0}, v{b0+1}")
            A(f"v_cvt_pk_bf16_f32 v{a0+3}, v{b0+2}, v{b0+3}")
            A(f"s_mul_i32 s53, s51, 7")
            A(f"s_add_u32 s53, s53, {j}")
            if not isB:
                A("s_mul_i32 s54, s49, 28"); A("s_add_u32 s53, s53, s54")
            else:
                A("s_lshl_b32 s53, s53, 4"); A("s_add_u32 s53, s53, s49")
            A("s_mul_i32 s53, s53, 14")
            A("s_lshl_b32 s54, s50, 1")
            A(f"s_add_u32 s53, s53, s54")
            A(f"s_add_u32 s53, s53, {u + (LY.BF if isB else LY.AF)//1024}")
            A("s_lshl_b32 s53, s53, 10")
            A(f"buffer_store_dwordx4 {v(a0,4)}, v3, s[32:35], s53 offen")
    A("s_endpgm")

def transp(A, down):
    wave_lane(A, 51, 1)
    A("v_lshlrev_b32 v3, 4, v1")
    VG, VL, VT, SG = 8, 15, 22, 32
    if not down:
        sdiv(A, 49, 50, 48, 56, 52)
        srd(A, 36, "wg")
        A("s_cmp_eq_u32 s49, 0")
        A(f"s_cselect_b32 s36, s36, s{ARG['wu']}")
        A(f"s_and_b32 s52, s{ARG['wu']+1}, 0xffff")
        A("s_cmp_eq_u32 s49, 0")
        A(f"s_cselect_b32 s37, s37, s52")
        A("s_lshr_b32 s54, s50, 2")
        A("s_and_b32 s55, s50, 3")
        A("s_mul_i32 s60, s54, 114688")
        A("s_mul_i32 s52, s55, 896")
        A("s_add_u32 s60, s60, s52")
        stage_addrs(A, VG, VL, 3584, 4, 53)
    else:
        srd(A, 36, "wd")
        A("s_mov_b32 s54, s48")
        A("s_mul_i32 s60, s54, 28672")
        stage_addrs(A, VG, VL, 896, 4, 53)
    for i in range(7):
        A(f"buffer_load_dwordx4 {v(SG+i*4,4)}, v{VG+i}, s[36:39], s60 offen")
    tr_addrs(A, VT, 1, 51, 4, 52)
    A("s_waitcnt vmcnt(0)")
    for i in range(7):
        A(f"ds_write_b128 v{VL+i}, {v(SG+i*4,4)}")
    A("s_waitcnt lgkmcnt(0)")
    A("s_barrier")
    for j in range(7):
        for hh in range(2):
            A(f"ds_read_b64_tr_b16 {v(SG+j*4+hh*2,2)}, v{VT+j} offset:{hh*3840}")
    A("s_waitcnt lgkmcnt(0)")
    for j in range(7):
        A(f"s_mul_i32 s53, s51, 7")
        A(f"s_add_u32 s53, s53, {j}")
        if not down:
            A("s_mul_i32 s52, s55, 28"); A("s_add_u32 s53, s53, s52")
            A("s_mul_i32 s53, s53, 14")
            A("s_mul_i32 s52, s49, 1568"); A("s_add_u32 s53, s53, s52")
            assert LY.UFW == LY.GF + 1568 * 1024
            base = LY.GF
        else:
            A("s_mul_i32 s53, s53, 56")
            base = LY.DF
        A("s_add_u32 s53, s53, s54")
        A(f"s_add_u32 s53, s53, {base//1024}")
        A("s_lshl_b32 s53, s53, 10")
        A(f"buffer_store_dwordx4 {v(SG+j*4,4)}, v3, s[32:35], s53 offen")
    A("s_endpgm")

def ln1(A):
    srd(A, 36, "x")
    wave_lane(A, 51, 1)
    A("v_lshrrev_b32 v2, 3, v0")
    A("v_and_b32 v3, 7, v0")
    A("v_mul_u32_u24 v4, 896, v2")
    A("v_lshl_add_u32 v4, v3, 4, v4")
    A("s_mul_i32 s52, s48, 28672")
    for i in range(7):
        A(f"buffer_load_dwordx4 {v(8+i*4,4)}, v4, s[36:39], s52 offen offset:{i*128}")
    A("v_lshrrev_b32 v5, 4, v2")
    A("v_mul_u32_u24 v5, 14, v5")
    A("v_lshrrev_b32 v6, 2, v3")
    A("v_add_u32 v5, v5, v6")
    A("v_lshlrev_b32 v5, 10, v5")
    A("v_and_b32 v6, 3, v3")
    A("v_lshlrev_b32 v6, 4, v6")
    A("v_and_b32 v7, 15, v2")
    A("v_add_u32 v6, v6, v7")
    A("v_lshl_add_u32 v5, v6, 4, v5")
    A("s_waitcnt vmcnt(0)")
    X = 40
    for n in range(28):
        A(f"v_lshlrev_b32 v{X+2*n}, 16, v{8+n}")
        A(f"v_and_b32 v{X+2*n+1}, 0xffff0000, v{8+n}")
    A(f"v_add_f32 v6, v{X}, v{X+1}")
    A(f"v_add_f32 v7, v{X+2}, v{X+3}")
    for n in range(4, 56, 2):
        A(f"v_add_f32 v6, v6, v{X+n}")
        A(f"v_add_f32 v7, v7, v{X+n+1}")
    A("v_add_f32 v6, v6, v7")
    dpp_reduce8(A, "v_add_f32", 6, 7)
    A(f"v_mul_f32 v6, {f32(1/448)}, v6")
    for n in range(56):
        A(f"v_sub_f32 v{X+n}, v{X+n}, v6")
    A(f"v_mul_f32 v6, v{X}, v{X}")
    A(f"v_mul_f32 v7, v{X+1}, v{X+1}")
    for n in range(2, 56, 2):
        A(f"v_fmac_f32 v6, v{X+n}, v{X+n}")
        A(f"v_fmac_f32 v7, v{X+n+1}, v{X+n+1}")
    A("v_add_f32 v6, v6, v7")
    dpp_reduce8(A, "v_add_f32", 6, 7)
    A(f"v_mov_b32 v7, {f32(1e-5)}")
    A(f"v_fmac_f32 v7, {f32(1/448)}, v6")
    A("v_rsq_f32 v7, v7")
    for n in range(56):
        A(f"v_mul_f32 v{X+n}, v{X+n}, v7")
    for n in range(28):
        A(f"v_cvt_pk_bf16_f32 v{8+n}, v{X+2*n}, v{X+2*n+1}")
    A(f"s_add_u32 s52, s52, {LY.XS}")
    for i in range(7):
        A(f"buffer_store_dwordx4 {v(8+i*4,4)}, v5, s[32:35], s52 offen")
        A("s_add_u32 s52, s52, 2048")
    A("s_endpgm")

def fills(A):
    A("s_lshl_b32 s49, s48, 12")
    A("v_lshl_add_u32 v2, v0, 4, s49")
    for r in range(4): A(f"v_mov_b32 v{4+r}, -1")
    for r in range(4): A(f"v_mov_b32 v{8+r}, 0")
    rngs = []
    for base in (LY.MS, LY.MB):
        for l in range(2): rngs.append((base + l*64*7168 + 7168, base + (l+1)*64*7168, 4))
    rngs += [(LY.PC, LY.SENT_END, 4), (LY.FL, LY.FL_END, 8)]
    for (lo, hi, reg) in rngs:
        A(f"s_mov_b32 s34, {hi}")
        A(f"s_mov_b32 s50, {lo}")
        L = A.new("fill")
        A.label(L)
        A(f"buffer_store_dwordx4 {v(reg,4)}, v2, s[32:35], s50 offen")
        A("s_add_u32 s50, s50, 262144")
        A(f"s_cmp_lt_u32 s50, {hi}")
        A(f"s_cbranch_scc1 {L}")
    A(f"s_mov_b32 s34, {LY.WS_BYTES}")
    done = A.new("done")
    A("s_cmp_ge_u32 s48, 7"); A(f"s_cbranch_scc1 {done}")
    srd(A, 36, "mem0")
    A("v_lshrrev_b32 v12, 5, v0"); A("v_and_b32 v13, 31, v0")
    A("v_mul_u32_u24 v3, 896, v12"); A("v_lshl_add_u32 v3, v13, 2, v3"); A("s_lshl_b32 s50, s48, 7")
    A("buffer_load_dword v14, v3, s[36:39], s50 offen")
    A("v_lshrrev_b32 v15, 4, v13"); A("v_lshlrev_b32 v15, 9, v15"); A("v_bfe_u32 v16, v13, 2, 2"); A("v_lshl_add_u32 v16, v16, 3, v12")
    A("v_lshl_add_u32 v15, v16, 4, v15"); A("v_and_b32 v16, 3, v13"); A("v_lshl_add_u32 v15, v16, 2, v15")
    A("v_lshrrev_b32 v17, 3, v13"); A("v_lshlrev_b32 v17, 4, v17"); A("v_lshl_add_u32 v17, v12, 1, v17"); A("v_and_b32 v16, 1, v13")
    A("v_add_u32 v17, v17, v16"); A("v_lshlrev_b32 v17, 4, v17"); A("v_bfe_u32 v16, v13, 1, 2"); A("v_lshl_add_u32 v17, v16, 2, v17")
    A("s_lshl_b32 s50, s48, 10")
    A("s_waitcnt vmcnt(0)")
    A("v_min_u32 v14, -2, v14")
    for l in range(2):
        for base, va in ((LY.MS, 17), (LY.MB, 15)):
            A(f"s_add_u32 s51, s50, {base + l*64*7168}")
            A(f"buffer_store_dword v14, v{va}, s[32:35], s51 offen")
    A.label(done)
    A("s_endpgm")

def gen_k0(A, name):
    kernel_head(A, name)
    A(f"s_cmp_ge_u32 s2, {K0_NWG}")
    A("s_cbranch_scc1 k0_exit")
    load_args(A)
    srd(A, WS, "ws")
    parts = [(0, 112, "k0_ga"), (112, 224, "k0_gb"), (224, 336, "k0_tu"), (336, 392, "k0_td"), (392, 456, "k0_ln"), (456, 520, "k0_fill")]
    for lo, hi, lab in parts:
        A(f"s_sub_u32 s48, s2, {lo}")
        A(f"s_cmp_lt_u32 s2, {hi}")
        A(f"s_cbranch_scc1 {lab}")
    A.label("k0_exit")
    A("s_endpgm")
    A.label("k0_ga"); gemm(A, False)
    A.label("k0_gb"); gemm(A, True)
    A.label("k0_tu"); transp(A, False)
    A.label("k0_td"); transp(A, True)
    A.label("k0_ln"); ln1(A)
    A.label("k0_fill"); fills(A)
    return kernel_desc(name, 232, 232)
```

```python
import os
from gen_common import *
MM = "v_mfma_f32_16x16x32_bf16"
MM16 = "v_mfma_f32_16x16x16_bf16"
K1_LDS = 160 * 1024 - 512
CAPS = [32, 32, 32, 32, 32, 32, 32, 32]
NPOLL = int(os.environ.get('NPOLL', '2'))
PRE_SM = int(os.environ.get('PRE_SM', '11'))
TOUCH = int(os.environ.get('TOUCH', '1'))
TPOS = int(os.environ.get('TPOS', '31'))
UEARLY = int(os.environ.get('UEARLY', '0'))
DMODE = int(os.environ.get('DMODE', '1'))
DSTEP = int(os.environ.get('DSTEP', '4'))
DMA_IN = int(os.environ.get('DMA_IN', '8'))
TMO = 60000
OOB = 0x40000000
NFILL = 20
SW, SROLE, SRANK, SK, STMO, SFAST = 48, 49, 50, 51, 52, 53
DIAG = False

def fail(A, code):
    A(f"s_mov_b32 s54, {code}")
    A("s_branch k1_fail")

class Poll:
    def __init__(self, A, code, sleep=0):
        self.A = A; self.code = code; self.sleep = sleep
        self.top = A.new("poll"); self.ok = A.new("pok")
    def begin(self):
        self.A(f"s_mov_b32 s{STMO}, {TMO}")
        self.A.label(self.top)
    def end(self):
        A = self.A
        A(f"s_cbranch_vccz {self.ok}")
        if self.sleep: A(f"s_sleep {self.sleep}")
        A(f"s_sub_u32 s{STMO}, s{STMO}, 1")
        A(f"s_cbranch_scc0 {self.top}")
        fail(A, self.code)
        A.label(self.ok)

def chk_tree(A, regs_, t):
    out = []; rs = list(regs_)
    if len(rs) >= 3:
        out.append(f"v_max3_u32 v{t}, v{rs[0]}, v{rs[1]}, v{rs[2]}"); rs = rs[3:]
    else:
        out.append(f"v_max_u32 v{t}, v{rs[0]}, v{rs[1]}"); rs = rs[2:]
    while len(rs) >= 2:
        out.append(f"v_max3_u32 v{t}, v{t}, v{rs[0]}, v{rs[1]}"); rs = rs[2:]
    if rs: out.append(f"v_max_u32 v{t}, v{t}, v{rs[0]}")
    out.append(f"v_cmp_eq_u32 vcc, -1, v{t}")
    return out

FINE = os.environ.get('FINE', '')
def stamp(A, slot, vt=None):
    if not DIAG or FINE: return
    A(f"s_memrealtime s[{90+2*slot}:{91+2*slot}]")

def fine(A, name):
    if not DIAG or not FINE: return
    names = [n for n in FINE.split(",") if n[0] == name[0]]
    if name in names: A(f"s_memtime s[{90+2*names.index(name)}:{91+2*names.index(name)}]")

def stamp_flush(A, vt):
    if not DIAG: return
    A(f"s_mul_i32 s44, s{SROLE}, {LY.MAXSTEP}")
    A(f"s_add_u32 s44, s44, s{SK}")
    A(f"s_lshl_b32 s44, s44, 2")
    A(f"s_add_u32 s44, s44, s{SW}")
    A(f"s_lshl_b32 s44, s44, 5")
    A(f"s_add_u32 s44, s44, {LY.DBG}")
    A("s_waitcnt lgkmcnt(0)")
    for i in range(4): A(f"v_mov_b32 v{vt+i}, s{90+2*i}")
    A(f"v_mov_b32 v{vt+4}, 0")
    A(f"buffer_store_dwordx4 {v(vt,4)}, v{vt+4}, s[32:35], s44 offen")
    if FINE:
        A("s_nop 1")
        A(f"v_mov_b32 v{vt}, s98"); A(f"v_mov_b32 v{vt+1}, s100"); A(f"v_mov_b32 v{vt+2}, s{STMO}"); A(f"v_mov_b32 v{vt+3}, s57")
        A(f"buffer_store_dwordx4 {v(vt,4)}, v{vt+4}, s[32:35], s44 offen offset:16")
        A("s_mov_b32 s57, 0")

DIAGB = True
def stampB(A, slot, vt):
    if not DIAG or not DIAGB: return
    A("s_memrealtime s[100:101]")
    A(f"s_mul_i32 s99, s{SROLE}, {LY.MAXSTEP}")
    A(f"s_add_u32 s99, s99, s{SK}")
    A(f"s_lshl_b32 s99, s99, 2")
    A(f"s_add_u32 s99, s99, s{SW}")
    A(f"s_lshl_b32 s99, s99, 5")
    A(f"s_add_u32 s99, s99, {LY.DBG + slot*4}")
    A("s_waitcnt lgkmcnt(0)")
    A(f"v_mov_b32 v{vt}, s100"); A(f"v_mov_b32 v{vt+1}, 0")
    A(f"buffer_store_dword v{vt}, v{vt+1}, s[32:35], s99 offen")

def dispatch(A):
    A("s_cmp_ge_u32 s2, 256"); A("s_cbranch_scc1 k1_exit")
    load_args(A)
    srd(A, WS, "ws"); srd(A, 36, "dbg")
    wave_lane(A, SW, 1)
    A("v_lshlrev_b32 v2, 4, v1")
    A(f"s_mov_b32 s{SK}, 0")
    A(f"s_mov_b32 s{SFAST}, 0")
    A(f"s_mov_b32 s{SROLE}, 999")
    A(f"s_cmp_lg_u32 s{SW}, 0"); A("s_cbranch_scc1 k1_role_wait")
    A("s_getreg_b32 s55, hwreg(HW_REG_XCC_ID, 0, 4)")
    A("s_lshl_b32 s56, s55, 7")
    A(f"s_add_u32 s56, s56, {LY.CNT}")
    A("v_mov_b32 v3, 1")
    A(f"v_cmp_eq_u32 vcc, 0, v1")
    A(f"v_mov_b32 v4, {OOB}")
    A("v_cndmask_b32 v4, v4, 0, vcc" if False else "v_cndmask_b32 v4, v4, v1, vcc")
    A("buffer_atomic_add v3, v4, s[32:35], s56 offen sc0 sc1")
    A("s_waitcnt vmcnt(0)")
    A(f"v_readfirstlane_b32 s{SRANK}, v3")
    A("s_mov_b32 s57, 0")
    for x, c in enumerate(CAPS):
        A(f"s_cmp_eq_u32 s55, {x}"); A(f"s_cselect_b32 s57, {c}, s57")
    A(f"s_cmp_lt_u32 s{SRANK}, s57"); A("s_cbranch_scc0 k1_left")
    A(f"s_lshl_b32 s{SROLE}, s55, 5")
    A(f"s_add_u32 s{SROLE}, s{SROLE}, s{SRANK}")
    A("s_branch k1_role_put")
    A.label("k1_left")
    A("v_mov_b32 v3, 1")
    A(f"s_mov_b32 s56, {LY.CNT + 16*128}")
    A("buffer_atomic_add v3, v4, s[32:35], s56 offen sc0 sc1")
    A("s_waitcnt vmcnt(0)")
    A("v_readfirstlane_b32 s58, v3")
    wait_all_registered(A, 1)
    for x, c in enumerate(CAPS):
        if c == 0: continue
        nxt = A.new("lf")
        A(f"v_readlane_b32 s59, v5, {x}")
        A(f"s_min_u32 s59, s59, {c}")
        A(f"s_sub_u32 s60, {c}, s59")
        A(f"s_cmp_lt_u32 s58, s60"); A(f"s_cbranch_scc0 {nxt}")
        A(f"s_add_u32 s{SROLE}, s59, s58")
        A(f"s_add_u32 s{SROLE}, s{SROLE}, {x*32}")
        A("s_branch k1_role_put")
        A.label(nxt)
        A("s_sub_u32 s58, s58, s60")
    A.label("k1_role_put")
    A(f"v_mov_b32 v3, s{SROLE}")
    A("v_mov_b32 v4, 0")
    A("ds_write_b32 v4, v3")
    A("s_waitcnt lgkmcnt(0)")
    A.label("k1_role_wait")
    A("s_barrier")
    A("v_mov_b32 v4, 0")
    A("ds_read_b32 v3, v4")
    A("s_waitcnt lgkmcnt(0)")
    A(f"v_readfirstlane_b32 s{SROLE}, v3")
    A("s_barrier")
    A(f"s_and_b32 s{SRANK}, s{SROLE}, 31")

def wait_all_registered(A, code, or_chain_full=False):
    A("v_and_b32 v6, 15, v1"); A("v_lshlrev_b32 v6, 7, v6")
    A(f"s_mov_b32 s56, {LY.CNT}")
    p = Poll(A, code, sleep=4); p.begin()
    A("buffer_load_dword v5, v6, s[32:35], s56 offen sc1")
    A("s_waitcnt vmcnt(0)")
    A("v_mov_b32 v7, v5")
    dpp_reduce16(A, "v_add_u32", 7)
    A("v_cmp_ne_u32 vcc, 0x100, v7")
    if or_chain_full:
        A("v_readlane_b32 s59, v5, 0")
        A(f"s_cmp_ge_u32 s59, {CAPS[0]}")
        A(f"s_cselect_b32 s{SFAST}, 1, 0")
        A("s_cselect_b64 vcc, 0, vcc")
    p.end()

def wregA(j, slot):
    n = j * 14 + slot
    return a(n * 4, 4) if n < 64 else v(120 + (n - 64) * 4, 4)

def a_slots_setup(A, SM, ST_, hreg):
    A(f"s_and_b32 s46, s{SW}, 1")
    A(f"s_mul_i32 s47, s{SW}, 7")
    A(f"s_lshr_b32 s44, s47, 1")
    for i in range(14):
        if i < 10:
            A(f"s_add_u32 s45, s44, {4+i}")
            A(f"s_cmp_ge_u32 s45, 14"); A(f"s_cselect_b32 s55, 14, 0"); A(f"s_sub_u32 s45, s45, s55")
        elif i < 13:
            A(f"s_add_u32 s45, s44, {i-10}"); A(f"s_add_u32 s45, s45, s46")
        else:
            A(f"s_cmp_eq_u32 s46, 0"); A(f"s_cselect_b32 s55, 3, 0"); A(f"s_add_u32 s45, s44, s55")
        A(f"s_lshl_b32 s{SM+i}, s45, 10")
    for j in range(7):
        if j < 6:
            A(f"s_add_u32 s45, s47, {j}"); A(f"s_add_u32 s45, s45, s46")
        else:
            A(f"s_cmp_eq_u32 s46, 0"); A(f"s_cselect_b32 s55, 6, 0"); A(f"s_add_u32 s45, s47, s55")
        A(f"s_mul_i32 s55, s{hreg}, 28"); A("s_add_u32 s45, s45, s55")
        A(f"s_mul_i32 s45, s45, 14336")
        A(f"s_add_u32 s{ST_+j}, s45, {LY.AF}")

def load_A_weights(A, SM, ST_, wreg):
    for j in range(7):
        for i in range(14):
            A(f"s_add_u32 s45, s{ST_+j}, s{SM+i}")
            A(f"buffer_load_dwordx4 {wreg(j,i)}, v2, s[32:35], s45 offen")

SMF = "v_smfmac_f32_16x16x64_bf16"
SLY, SSG, SNL, SNS = 40, 41, 42, 43

def next_phase(A, l, s, nl, ns):
    d = A.new("np"); o = A.new("np1")
    A(f"s_cmp_eq_u32 s{l}, 0"); A(f"s_cbranch_scc0 {o}")
    A(f"s_sub_i32 s{ns}, s{s}, {LY.LAG}"); A(f"s_mov_b32 s{nl}, 1")
    A(f"s_cmp_ge_i32 s{ns}, 0"); A(f"s_cbranch_scc1 {d}")
    A(f"s_add_u32 s{ns}, s{s}, 1"); A(f"s_mov_b32 s{nl}, 0"); A(f"s_branch {d}")
    A.label(o)
    A(f"s_add_u32 s{ns}, s{s}, {LY.LAG + 1}"); A(f"s_mov_b32 s{nl}, 0")
    A(f"s_cmp_lt_u32 s{ns}, 64"); A(f"s_cbranch_scc1 {d}")
    A(f"s_add_u32 s{ns}, s{s}, 1"); A(f"s_mov_b32 s{nl}, 1")
    A.label(d)

def ls_off(A, sd, l, s, per, base):
    A(f"s_lshl_b32 s{sd}, s{l}, 6"); A(f"s_add_u32 s{sd}, s{sd}, s{s}"); A(f"s_mul_i32 s{sd}, s{sd}, {per}"); A(f"s_add_u32 s{sd}, s{sd}, {base}")

def sparse_idx(A, vd, t):
    A(f"v_and_b32 v{t}, 1, v1"); A(f"v_cmp_eq_u32 vcc, 0, v{t}")
    A(f"v_mov_b32 v{vd}, 0xeeee"); A(f"v_mov_b32 v{t}, 0x4444"); A(f"v_cndmask_b32 v{vd}, v{vd}, v{t}, vcc")

def wregA8(j, i):
    n = j * 14 + 2 * i
    return a(n * 4, 8) if n < 64 else v(120 + (n - 64) * 4, 8)

S0, S1, SALT, SPRE = 40, 41, 42, 43

def softmax16(A, T, vmask, fill, stores):
    fill = list(fill)
    def F(n):
        for _ in range(n):
            if fill: A(fill.pop(0))
    A("s_waitcnt lgkmcnt(2)")
    A(f"v_pk_add_f32 {v(T,2)}, {v(T,2)}, {v(T+2,2)}")
    A(f"v_pk_add_f32 {v(T+4,2)}, {v(T+4,2)}, {v(T+6,2)}")
    A("s_waitcnt lgkmcnt(0)")
    A(f"v_pk_add_f32 {v(T+8,2)}, {v(T+8,2)}, {v(T+10,2)}")
    A(f"v_pk_add_f32 {v(T+12,2)}, {v(T+12,2)}, {v(T+14,2)}")
    A(f"v_pk_add_f32 {v(T,2)}, {v(T,2)}, {v(T+4,2)}")
    A(f"v_pk_add_f32 {v(T+8,2)}, {v(T+8,2)}, {v(T+12,2)}")
    fine(A, "a5")
    A(f"v_max_f32 v{T+2}, v{T}, v{T+1}")
    A(f"v_max3_f32 v{T+2}, v{T+2}, v{T+8}, v{T+9}")
    for ctl in ("quad_perm:[1,0,3,2]", "quad_perm:[2,3,0,1]", "row_half_mirror", "row_mirror"):
        F(2); A(f"v_max_f32_dpp v{T+2}, v{T+2}, v{T+2} {ctl} row_mask:0xf bank_mask:0xf")
    for r in (T, T+1, T+8, T+9): A(f"v_sub_f32 v{r}, v{r}, v{T+2}")
    for r in (T+8, T+9, T, T+1): A(f"v_exp_f32 v{r}, v{r}")
    A(f"v_add_f32 v{T+3}, v{T+8}, v{T+9}")
    A(f"v_add_f32 v{T+2}, v{T}, v{T+1}")
    A(f"v_fmac_f32 v{T+2}, v{vmask}, v{T+3}")
    for ctl in ("quad_perm:[1,0,3,2]", "quad_perm:[2,3,0,1]", "row_half_mirror", "row_mirror"):
        F(2); A(f"v_add_f32_dpp v{T+2}, v{T+2}, v{T+2} {ctl} row_mask:0xf bank_mask:0xf")
    A(f"v_rcp_f32 v{T+2}, v{T+2}")
    F(1)
    for r in (T+8, T+9, T, T+1): A(f"v_mul_f32 v{r}, v{r}, v{T+2}")
    A(f"v_cvt_pk_bf16_f32 v{T+8}, v{T+8}, v{T+9}")
    A(f"v_cvt_pk_bf16_f32 v{T}, v{T}, v{T+1}")
    A(f"v_min_u32 v{T}, -2, v{T}")
    A(stores[0])
    A(f"v_min_u32 v{T+8}, -2, v{T+8}")
    A(stores[1])
    return fill

def chainA(A):
    SM, ST_ = 60, 74
    SPC, SXS, SFX, SKB, SMS, SB2 = (60, 61), (62, 64), 66, (67, 68), (70, 71), 72
    MR, ACC, MK, SC, SG = 16, 44, 72, 88, 104
    IDX, FLG, VMK, VXW, VXR, VOWN, VMKA, VSW = 112, 113, 114, 115, 116, 0, 10, 15
    MST, KEY0 = 0, 16384
    LX, PART = KEY0 + 65536, KEY0 + 65536 + 8192
    a_slots_setup(A, SM, ST_, SRANK)
    VO = [117, 118, 119, 13]
    for i in range(4): A(f"v_add_u32 v{VO[i]}, s{SM+10+i}, v2"); A(f"s_mov_b32 s{90+i}, s{SM+10+i}")
    for i in range(14): A(f"s_mov_b32 s{SM+i}, {i*1024}")
    load_A_weights(A, SM, ST_, wregA)
    sparse_idx(A, IDX, 9)
    A("v_and_b32 v9, 15, v1"); A("v_lshrrev_b32 v10, 4, v1")
    A(f"s_mul_i32 s45, s{SW}, 3584"); A(f"s_add_u32 s45, s45, {PART}")
    A("v_mul_u32_u24 v3, 208, v9"); A("v_lshl_add_u32 v3, v10, 4, v3"); A("v_add_u32 v3, s45, v3")
    A(f"s_and_b32 s45, s{SW}, 1"); A("s_lshl_b32 s45, s45, 2"); A("v_add_u32 v11, s45, v10")
    A(f"s_lshr_b32 s45, s{SW}, 1"); A("s_mul_i32 s45, s45, 14336"); A(f"s_add_u32 s45, s45, {PART}")
    A("v_mul_u32_u24 v12, 208, v11"); A("v_add_u32 v12, s45, v12")
    A("v_lshrrev_b32 v16, 2, v9"); A("v_lshlrev_b32 v16, 2, v16")
    A("v_and_b32 v14, 1, v9"); A("v_lshl_add_u32 v16, v14, 1, v16")
    A("v_bfe_u32 v14, v9, 1, 1"); A("v_lshl_add_u32 v16, v14, 4, v16")
    A("v_add_u32 v16, 16, v16"); A("v_lshl_add_u32 v4, v16, 2, v12")
    A("v_and_b32 v16, 3, v9"); A("v_lshl_add_u32 v5, v16, 3, v12")
    A("v_lshrrev_b32 v16, 2, v9"); A("v_lshl_add_u32 v16, v16, 3, v11"); A("v_lshlrev_b32 v16, 4, v16")
    A("v_and_b32 v14, 3, v9"); A("v_lshl_add_u32 v6, v14, 2, v16")
    A(f"s_lshl_b32 s45, s{SRANK}, 9"); A("v_add_u32 v6, s45, v6")
    A("v_lshl_add_u32 v7, v9, 3, v11"); A("v_lshlrev_b32 v7, 4, v7")
    A(f"s_lshr_b32 s45, s{SRANK}, 2"); A("s_lshl_b32 s45, s45, 9"); A(f"s_and_b32 s44, s{SRANK}, 3"); A("s_lshl_b32 s44, s44, 2")
    A("s_add_u32 s45, s45, s44"); A("s_add_u32 s45, s45, 8192"); A("v_add_u32 v7, s45, v7")
    A(f"v_mov_b32 v16, {OOB}"); A("v_cmp_gt_u32 vcc, 4, v9"); A("v_cndmask_b32 v7, v16, v7, vcc")
    A(f"v_mov_b32 v{VMK}, 0"); A("v_mov_b32 v14, 1.0"); A(f"v_cndmask_b32 v{VMK}, v{VMK}, v14, vcc")
    for l in range(2):
        A(f"s_mov_b32 s{SMS[l]}, {LY.MS + l*64*7168}")
        A(f"s_mov_b32 s{SPC[l]}, {LY.PC + l*64*10240}")
        A(f"s_mov_b32 s{SXS[l]}, {LY.XS + l*64*28672}"); A(f"s_mov_b32 s{SXS[l]+1}, {LY.XS + l*64*28672 + 14336}")
        A(f"s_lshl_b32 s45, s{SW}, 13"); A(f"s_add_u32 s{SKB[l]}, s45, {KEY0 + l*32768}")
    A(f"s_mov_b32 s{SFX}, {LY.GO + 512}")
    A("v_mov_b32 v8, 0")
    STU = (74, 75); STC = 76
    A(f"s_mov_b32 s{STU[0]}, {LY.U + 448*1024}"); A(f"s_mov_b32 s{STU[1]}, {LY.U + 64*448*1024}")
    A(f"s_lshl_b32 s45, s{SRANK}, 2"); A(f"s_add_u32 s45, s45, s{SW}"); A("s_lshl_b32 s45, s45, 13")
    A("v_lshlrev_b32 v87, 7, v1"); A("v_add_u32 v87, s45, v87")
    A(f"s_lshl_b32 s45, s{SW}, 11"); A(f"s_add_u32 s45, s45, {LX}")
    A("v_lshrrev_b32 v16, 2, v9"); A("v_lshlrev_b32 v16, 3, v16"); A("v_and_b32 v14, 3, v9"); A("v_add_u32 v16, v16, v14")
    A("v_lshlrev_b32 v16, 4, v16"); A("v_lshl_add_u32 v16, v10, 2, v16"); A(f"v_add_u32 v{VXW}, s45, v16")
    A("v_bfe_u32 v16, v1, 2, 2"); A("v_lshl_add_u32 v16, v10, 3, v16"); A("v_lshlrev_b32 v16, 4, v16")
    A("v_and_b32 v14, 1, v1"); A("v_lshl_add_u32 v16, v14, 3, v16"); A(f"v_add_u32 v{VXR}, s45, v16")
    A("v_lshrrev_b32 v16, 1, v10"); A("v_lshlrev_b32 v16, 4, v16"); A("v_and_b32 v14, 7, v9"); A("v_lshl_add_u32 v16, v14, 1, v16")
    A("v_lshlrev_b32 v16, 4, v16"); A("v_and_b32 v14, 1, v10"); A("v_lshl_add_u32 v16, v14, 3, v16"); A(f"v_add_u32 v16, {MST}, v16")
    VMA = [0, 10, 14, 9]
    A("s_lshr_b32 s45, s90, 1"); A("v_add_u32 v0, s45, v16"); A("s_lshr_b32 s45, s91, 1"); A("v_add_u32 v10, s45, v16")
    A("s_lshr_b32 s45, s92, 1"); A("v_add_u32 v14, s45, v16")
    A("s_lshr_b32 s45, s93, 1"); A("s_lshl_b32 s44, s46, 2"); A("s_add_u32 s45, s45, s44"); A("v_add_u32 v9, s45, v16")
    A(f"s_add_u32 s45, s{SKB[0]}, 0"); A("v_add_u32 v11, s45, v2")
    A("s_lshl_b32 s45, s46, 3"); A("v_add_u32 v12, s45, v11")
    A(f"s_lshl_b32 s45, s{SW}, 11"); A(f"v_add_u32 v{VSW}, s45, v2")
    A(f"s_cmp_eq_u32 s{SW}, 3"); A(f"s_cselect_b32 s{SB2}, 0, 1024")
    CT = 103
    dma = lambda n, l: [f"s_add_u32 m0, s{SKB[l]}, {n*1024}", "s_nop 0", f"buffer_load_dwordx4 v{VO[n>>1]}, s[32:35], s{SXS[l]+(n&1)} offen sc1 lds"]
    def keys(l):
        for n in range(8):
            for t in dma(n, l): A(t)
        A(f"s_add_u32 s{SXS[l]}, s{SXS[l]}, 28672"); A(f"s_add_u32 s{SXS[l]+1}, s{SXS[l]+1}, 28672")
        if l: A(f"s_add_u32 s{SFX}, s{SFX}, 4")
    keys(0)
    for q in range(5, 8): A(f"v_mov_b32 v{88+q}, v{q}")
    wait_all_registered(A, 2, True)
    for q in range(5, 8): A(f"v_mov_b32 v{q}, v{88+q}")
    A(f"v_add_u32 v1, s{SB2}, v{VSW}")
    A("s_waitcnt vmcnt(0)")
    A(f"s_mov_b32 s{S0}, 0"); A(f"s_mov_b32 s{S1}, 0"); A(f"s_mov_b32 s{SPRE}, 0"); A(f"v_mov_b32 v{FLG}, 0")
    A("s_mov_b32 s73, 0")
    zero = [f"v_mov_b32 v{ACC+r}, 0" for r in range(28)]
    for z in zero: A(z)
    A(f"s_cmp_eq_u32 s{SFAST}, 1"); A("s_cbranch_scc0 chainA_slow")
    mr = lambda i: MR + i * 4
    mloads = lambda l: [f"buffer_load_dwordx4 {v(SG,4)}, v{VSW}, s[32:35], s{SMS[l]} offen sc1", f"buffer_load_dwordx4 {v(SG+4,4)}, v1, s[32:35], s{SMS[l]} offen sc1"]
    def flagwait(code):
        ok = A.new("fxok")
        A(f"v_cmp_ne_u32 vcc, 1, v{FLG}"); A(f"s_cbranch_vccz {ok}")
        p = Poll(A, code, sleep=2); p.begin()
        A(f"buffer_load_dword v{FLG}, v8, s[32:35], s{SFX} offen sc1")
        A("s_waitcnt vmcnt(0)")
        A(f"v_cmp_ne_u32 vcc, 1, v{FLG}")
        p.end()
        A.label(ok)
    def keys1(code):
        sk = A.new("k1")
        A("s_cmp_ge_u32 s73, 63"); A(f"s_cbranch_scc1 {sk}")
        flagwait(code); keys(1); A("s_add_u32 s73, s73, 1")
        A.label(sk)
    for fast in (True, False):
        if not fast: A.label("chainA_slow")
        SF = "" if fast else " sc1"
        tops = [A.new("cabody0"), A.new("cabody1")]
        for l in range(2):
            o = 1 - l; SS_ = (S0, S1)[l]
            A.label(tops[l])
            if DIAG: A(f"s_add_u32 s{SK}, s{SS_}, {64*l}")
            go = A.new("go"); pl = A.new("pl"); w2 = A.new("w2")
            A(f"s_cmp_eq_u32 s{SPRE}, 0"); A(f"s_cbranch_scc1 {pl}")
            A(f"s_cmp_lt_u32 s{SW}, 2"); A(f"s_cbranch_scc{1 if l else 0} {w2}")
            A(f"s_waitcnt vmcnt({0 if DMODE else 18 if 'ad0' in FINE else 16})")
            A.label(w2)
            A(f"s_cmp_lt_u32 s{SW}, 2"); sk = A.new("w3"); A(f"s_cbranch_scc{0 if l else 1} {sk}")
            A("s_waitcnt vmcnt(2)")
            A.label(sk)
            for t in chk_tree(A, range(SG, SG+8), CT): A(t)
            A(f"s_cbranch_vccz {go}")
            A.label(pl)
            p = Poll(A, 10); p.begin()
            for t in mloads(l): A(t)
            A("s_waitcnt vmcnt(0)")
            for t in chk_tree(A, range(SG, SG+8), CT): A(t)
            p.end()
            A.label(go)
            stamp(A, 0, 9); fine(A, "a0")
            mo = MST + l * 7168
            A(f"ds_write_b128 v{VSW}, {v(SG,4)} offset:{mo}"); A(f"ds_write_b128 v1, {v(SG+4,4)} offset:{mo}")
            if l == 0: A(f"s_cmp_ge_u32 s{S0}, {LY.LAG}")
            else: A(f"s_cmp_lt_u32 s{S0}, 63")
            A(f"s_cselect_b32 s{SALT}, 1, 0"); A(f"s_cselect_b32 s{STC}, s{STU[o]}, s{STU[l]}")
            if DMODE: A(f"s_cselect_b32 s77, s{SKB[o]}, {PART + 28672}")
            A(f"s_cselect_b32 s44, {448*1024}, 0"); A(f"s_add_u32 s{STU[o]}, s{STU[o]}, s44")
            A(f"s_sub_u32 s44, {448*1024}, s44"); A(f"s_add_u32 s{STU[l]}, s{STU[l]}, s44")
            A(f"s_add_u32 s{SMS[l]}, s{SMS[l]}, 7168")
            if DMODE and l == 0:
                nf = A.new("nf")
                A(f"s_cmp_eq_u32 s{SALT}, 0"); A(f"s_cbranch_scc1 {nf}")
                flagwait(16)
                A.label(nf)
            if TOUCH == 2: A(f"buffer_load_dword v86, v87, s[32:35], s{STC} offen")
            A("s_waitcnt lgkmcnt(0)"); A("s_barrier")
            fine(A, "ab")
            for i in range(7): A(f"ds_read_b128 {v(mr(i),4)}, v2 offset:{mo + i*1024}")
            nl = 7
            xk = lambda ks, tt: mr(ks * 2 + tt) if ks < 3 else mr(6) + tt * 2
            def post(j):
                r = ACC + j * 4
                ks, b = (j >> 1, j & 1) if j < 6 else (3, 0)
                return [f"v_add_f32 v{r}, v{r}, v{r+1}", f"v_add_f32 v{r+2}, v{r+2}, v{r+3}", f"v_cvt_pk_bf16_f32 v{r}, v{r}, v{r+2}",
                        f"ds_write_b32 v{VXW}, v{r} offset:{ks*512 + b*64}"]
            kb = l * 32768; d4 = l * 7168 // 4
            mk = []
            for ks in range(3):
                mk.append(f"ds_read2_b32 {v(MK+ks*4,2)}, v{VMA[ks]} offset0:0 offset1:4"); mk.append(f"ds_read2_b32 {v(MK+ks*4+2,2)}, v{VMA[ks]} offset0:1 offset1:5")
            mk.append(f"ds_read2_b32 {v(MK+12,2)}, v{VMA[3]} offset0:0 offset1:4")
            def tr(ks):
                return [f"ds_read_b64_tr_b16 {v(ACC+ks*8+hh*2,2)}, v{VXR} offset:{ks*512 + hh*64}" for hh in range(2 if ks < 3 else 1)]
            lds_ids = {}
            def emit(t, name=None):
                nonlocal nl
                A(t)
                if t.startswith("ds_"):
                    nl += 1
                    if name: lds_ids[name] = nl
            for i in range(5):
                A(f"s_waitcnt lgkmcnt({min(15, nl - 1 - i - (1 if i == 4 else 0) * 2)})")
                extra = {}
                if i == 1:
                    for q in range(7): extra[q] = [mk[q]]
                if i == 2:
                    if not DMODE: extra[0] = [f"s_waitcnt vmcnt({9 if TOUCH == 2 else 8})"]
                    pass
                if 2 <= i <= 4: extra.setdefault(1, []).append(f"ds_read_b128 {v(mr(i-2),4)}, v11 offset:{kb + (i-2)*1024}")
                if i == 4:
                    extra[3] = [f"ds_read_b128 {v(mr(3),4)}, v11 offset:{kb + 3*1024}"]
                    extra[6] = [f"buffer_load_dword v{FLG}, v8, s[32:35], s{SFX} offen sc1"]
                for j in range(7):
                    A(f"{SMF} {v(ACC+j*4,4)}, {v(mr(i),4)}, {wregA8(j,i)}, v{IDX}")
                    for t in extra.get(j, []): emit(t)
                    n = i * 7 + j
                    if TOUCH == 1 and n == TPOS: A(f"buffer_load_dword v86, v87, s[32:35], s{STC} offen")
                    if DMODE and n % DSTEP == 0 and n // DSTEP < 8: A(f"s_add_u32 m0, s77, {(n // DSTEP)*1024}")
                    if DMODE and n % DSTEP == 1 and n // DSTEP < 8: A(dma(n // DSTEP, o)[2])
                    if DMODE and n == 33:
                        A(f"s_cmp_eq_u32 s{SALT}, 1"); A("s_cselect_b32 s44, 28672, 0")
                        A(f"s_add_u32 s{SXS[o]}, s{SXS[o]}, s44"); A(f"s_add_u32 s{SXS[o]+1}, s{SXS[o]+1}, s44")
                        if o: A(f"s_lshl_b32 s44, s{SALT}, 2"); A(f"s_add_u32 s{SFX}, s{SFX}, s44"); A(f"s_add_u32 s73, s73, s{SALT}")
                fine(A, f"ag{i}")
            seq = []
            for j in range(7): seq += [(j, 5), (j, 6)]
            P_ = [post(j) for j in range(7)]
            fillers = {1: [f"ds_read_b128 {v(mr(4),4)}, v11 offset:{kb + 4*1024}"],
                       5: P_[0][:2], 6: P_[0][2:], 7: P_[1][:2], 8: P_[1][2:], 9: [("T0", x) for x in tr(0)],
                       10: P_[2][:2], 11: P_[2][2:], 12: P_[3][:2], 13: P_[3][2:] + [("T1", x) for x in tr(1)]}
            for n, (j, i) in enumerate(seq):
                A(f"{SMF} {v(ACC+j*4,4)}, {v(mr(i),4)}, {wregA8(j,i)}, v{IDX}")
                for t in fillers.get(n, []):
                    if isinstance(t, tuple): emit(t[1], t[0])
                    else: emit(t)
            stamp(A, 1, 9); fine(A, "a1")
            def sc(ks, name):
                A(f"s_waitcnt lgkmcnt({nl - lds_ids[name]})")
                op = MM if ks < 3 else MM16; w = 4 if ks < 3 else 2
                tb = ACC + ks * 8
                A(f"{op} {v(SC,4)}, {v(MK+ks*4,w)}, {v(tb,w)}, {v(SC,4) if ks else 0}")
                for tt in range(2):
                    A(f"{op} {v(SC+4+tt*4,4)}, {v(xk(ks,tt),w)}, {v(tb,w)}, {v(SC+4+tt*4,4) if ks else 0}")
            emit(f"ds_read_b128 {v(mr(5),4)}, v11 offset:{kb + 5*1024}")
            for tt in range(2): emit(f"ds_read_b64 {v(mr(6)+tt*2,2)}, v12 offset:{kb + (6+tt)*1024}")
            for q in range(4):
                emit(P_[4][q]); emit(P_[5][q])
            for x in tr(2): emit(x, "T2")
            sc(0, "T0")
            for x in P_[6]: emit(x)
            for x in tr(3): emit(x, "T3")
            sc(1, "T1")
            sc(2, "T2")
            sc(3, "T3")
            for z in zero[:5]: A(z)
            fine(A, "a2")
            for q in range(3): A(f"ds_write_b128 v3, {v(SC+q*4,4)} offset:{l*14336 + q*64}")
            for z in zero[5:12]: A(z)
            A("s_waitcnt lgkmcnt(0)")
            fine(A, "a3")
            A("s_barrier")
            fine(A, "a4")
            nosm = A.new("nosm"); join = A.new("join")
            A(f"s_cmp_lt_u32 s{SW}, 2"); A(f"s_cbranch_scc{1 if l else 0} {nosm}")
            T = SC
            A(f"ds_read2st64_b64 {v(T,4)}, v4 offset0:0 offset1:7")
            A(f"ds_read2st64_b64 {v(T+4,4)}, v4 offset0:14 offset1:21")
            A(f"ds_read2st64_b64 {v(T+8,4)}, v5 offset0:0 offset1:7")
            A(f"ds_read2st64_b64 {v(T+12,4)}, v5 offset0:14 offset1:21")
            for t in mloads(o): A(t)
            stamp(A, 2, 9)
            rest = softmax16(A, T, VMK, zero[12:],
                             [f"buffer_store_dword v{T}, v6, s[32:35], s{SPC[l]} offen{SF}", f"buffer_store_dword v{T+8}, v7, s[32:35], s{SPC[l]} offen{SF}"])
            assert not rest
            stamp(A, 3, 9); fine(A, "a6")
            if DIAG and "ad0" not in FINE:
                A("s_waitcnt vmcnt(2)")
                stamp_flush(A, 96)
            if DMODE and l == 0:
                A(f"s_cmp_eq_u32 s{SALT}, 1"); A(f"s_cbranch_scc1 {join}")
                keys(0)
            elif l == 0:
                nk = A.new("nk")
                A(f"s_cmp_gt_u32 s{S0}, {LY.LAG}"); A(f"s_cbranch_scc1 {join}")
                A(f"s_cmp_eq_u32 s{S0}, {LY.LAG}"); A(f"s_cbranch_scc1 {nk}")
                keys(0)
                A(f"s_branch {join}")
                A.label(nk)
                A("s_waitcnt vmcnt(0)")
                keys1(14)
                A("s_waitcnt vmcnt(0)")
            else:
                A(f"s_cmp_eq_u32 s{SALT}, 1"); A(f"s_cbranch_scc1 {join}")
                A("s_waitcnt vmcnt(0)")
                keys1(13)
            A(f"s_branch {join}")
            A.label(nosm)
            for t in mloads(o): A(t)
            for z in zero[12:]: A(z)
            if not DMODE or l: A("s_waitcnt vmcnt(2)")
            alt = A.new("alt")
            A(f"s_cmp_eq_u32 s{SALT}, 1"); A(f"s_cbranch_scc1 {join if DMODE else alt}")
            if l == 0: keys(0)
            else: keys1(15)
            A(f"s_branch {join}")
            A.label(alt)
            fine(A, "ad0")
            if l == 0: keys1(16); keys(0)
            else: keys(0); keys1(17)
            fine(A, "ad1")
            if FINE and "ad0" in FINE: stamp_flush(A, 96)
            A.label(join)
            A(f"s_add_u32 s{SPC[l]}, s{SPC[l]}, 10240"); A(f"s_add_u32 s{SS_}, s{SS_}, 1"); A(f"s_mov_b32 s{SPRE}, s{SALT}")
            sw = A.new("sw")
            A(f"s_cmp_eq_u32 s{SALT}, 1"); A(f"s_cbranch_scc1 {sw}")
            A(f"s_cmp_lt_u32 s{SS_}, 63"); A(f"s_cbranch_scc1 {tops[l]}")
            A("s_endpgm")
            A.label(sw)
            for q in range(4): A(f"v_add_u32 v{VMA[q]}, {7168 if l == 0 else -7168 & 0xffffffff}, v{VMA[q]}")
            A(f"s_branch {tops[o]}")

LP = (2, 5)
WBPOS = os.environ.get('WBPOS', 'late')
USTEP = int(os.environ.get('USTEP', '3'))
PSTEP = int(os.environ.get('PSTEP', '2'))
def load_B64_weights(A, SJ, wreg):
    for n in range(8):
        hh, ct = n >> 1, n & 1
        A(f"s_lshl_b32 s44, s{SJ}, 1"); A(f"s_add_u32 s44, s44, {ct}"); A("s_lshl_b32 s44, s44, 4")
        A(f"s_lshl_b32 s45, s{SW}, 2"); A("s_add_u32 s44, s44, s45"); A(f"s_add_u32 s44, s44, {hh}")
        A("s_mul_i32 s44, s44, 14336"); A(f"s_add_u32 s44, s44, {LY.BF}")
        for kk in range(14):
            p_, hf = kk >> 1, kk & 1
            A(f"s_add_u32 s45, s44, {kk*1024}")
            if p_ in LP:
                A(f"s_lshl_b32 s47, s{SW}, 15"); A(f"s_add_u32 m0, s47, {((LP.index(p_)*8 + n)*2 + hf)*1024}")
                A("s_nop 0")
                A(f"buffer_load_dwordx4 v2, s[32:35], s45 offen lds")
            else:
                A(f"buffer_load_dwordx4 {wreg(p_,n,hf)}, v2, s[32:35], s45 offen")

def w_smf(A, MR, WACC, WBUF, wreg, IDX, vw, vl, ustep):
    vl = list(vl); cnt = [0]
    def slot():
        cnt[0] += 1
        if (cnt[0] in ustep if isinstance(ustep, (list, tuple)) else cnt[0] % ustep == 0) and vl: A(vl.pop(0))
    regp = [p_ for p_ in range(7) if p_ not in LP]
    regl = [(p_, n) for p_ in regp for n in range(8)]
    ldsl = [(p_, n) for p_ in LP for n in range(8)]
    for bq in range(4):
        A("s_waitcnt lgkmcnt(0)")
        for q in range(4):
            p_, n = ldsl[bq*4+q]
            A(f"{SMF} {v(WACC+n*4,4)}, {v(MR+p_*4,4)}, {v(WBUF+q*8,8)}, v{IDX}")
            slot()
        for q in range(10):
            p_, n = regl[bq*10+q]
            A(f"{SMF} {v(WACC+n*4,4)}, {v(MR+p_*4,4)}, {wreg(p_,n)}, v{IDX}")
            if bq < 3 and q < 8: A(f"ds_read_b128 {v(WBUF+q*4,4)}, v{vw} offset:{((bq+1)*8+q)*1024}")
            slot()
    assert not vl

def chainB(A):
    SJ = 60
    SMS, SPC, SU, SWB, SFU = (62, 63), (70, 71), (72, 74), (78, 79), (80, 81)
    SFL, SFW = 82, 83
    MR, WACC, PX, PM, WBUF, D, FLG, IDX, WP, SG = 16, 44, 76, 92, 96, 128, 136, 143, 144, 152
    UREG = 0
    LRED = 131072; MST = LRED + 16384
    regp = [p_ for p_ in range(7) if p_ not in LP]
    def wreg(p_, n, hf=None):
        idx = regp.index(p_) * 8 + n
        o, c = (0, 8) if hf is None else (hf * 4, 4)
        return a(32 + idx * 8 + o, c) if idx < 28 else v(160 + (idx - 28) * 8 + o, c)
    A(f"s_sub_u32 s{SJ}, s{SRANK}, 16")
    load_B64_weights(A, SJ, wreg)
    sparse_idx(A, IDX, 9)
    A(f"s_lshl_b32 s45, s{SW}, 15"); A(f"v_add_u32 v3, s45, v2")
    A("v_and_b32 v9, 15, v1"); A("v_lshrrev_b32 v10, 4, v1")
    A(f"v_mov_b32 v11, {OOB}"); A("v_cmp_gt_u32 vcc, 8, v9")
    A("v_lshl_add_u32 v12, v10, 3, v9"); A("v_lshlrev_b32 v12, 4, v12")
    A(f"s_lshl_b32 s45, s{SW}, 11"); A("v_add_u32 v6, s45, v12"); A("v_cndmask_b32 v6, v11, v6, vcc")
    A(f"s_lshl_b32 s45, s{SW}, 9"); A("s_add_u32 s45, s45, 8192"); A("v_add_u32 v7, s45, v12"); A("v_cndmask_b32 v7, v11, v7, vcc")
    A("v_bfe_u32 v9, v1, 2, 3"); A("v_and_b32 v10, 3, v1"); A("v_cmp_gt_u32 vcc, 32, v1")
    A("v_and_b32 v14, 1, v10"); A("v_lshl_add_u32 v14, v9, 1, v14"); A("v_lshlrev_b32 v14, 4, v14")
    A("v_lshrrev_b32 v15, 1, v10"); A("v_lshl_add_u32 v14, v15, 2, v14")
    A(f"s_lshl_b32 s45, s{SJ}, 9"); A(f"s_lshr_b32 s44, s{SW}, 1"); A("s_lshl_b32 s44, s44, 8"); A("s_add_u32 s45, s45, s44")
    A(f"s_and_b32 s44, s{SW}, 1"); A("s_lshl_b32 s44, s44, 3"); A("s_add_u32 s45, s45, s44"); A("s_add_u32 s45, s45, 7168")
    A("v_add_u32 v14, s45, v14"); A("v_cndmask_b32 v14, v11, v14, vcc")
    A("v_lshlrev_b32 v12, 10, v15"); A("v_lshl_add_u32 v12, v9, 4, v12"); A("v_and_b32 v15, 1, v10"); A("v_lshl_add_u32 v12, v15, 3, v12")
    A(f"s_lshl_b32 s45, s{SW}, 8"); A(f"s_add_u32 s45, s45, {LRED}"); A("v_add_u32 v12, s45, v12")
    A(f"s_lshl_b32 s45, s{SW}, 12"); A("v_add_u32 v8, s45, v2")
    A(f"s_lshl_b32 s45, s{SW}, 11"); A("v_add_u32 v4, s45, v2")
    A(f"s_cmp_eq_u32 s{SW}, 3"); A("s_cselect_b32 s45, 0, 1024"); A("v_add_u32 v15, s45, v4")
    A(f"s_lshl_b32 s45, s{SW}, 2"); A(f"v_mov_b32 v{FLG+4}, s45")
    A(f"v_add_u32 v11, {LRED}, v4")
    for q in range(4): A(f"v_mov_b32 v{FLG+q}, 0")
    A(f"v_mov_b32 v{FLG+5}, 0")
    for l in range(2):
        A(f"s_mov_b32 s{SMS[l]}, {LY.MS + l*64*7168}")
        A(f"s_mov_b32 s{SPC[l]}, {LY.PC + l*64*10240}")
        A(f"s_lshl_b32 s45, s{SJ}, 15"); A(f"s_add_u32 s{SU[l]}, s45, {LY.U + l*64*448*1024}"); A(f"s_add_u32 s{SU[l]+1}, s{SU[l]}, 16384")
        A(f"s_mov_b32 s{SFU[l]}, {LY.GO + l*256}")
    A(f"s_mov_b32 s{SFL}, s{SFU[0]}")
    for q in range(5, 8): A(f"v_mov_b32 v{100+q}, v{q}")
    wait_all_registered(A, 3, True)
    for q in range(5, 8): A(f"v_mov_b32 v{q}, v{100+q}")
    A("s_waitcnt vmcnt(0)")
    flagloads = [f"buffer_load_dword v{FLG}, v{FLG+5}, s[32:35], s{SFL} offen sc1"]
    def flagchk(): A(f"v_cmp_ne_u32 vcc, 1, v{FLG}")
    zero = [f"v_mov_b32 v{WACC+r}, 0" for r in range(32)]
    wb0 = [f"ds_read_b128 {v(WBUF+q*4,4)}, v3 offset:{q*1024}" for q in range(8)]
    mloads = lambda l: [f"buffer_load_dwordx4 {v(SG,4)}, v4, s[32:35], s{SMS[l]} offen sc1", f"buffer_load_dwordx4 {v(SG+4,4)}, v15, s[32:35], s{SMS[l]} offen sc1"]
    def mstage(l, code, first_try):
        ok = A.new("mok")
        if first_try:
            for t in chk_tree(A, range(SG, SG+8), 9): A(t)
            A(f"s_cbranch_vccz {ok}")
        p = Poll(A, code); p.begin()
        for t in mloads(l): A(t)
        A("s_waitcnt vmcnt(0)")
        for t in chk_tree(A, range(SG, SG+8), 9): A(t)
        p.end()
        A.label(ok)
        A(f"ds_write_b128 v4, {v(SG,4)} offset:{MST - 0 + l*7168}" if False else f"ds_write_b128 v0, {v(SG,4)} offset:{l*7168}")
        A(f"ds_write_b128 v5, {v(SG+4,4)} offset:{l*7168}")
    A(f"v_add_u32 v0, {MST}, v4"); A(f"v_add_u32 v5, {MST}, v15"); A(f"v_add_u32 v1, {MST}, v2")
    A(f"s_mov_b32 s{S0}, 0"); A(f"s_mov_b32 s{S1}, 0"); A(f"s_mov_b32 s{SPRE}, 0")
    A("s_mov_b32 s85, 0")
    for t in zero + wb0: A(t)
    A(f"s_cmp_eq_u32 s{SFAST}, 1"); A("s_cbranch_scc0 chainB_slow")
    for fast in (True, False):
        if not fast: A.label("chainB_slow")
        SF = "" if fast else " sc1"
        tops = [A.new("cbbody0"), A.new("cbbody1")]
        for l in range(2):
            o = 1 - l; SS_ = (S0, S1)[l]; SO_ = (S0, S1)[o]
            A.label(tops[l])
            if DIAG: A(f"s_add_u32 s{SK}, s{SS_}, {64*l}")
            go = A.new("go")
            A(f"s_cmp_eq_u32 s{SPRE}, 1"); A(f"s_cbranch_scc1 {go}")
            mstage(l, 20, False)
            A("s_waitcnt lgkmcnt(0)"); A("s_barrier")
            A.label(go)
            stamp(A, 0, 9); fine(A, "b0")
            for i in (2, 0, 1, 3, 4, 5, 6): A(f"ds_read_b128 {v(MR+i*4,4)}, v1 offset:{l*7168 + i*1024}")
            sk = A.new("ufl")
            flagchk(); A(f"s_cbranch_vccz {sk}")
            p = Poll(A, 21, sleep=2); p.begin()
            for t in flagloads: A(t)
            A("s_waitcnt vmcnt(0)")
            flagchk()
            p.end()
            A.label(sk)
            fine(A, "b1")
            A(f"s_add_u32 s{SFU[l]}, s{SFU[l]}, 4")
            if l == 0: A(f"s_cmp_ge_u32 s{S0}, {LY.LAG}")
            else: A(f"s_cmp_lt_u32 s{S0}, 63")
            A(f"s_cselect_b32 s{SALT}, 1, 0"); A(f"s_cselect_b32 s{SFL}, s{SFU[o]}, s{SFU[l]}")
            ureg = lambda hh, ct: a(UREG + (hh * 2 + ct) * 4, 4)
            pxl = lambda hh: f"buffer_load_dwordx4 {v(PX+hh*4,4)}, v6, s[32:35], s{SPC[l]} offen offset:{hh*512} sc1"
            pround = [f"buffer_load_dwordx4 {v(PM,4)}, v7, s[32:35], s{SPC[l]} offen sc1"] + [pxl(hh) for hh in range(4)]
            uls = lambda sb: [f"buffer_load_dwordx4 {ureg(hh,ct)}, v8, s[32:35], s{sb+ct} offen offset:{hh*1024} sc1" for hh in range(4) for ct in range(2)]
            vl = ([] if UEARLY else uls(SU[l])) + flagloads + mloads(o)
            pos = [(20 if UEARLY else 2) + USTEP * q for q in range(len(vl))]
            pos += [56 - PSTEP * (5 - q) for q in range(5)]
            if UEARLY:
                A(f"s_cmp_eq_u32 s85, 1"); ue = A.new("ue"); A(f"s_cbranch_scc1 {ue}")
                for t in uls(SU[l]): A(t)
                A.label(ue)
                A(f"s_add_u32 s{SU[l]}, s{SU[l]}, {448*1024}"); A(f"s_add_u32 s{SU[l]+1}, s{SU[l]+1}, {448*1024}")
                A(f"s_cmp_eq_u32 s{SALT}, 1"); A(f"s_cselect_b32 s86, s{SU[o]}, s{SU[l]}"); A(f"s_cselect_b32 s87, s{SU[o]+1}, s{SU[l]+1}")
            w_smf(A, MR, WACC, WBUF, wreg, IDX, 3, vl + pround, pos)
            for t in wb0: A(t)
            for n in range(8):
                r = WACC + n*4
                A(f"v_add_f32 v{r}, v{r}, v{r+1}"); A(f"v_add_f32 v{r+2}, v{r+2}, v{r+3}")
            for n in range(8):
                hh, ct = n >> 1, n & 1
                A(f"v_cvt_pk_bf16_f32 v{WP+ct*4+hh}, v{WACC+n*4}, v{WACC+n*4+2}")
            na = A.new("na")
            A(f"s_cmp_eq_u32 s{SALT}, 0"); A(f"s_cbranch_scc1 {na}")
            A("s_waitcnt vmcnt(5)")
            mstage(o, 24, True)
            A.label(na)
            nxt = A.new("cbnext"); pok = A.new("pok")
            stamp(A, 1, 9); fine(A, "b2")
            A("s_waitcnt vmcnt(3)")
            pchk = chk_tree(A, list(range(PM, PM+4)) + list(range(PX, PX+4)), 9)
            for t in pchk: A(t)
            A(f"s_cbranch_vccz {pok}")
            p = Poll(A, 22); p.begin()
            for t in pround: A(t)
            A("s_waitcnt vmcnt(3)")
            for t in pchk: A(t)
            p.end()
            A.label(pok)
            stamp(A, 2, 9); fine(A, "b3")
            for ct in range(2): A(f"{MM} {v(D+ct*4,4)}, {v(WP+ct*4,4)}, {v(PM,4)}, 0")
            for ct in range(2): A(f"{MM} {v(D+ct*4,4)}, {ureg(0,ct)}, {v(PX,4)}, {v(D+ct*4,4)}")
            A("s_waitcnt vmcnt(0)")
            for t in chk_tree(A, range(PX+4, PX+16), 9): A(t)
            rl, bl = A.new("rt"), A.new("bk")
            A(f"s_cbranch_vccnz {rl}"); A.label(bl)
            for hh in range(1, 4):
                for ct in range(2): A(f"{MM} {v(D+ct*4,4)}, {ureg(hh,ct)}, {v(PX+hh*4,4)}, {v(D+ct*4,4)}")
            for t in zero[:6]: A(t)
            fine(A, "b4")
            for ct in range(2): A(f"ds_write_b128 v11, {v(D+ct*4,4)} offset:{l*8192 + ct*1024}")
            if UEARLY:
                nu = A.new("nu")
                A(f"v_cmp_ne_u32 vcc, 1, v{FLG}"); A("s_mov_b32 s85, 0"); A(f"s_cbranch_vccnz {nu}")
                A("s_mov_b32 s85, 1")
                for t in uls(86)[:UEARLY - 1]: A(t)
                A.label(nu)
            for t in zero[6:16]: A(t)
            A("s_waitcnt lgkmcnt(0)"); fine(A, "b5"); A("s_barrier"); fine(A, "b6")
            T = PX
            A(f"ds_read2st64_b64 {v(T,4)}, v12 offset0:{16*l} offset1:{16*l+4}")
            A(f"ds_read2st64_b64 {v(T+4,4)}, v12 offset0:{16*l+8} offset1:{16*l+12}")
            for t in zero[16:]: A(t)
            A("s_waitcnt lgkmcnt(0)")
            A(f"v_pk_add_f32 {v(T,2)}, {v(T,2)}, {v(T+2,2)}")
            A(f"v_pk_add_f32 {v(T+4,2)}, {v(T+4,2)}, {v(T+6,2)}")
            A(f"v_pk_add_f32 {v(T,2)}, {v(T,2)}, {v(T+4,2)}")
            A(f"v_cvt_pk_bf16_f32 v{T}, v{T}, v{T+1}")
            A(f"v_min_u32 v{T}, -2, v{T}")
            A(f"buffer_store_dword v{T}, v14, s[32:35], s{SMS[l]} offen{SF}")
            stamp(A, 3, 9); fine(A, "b7")
            if UEARLY:
                nu = A.new("nu")
                A("s_cmp_eq_u32 s85, 0"); A(f"s_cbranch_scc1 {nu}")
                for t in uls(86)[UEARLY - 1:]: A(t)
                A.label(nu)
            stamp_flush(A, 80)
            A.label(nxt)
            A(f"s_mov_b32 s{SPRE}, s{SALT}")
            A(f"s_add_u32 s{SMS[l]}, s{SMS[l]}, 7168")
            A(f"s_add_u32 s{SPC[l]}, s{SPC[l]}, 10240");
            if not UEARLY:
                A(f"s_add_u32 s{SU[l]}, s{SU[l]}, {448*1024}"); A(f"s_add_u32 s{SU[l]+1}, s{SU[l]+1}, {448*1024}")
            A(f"s_add_u32 s{SS_}, s{SS_}, 1")
            A(f"s_cmp_eq_u32 s{SALT}, 1"); A(f"s_cbranch_scc1 {tops[o]}")
            A(f"s_cmp_lt_u32 s{SS_}, 63"); A(f"s_cbranch_scc1 {tops[l]}")
            A("s_endpgm")
            A.label(rl)
            if DIAG: A("s_add_u32 s57, s57, 1")
            p = Poll(A, 23); p.begin()
            for hh in range(1, 4): A(pxl(hh))
            A("s_waitcnt vmcnt(0)")
            for t in chk_tree(A, range(PX+4, PX+16), 9): A(t)
            p.end()
            A(f"s_branch {bl}")

def touch_lines(A, vaddr, vd, soff, n):
    for q in range(n):
        A(f"buffer_load_dword v{vd}, v{vaddr}, s[32:35], s{soff} offen")
        if q < n - 1: A(f"s_add_u32 s{soff}, s{soff}, 8192")

def chainR(A):
    wait_all_registered(A, 4, True)
    A(f"s_cmp_eq_u32 s{SRANK}, 31"); A("s_cbranch_scc1 r_chainG")
    A(f"s_lshl_b32 s45, s{SW}, 11"); A("v_add_u32 v3, s45, v2")
    A(f"s_cmp_eq_u32 s{SW}, 3"); A("s_cselect_b32 s44, 0, 1024"); A("v_add_u32 v4, s44, v3")
    A("v_lshrrev_b32 v8, 4, v1"); A("v_lshlrev_b32 v8, 8, v8"); A("v_and_b32 v9, 7, v1"); A("v_lshl_add_u32 v8, v9, 5, v8")
    A("v_bfe_u32 v9, v1, 3, 1"); A("v_lshl_add_u32 v8, v9, 3, v8"); A("v_add_u32 v8, s45, v8"); A("v_add_u32 v9, s44, v8")
    A(f"s_mov_b32 s{SLY}, 0"); A(f"s_mov_b32 s{SSG}, 0")
    top = A.new("rr"); A.label(top)
    next_phase(A, SLY, SSG, SNL, SNS)
    A(f"s_mov_b32 s{SLY}, s{SNL}"); A(f"s_mov_b32 s{SSG}, s{SNS}")
    A(f"s_cmp_ge_u32 s{SSG}, 64"); A("s_cbranch_scc1 k1_exit")
    A(f"s_cmp_eq_u32 s{SSG}, 0"); A(f"s_cbranch_scc1 {top}")
    ls_off(A, 60, SLY, SSG, 7168, LY.MS); A(f"s_add_u32 s61, s60, {LY.MB - LY.MS}")
    p = Poll(A, 70); p.begin()
    A("buffer_load_dwordx4 v[12:15], v3, s[32:35], s60 offen sc1"); A("buffer_load_dwordx4 v[16:19], v4, s[32:35], s60 offen sc1")
    A("s_waitcnt vmcnt(0)")
    for t in chk_tree(A, range(12, 20), 10): A(t)
    p.end()
    A("ds_write_b128 v3, v[12:15]"); A("ds_write_b128 v4, v[16:19]")
    A("ds_read2_b32 v[20:21], v8 offset0:0 offset1:4"); A("ds_read2_b32 v[22:23], v8 offset0:1 offset1:5")
    A("ds_read2_b32 v[24:25], v9 offset0:0 offset1:4"); A("ds_read2_b32 v[26:27], v9 offset0:1 offset1:5")
    A("s_waitcnt lgkmcnt(2)"); A("buffer_store_dwordx4 v[20:23], v3, s[32:35], s61 offen sc1")
    A("s_waitcnt lgkmcnt(0)"); A("buffer_store_dwordx4 v[24:27], v4, s[32:35], s61 offen sc1")
    A(f"s_branch {top}")
    A.label("r_chainG")
    A("v_min_u32 v3, 27, v1"); A("v_lshlrev_b32 v3, 7, v3"); A("v_lshlrev_b32 v4, 7, v1"); A("v_mov_b32 v8, 0"); A("v_mov_b32 v9, 1")
    A("s_mov_b32 s60, 0")
    A(f"s_lshl_b32 s62, s{SW}, 8"); A(f"s_add_u32 s62, s62, {LY.GO}")
    def go_store():
        sl = A.new("gs"); dn = A.new("gd")
        A("s_mov_b64 exec, 1")
        A(f"s_cmp_eq_u32 s{SFAST}, 1"); A(f"s_cbranch_scc0 {sl}")
        A("buffer_store_dword v9, v8, s[32:35], s62 offen"); A(f"s_branch {dn}")
        A.label(sl); A("buffer_store_dword v9, v8, s[32:35], s62 offen sc1")
        A.label(dn); A("s_mov_b64 exec, -1"); A("s_add_u32 s62, s62, 4")
    A(f"s_cmp_ge_u32 s{SW}, 2"); A("s_cbranch_scc1 r_chainX")
    A(f"s_mul_i32 s61, s{SW}, {64*3584}"); A(f"s_add_u32 s61, s61, {LY.FU}")
    top = A.new("gu"); A.label(top)
    p = Poll(A, 71, sleep=2); p.begin()
    A("buffer_load_dwordx4 v[12:15], v3, s[32:35], s61 offen sc1"); A("s_waitcnt vmcnt(0)")
    A("v_and_b32 v12, v12, v13"); A("v_and_b32 v14, v14, v15"); A("v_and_b32 v12, v12, v14"); A("v_cmp_ne_u32 vcc, 1, v12")
    p.end()
    go_store()
    A("s_add_u32 s61, s61, 3584"); A("s_add_u32 s60, s60, 1"); A("s_cmp_lt_u32 s60, 63"); A(f"s_cbranch_scc1 {top}")
    A("s_endpgm")
    A.label("r_chainX")
    A(f"s_cmp_eq_u32 s{SW}, 3"); A("s_cbranch_scc1 r_chainT")
    A(f"s_mov_b32 s61, {LY.FX}"); A(f"s_mov_b32 s63, {LY.XS + 64*28672}")
    top = A.new("gx"); A.label(top)
    p = Poll(A, 72, sleep=2); p.begin()
    A("buffer_load_dword v12, v3, s[32:35], s61 offen sc1"); A("s_waitcnt vmcnt(0)"); A("v_cmp_ne_u32 vcc, 1, v12")
    p.end()
    A("s_mov_b32 s64, s63"); touch_lines(A, 4, 13, 64, 4)
    A("s_waitcnt vmcnt(0)")
    go_store()
    A("s_add_u32 s61, s61, 3584"); A("s_add_u32 s63, s63, 28672"); A("s_add_u32 s60, s60, 1"); A("s_cmp_lt_u32 s60, 63"); A(f"s_cbranch_scc1 {top}")
    A("s_endpgm")
    A.label("r_chainT")
    A(f"s_mov_b32 s63, {LY.XS + 28672}"); A(f"s_mov_b32 s61, {LY.MS}")
    A("s_mov_b32 s64, s63"); touch_lines(A, 4, 13, 64, 8); A(f"s_add_u32 s63, s63, {2*28672}")
    top = A.new("gt"); A.label(top)
    p = Poll(A, 73, sleep=8); p.begin()
    A("buffer_load_dword v12, v8, s[32:35], s61 offen sc1"); A("s_waitcnt vmcnt(0)"); A("v_cmp_eq_u32 vcc, -1, v12")
    p.end()
    A("s_mov_b32 s64, s63"); touch_lines(A, 4, 13, 64, 4)
    A("s_add_u32 s61, s61, 7168"); A("s_add_u32 s63, s63, 28672"); A("s_add_u32 s60, s60, 1"); A("s_cmp_lt_u32 s60, 60"); A(f"s_cbranch_scc1 {top}")
    A("s_endpgm")

def gen_k1(A, name, roles):
    kernel_head(A, name)
    dispatch(A)
    A("s_mov_b32 s76, 4096"); A("s_mov_b32 s77, 8192"); A("s_mov_b32 s57, 0")
    A(f"s_cmp_lt_u32 s{SROLE}, 16"); A("s_cbranch_scc1 r_chainA")
    A(f"s_cmp_lt_u32 s{SROLE}, 30"); A("s_cbranch_scc1 r_chainB")
    A(f"s_cmp_lt_u32 s{SROLE}, 32"); A("s_cbranch_scc1 r_chainR")
    for lo, hi, lab in roles:
        A(f"s_cmp_lt_u32 s{SROLE}, {hi}"); A(f"s_cbranch_scc1 {lab}")
    A.label("k1_exit")
    A("s_endpgm")
    A.label("k1_fail")
    A(f"s_lshl_b32 s55, s{SROLE}, 16"); A(f"s_lshl_b32 s56, s{SK}, 8"); A("s_or_b32 s54, s54, s55"); A("s_or_b32 s54, s54, s56")
    A("v_mov_b32 v3, s54"); A("s_and_b32 s55, s54, 15"); A("s_lshl_b32 s55, s55, 2"); A("v_mov_b32 v4, s55")
    A("buffer_store_dword v3, v4, s[36:39], 0 offen")
    A("s_endpgm")
    A.label("r_chainA"); chainA(A)
    A.label("r_chainB"); chainB(A)
    A.label("r_chainR"); chainR(A)
    return kernel_desc(name, 512, 256)
```

```python
import os
KB = 1024
LAG = int(os.environ.get("LAG", "7"))
NSEG = 64
KEND = 63 + LAG
off = 0
def alloc(n):
    global off
    o = off; off += (n + 4095) // 4096 * 4096; return o
AF  = alloc(6272 * KB)
BF  = alloc(6272 * KB)
GF  = alloc(1568 * KB)
UFW = alloc(1568 * KB)
DF  = alloc(1568 * KB)
XS  = alloc(2 * 64 * 28 * KB)
U   = alloc(2 * 64 * 448 * KB)
MAXSTEP = 128
R_PT, R_X1B, R_X2B, R_ST, R_HH = 0, 80 * KB, 136 * KB, 164 * KB, 176 * KB
RS = 400 * KB
NREC = 64
NGRP = (NREC + 7) // 8
S1_BEG = alloc(NGRP * 8 * RS)
S1_END = off
S0_BEG = off
MS  = alloc(2 * 64 * 7 * KB)
MB  = alloc(2 * 64 * 7 * KB)
PC  = alloc(2 * 64 * 10 * KB)
SENT_END = off
FL = off
FU  = alloc(2 * 64 * 28 * 128)
FX  = alloc(64 * 28 * 128)
GO  = alloc(3 * 256)
CNT = alloc(32 * 128)
FL_END = off
DBG = alloc(256 * 128 * 128)
WS_USED = off
WS_BYTES = 268435456
SENT = 0xFFFFFFFF
LOG2E = 1.4426950408889634
def col(t, i): return 32 * (t >> 1) + 8 * (i >> 2) + 4 * (t & 1) + (i & 3)
if __name__ == "__main__":
    for k, x in list(globals().items()):
        if isinstance(x, int): print(k, x, hex(x))
```

```python
import os
from gen_common import *
from gen_main import *
import gen_main as GM
LATEPRE = int(os.environ.get('LATEPRE', '0'))
SL = 58
NEG = -1e9 * LY.LOG2E
NFILL = GM.NFILL

def task_off(A, sd, sseg, bytes_per, base, use_layer=True):
    if use_layer:
        A(f"s_lshl_b32 s{sd}, s{SL}, 6"); A(f"s_add_u32 s{sd}, s{sd}, s{sseg}"); A(f"s_mul_i32 s{sd}, s{sd}, {bytes_per}")
    else:
        A(f"s_mul_i32 s{sd}, s{sseg}, {bytes_per}")
    A(f"s_add_u32 s{sd}, s{sd}, {base}")

def rec_off(A, sd, sseg, field, per_layer=0, step=False):
    if step:
        A(f"s_mul_i32 s{sd}, s{SL}, {LY.LAG}"); A(f"s_add_u32 s{sd}, s{sd}, s{sseg}"); A(f"s_mul_i32 s{sd}, s{sd}, {LY.RS}")
    else:
        A(f"s_mul_i32 s{sd}, s{sseg}, {LY.RS}")
    if per_layer:
        A(f"s_mul_i32 s43, s{SL}, {per_layer}") if False else None
        A(f"s_cmp_eq_u32 s{SL}, 0"); A(f"s_cselect_b32 s47, 0, {per_layer}"); A(f"s_add_u32 s{sd}, s{sd}, s47")
    A(f"s_add_u32 s{sd}, s{sd}, {LY.S1_BEG + field}")

def step_off(A, sd, sseg, bytes_per, base):
    A(f"s_mul_i32 s{sd}, s{SL}, {LY.LAG}"); A(f"s_add_u32 s{sd}, s{sd}, s{sseg}"); A(f"s_mul_i32 s{sd}, s{sd}, {bytes_per}")
    A(f"s_add_u32 s{sd}, s{sd}, {base}")

def wait_ready(A, vt, code, sseg, stride=1):
    sk = A.new("rdy")
    A(f"s_and_b32 s44, s{sseg}, 7"); A(f"s_cmp_ge_u32 s44, {stride}"); A(f"s_cbranch_scc1 {sk}")
    A(f"s_lshr_b32 s44, s{sseg}, 3"); A("s_lshl_b32 s44, s44, 7"); A(f"s_add_u32 s44, s44, {LY.CNT + 17*128}")
    A(f"v_mov_b32 v{vt}, 0")
    p = Poll(A, code, sleep=8); p.begin()
    A(f"buffer_load_dword v{vt+1}, v{vt}, s[32:35], s44 offen sc1")
    A("s_waitcnt vmcnt(0)")
    A(f"v_cmp_ne_u32 vcc, {NFILL}, v{vt+1}")
    p.end()
    A.label(sk)

SAR = 59
def allready_load(vt): return f"buffer_load_dword v{vt}, off, s[32:35], s57 sc1"
def allready_init(A, vt):
    A(f"s_mov_b32 s{SAR}, 0"); A(f"s_mov_b32 s57, {LY.CNT + (17 + LY.NGRP - 1)*128}"); A(f"v_mov_b32 v{vt}, 0")
def boundary_guard(A, SS, vt, poison):
    ng = A.new("ng")
    A(f"v_readfirstlane_b32 s44, v{vt}"); A(f"s_cmp_eq_u32 s44, {NFILL}"); A(f"s_cbranch_scc1 {ng}")
    A(f"s_add_u32 s44, s{SS}, 1"); A("s_and_b32 s44, s44, 7"); A("s_cmp_eq_u32 s44, 0"); A(f"s_cbranch_scc0 {ng}_l")
    A("s_waitcnt vmcnt(0)"); A(f"v_mov_b32 v{poison}, -1")
    A.label(ng + "_l")
    A(allready_load(vt)); A("s_waitcnt vmcnt(0)")
    A.label(ng)

def loads7(A, ssrc, stmp, vwl, regs0, flags=" sc1"):
    A(f"s_add_u32 s{stmp}, s{ssrc}, 4096")
    for i in range(7):
        A(f"buffer_load_dwordx4 {v(regs0+i*4,4)}, v{vwl}, s[32:35], s{ssrc if i < 4 else stmp} offen offset:{(i%4)*1024}{flags}")

def xorsum(A, x, t):
    for op in ("v_permlane16_swap_b32", "v_permlane32_swap_b32"):
        A(f"v_mov_b32 v{t}, v{x}")
        A(f"{op} v{x}, v{t}")
        A(f"v_add_f32 v{x}, v{x}, v{t}")

def stat_addrs(A, vj, vg, va, va4, vmask, t):
    A(f"s_lshr_b32 s44, s{SW}, 1"); A("s_lshl_b32 s44, s44, 11")
    A(f"v_lshlrev_b32 v{va}, 7, v{vg}"); A(f"v_lshl_add_u32 v{va}, v{vj}, 3, v{va}"); A(f"v_add_u32 v{va}, s44, v{va}")
    A(f"v_add_u32 v{va4}, 1536, v{va}"); A(f"v_mov_b32 v{t}, {OOB}"); A(f"v_cmp_gt_u32 vcc, 2, v{vg}")
    A(f"v_cndmask_b32 v{va4}, v{t}, v{va4}, vcc")
    A(f"v_mov_b32 v{t}, 1.0"); A(f"v_mov_b32 v{vmask}, 0"); A(f"v_cndmask_b32 v{vmask}, v{vmask}, v{t}, vcc")

def stat_loads(A, R_, va, va4, sst):
    for q in range(3): A(f"buffer_load_dwordx2 {v(R_+2*q,2)}, v{va}, s[32:35], s{sst} offen offset:{q*512} sc1")
    A(f"buffer_load_dwordx2 {v(R_+6,2)}, v{va4}, s[32:35], s{sst} offen sc1")

def stat_combine(A, R_, vmask, T):
    A(f"v_add_f32 v{T}, v{R_}, v{R_+2}"); A(f"v_add_f32 v{T+1}, v{R_+4}, v{R_+6}"); A(f"v_add_f32 v{T}, v{T}, v{T+1}")
    xorsum(A, T, T+2)
    A(f"v_mul_f32 v{T}, {f32(1/14)}, v{T}")
    A(f"v_add_f32 v{T+1}, v{R_+1}, v{R_+3}"); A(f"v_add_f32 v{T+2}, v{R_+5}, v{R_+7}"); A(f"v_add_f32 v{T+1}, v{T+1}, v{T+2}")
    for q in range(4): A(f"v_sub_f32 v{R_+2*q}, v{R_+2*q}, v{T}")
    A(f"v_mul_f32 v{R_+6}, v{R_+6}, v{vmask}")
    A(f"v_mul_f32 v{T+2}, v{R_}, v{R_}")
    for q in range(1, 4): A(f"v_fmac_f32 v{T+2}, v{R_+2*q}, v{R_+2*q}")
    A(f"v_fmac_f32 v{T+1}, {f32(32.0)}, v{T+2}")
    xorsum(A, T+1, T+2)
    A(f"v_mov_b32 v{T+2}, {f32(1e-5)}")
    A(f"v_fmac_f32 v{T+2}, {f32(1/448)}, v{T+1}")
    A(f"v_rsq_f32 v{T+2}, v{T+2}")
    A(f"v_mul_f32 v{T+1}, v{T}, v{T+2}"); A(f"v_sub_f32 v{T+1}, 0, v{T+1}")
    A(f"v_mov_b32 v{T}, v{T+2}")

def checked_stage(A, ssrc, sst, vwl, STG, R_, va, va4, vmask, T, vtab, ldsbase, code, tchk):
    p = Poll(A, code, sleep=1); p.begin()
    stat_loads(A, R_, va, va4, sst)
    loads7(A, ssrc, 47, vwl, STG)
    A("s_waitcnt vmcnt(0)")
    for t in chk_tree(A, list(range(STG, STG+28)) + list(range(R_, R_+8)), tchk): A(t)
    p.end()
    for i in range(7): A(f"ds_write_b128 v{vwl}, {v(STG+i*4,4)} offset:{ldsbase+i*1024}")
    stat_combine(A, R_, vmask, T)
    A(f"ds_write_b32 v{vtab}, v{T}"); A(f"ds_write_b32 v{vtab}, v{T+1} offset:128")
    A("s_waitcnt lgkmcnt(0)"); A("s_barrier")

def lds_gemm(A, nk, nfr, rd, FB, mf, fill=(), every=2, start=1):
    fill = list(fill); cnt = 0
    buf = lambda kk, f: FB + ((kk % 3) * nfr + f) * 4
    for kk in range(min(2, nk)):
        for f in range(nfr): A(rd(kk, f, buf(kk, f)))
    for kk in range(nk):
        A(f"s_waitcnt lgkmcnt({nfr if kk + 1 < nk else 0})")
        for n, m in enumerate(mf(kk, [buf(kk, f) for f in range(nfr)])):
            A(m)
            if kk + 2 < nk and n < nfr: A(rd(kk + 2, n, buf(kk + 2, n)))
            cnt += 1
            if fill and cnt >= start and (cnt - start) % every == 0:
                x = fill.pop(0)
                for y in (x if isinstance(x, (list, tuple)) else [x]): A(y)
    return fill

def loads7_list(ssrc, stmp, vwl, regs0, flags=" sc1"):
    return [f"buffer_load_dwordx4 {v(regs0+i*4,4)}, v{vwl}, s[32:35], s{ssrc if i < 4 else stmp} offen offset:{(i%4)*1024}{flags}" for i in range(7)]

def stat_loads_list(R_, va, va4, sst):
    return [f"buffer_load_dwordx2 {v(R_+2*q,2)}, v{va}, s[32:35], s{sst} offen offset:{q*512} sc1" for q in range(3)] + \
           [f"buffer_load_dwordx2 {v(R_+6,2)}, v{va4}, s[32:35], s{sst} offen sc1"]

def staged_input(A, loads, nyoung, STG, R_, vwl, vmask, T, vtab, code, tchk, on_miss=None):
    ok = A.new("sok")
    regs_ = list(range(STG, STG+28)) + list(range(R_, R_+8))
    A(f"s_waitcnt vmcnt({nyoung})")
    for t in chk_tree(A, regs_, tchk): A(t)
    A(f"s_cbranch_vccz {ok}")
    if on_miss: on_miss()
    p = Poll(A, code); p.begin()
    for t in loads: A(t)
    A("s_waitcnt vmcnt(0)")
    for t in chk_tree(A, regs_, tchk): A(t)
    p.end()
    A.label(ok)
    for i in range(7): A(f"ds_write_b128 v{vwl}, {v(STG+i*4,4)} offset:{i*1024}")
    stat_combine(A, R_, vmask, T)
    A(f"ds_write_b32 v{vtab}, v{T}"); A(f"ds_write_b32 v{vtab}, v{T+1} offset:128")
    A("s_waitcnt lgkmcnt(0)"); A("s_barrier")

def sample_poll(A, vaddr, soff, vt, code):
    p = Poll(A, code); p.begin()
    A(f"buffer_load_dword v{vt}, v{vaddr}, s[32:35], s{soff} offen sc1")
    A("s_waitcnt vmcnt(0)")
    A(f"v_cmp_eq_u32 vcc, -1, v{vt}")
    p.end()

def sample_addr_staged(A, vd, st_rel, t):
    A(f"s_mul_i32 s44, s{SW}, 7168"); A(f"v_lshlrev_b32 v{vd}, 10, v1"); A(f"v_add_u32 v{vd}, s44, v{vd}")
    A(f"v_mov_b32 v{t}, {OOB}"); A("v_cmp_gt_u32 vcc, 7, v1"); A(f"v_cndmask_b32 v{vd}, v{t}, v{vd}, vcc")
    A(f"v_subrev_u32 v{t+1}, 32, v1"); A(f"v_cmp_lt_u32 vcc, 13, v{t+1}"); A(f"v_cndmask_b32 v{t+2}, 0, 2, vcc" if False else f"v_mov_b32 v{t+2}, 2")
    A(f"v_cndmask_b32 v{t+2}, 0, v{t+2}, vcc"); A(f"v_add_u32 v{t+2}, v{t+1}, v{t+2}"); A(f"v_lshlrev_b32 v{t+2}, 7, v{t+2}")
    A(f"v_add_u32 v{t+2}, {st_rel}, v{t+2}") if isinstance(st_rel, int) else A(f"v_add_u32 v{t+2}, {st_rel}, v{t+2}")
    A(f"v_cmp_gt_u32 vcc, 28, v{t+1}"); A(f"v_cndmask_b32 v{vd}, v{vd}, v{t+2}, vcc")

class Rec:
    def __init__(self): self.l = []
    def __call__(self, x): self.l.append(x)

def stat_addrs2(A, vj, vg, va, va4, vmask, t):
    A(f"v_lshlrev_b32 v{va}, 7, v{vg}"); A(f"v_lshl_add_u32 v{va}, v{vj}, 3, v{va}")
    A(f"v_add_u32 v{va4}, 1536, v{va}"); A(f"v_mov_b32 v{t}, {OOB}"); A(f"v_cmp_gt_u32 vcc, 2, v{vg}")
    A(f"v_cndmask_b32 v{va4}, v{t}, v{va4}, vcc")
    A(f"v_mov_b32 v{t}, 1.0"); A(f"v_mov_b32 v{vmask}, 0"); A(f"v_cndmask_b32 v{vmask}, v{vmask}, v{t}, vcc")

def stat_loads2(R_, va, va4, sst):
    out = []
    for tt in range(2):
        out += [f"buffer_load_dwordx2 {v(R_+tt*8+2*q,2)}, v{va}, s[32:35], s{sst} offen offset:{tt*2048 + q*512} sc1" for q in range(3)]
        out += [f"buffer_load_dwordx2 {v(R_+tt*8+6,2)}, v{va4}, s[32:35], s{sst} offen offset:{tt*2048} sc1"]
    return out

def staged_input2(A, loads, nyoung, STG, R_, RC, vwl, code, tchk, on_miss, vsmp, ssrc):
    ok = A.new("sok")
    regs_ = list(range(STG, STG+28)) + list(range(R_, R_+16))
    A(f"s_waitcnt vmcnt({nyoung})")
    for t in chk_tree(A, regs_, tchk): A(t)
    A(f"s_cbranch_vccz {ok}")
    if on_miss: on_miss()
    sample_poll(A, vsmp, ssrc, tchk, code + 2)
    p = Poll(A, code); p.begin()
    for t in loads: A(t)
    A("s_waitcnt vmcnt(0)")
    for t in chk_tree(A, regs_, tchk): A(t)
    p.end()
    A.label(ok)
    for i in range(7):
        A(f"ds_write_b128 v{vwl}, {v(STG+i*4,4)} offset:{i*1024}")
        for q in range(2*i, min(16, 2*i + (2 if i < 6 else 4))): A(f"v_mov_b32 v{RC+q}, v{R_+q}")
    A("s_waitcnt lgkmcnt(0)"); A("s_barrier")

def unpack8(A, src, dst):
    for q in range(4):
        A(f"v_lshlrev_b32 v{dst+2*q}, 16, v{src+q}"); A(f"v_and_b32 v{dst+2*q+1}, 0xffff0000, v{src+q}")

def final_addrs(A, sj, vj, vg, vred_w, vred_r, vfrag, vrec, vrow, lred, t):
    A(f"s_lshl_b32 s45, s{SW}, 12"); A(f"s_add_u32 s45, s45, {lred}"); A(f"v_add_u32 v{vred_w}, s45, v2")
    A(f"s_and_b32 s46, s{SW}, 1")
    A(f"s_lshl_b32 s45, s46, 10"); A(f"s_add_u32 s45, s45, {lred}"); A(f"v_add_u32 v{vred_r}, s45, v2")
    A(f"s_mul_i32 s45, s46, 14"); A(f"s_add_u32 s45, s45, s{sj}"); A("s_lshl_b32 s45, s45, 10"); A(f"v_add_u32 v{vfrag}, s45, v2")
    A(f"s_lshl_b32 s45, s46, 11"); A(f"s_lshl_b32 s44, s{sj}, 7"); A("s_add_u32 s45, s45, s44")
    A(f"v_lshlrev_b32 v{vrec}, 3, v{vj}"); A(f"v_add_u32 v{vrec}, s45, v{vrec}")
    A(f"v_mov_b32 v{t}, {OOB}"); A(f"v_cmp_eq_u32 vcc, 0, v{vg}"); A(f"v_cndmask_b32 v{vrec}, v{t}, v{vrec}, vcc")
    A(f"s_lshl_b32 s45, s46, 4"); A(f"v_add_u32 v{vrow}, s45, v{vj}"); A(f"v_mul_u32_u24 v{vrow}, 896, v{vrow}")
    A(f"v_lshl_add_u32 v{vrow}, v{vg}, 4, v{vrow}"); A(f"s_lshl_b32 s45, s{sj}, 6"); A(f"v_add_u32 v{vrow}, s45, v{vrow}")

def final_sum(A, vred_r, PR, RES, Y):
    for ct in range(2):
        for w in range(4): A(f"ds_read_b128 {v(PR+(ct*4+w)*4,4)}, v{vred_r} offset:{w*4096 + ct*2048}")
    unpack8(A, RES, Y)
    for ct in range(2):
        A(f"s_waitcnt lgkmcnt({4 - 4*ct})")
        b = PR + ct * 16
        for r in (0, 2):
            A(f"v_pk_add_f32 {v(b+r,2)}, {v(b+r,2)}, {v(b+4+r,2)}"); A(f"v_pk_add_f32 {v(b+8+r,2)}, {v(b+8+r,2)}, {v(b+12+r,2)}")
        for r in (0, 2): A(f"v_pk_add_f32 {v(b+r,2)}, {v(b+r,2)}, {v(b+8+r,2)}")
        for r in (0, 2): A(f"v_pk_add_f32 {v(Y+ct*4+r,2)}, {v(Y+ct*4+r,2)}, {v(b+r,2)}")

def final_publish(A, Y, T, vfrag, vrec, sdst, sst):
    for q in range(4): A(f"v_cvt_pk_bf16_f32 v{T+4+q}, v{Y+2*q}, v{Y+2*q+1}")
    for q in range(4): A(f"v_min_u32 v{T+4+q}, -2, v{T+4+q}")
    A(f"buffer_store_dwordx4 {v(T+4,4)}, v{vfrag}, s[32:35], s{sdst} offen sc1")
    A(f"v_add_f32 v{T}, v{Y}, v{Y+1}"); A(f"v_add_f32 v{T+1}, v{Y+2}, v{Y+3}")
    A(f"v_add_f32 v{T+2}, v{Y+4}, v{Y+5}"); A(f"v_add_f32 v{T+3}, v{Y+6}, v{Y+7}")
    A(f"v_add_f32 v{T}, v{T}, v{T+1}"); A(f"v_add_f32 v{T+2}, v{T+2}, v{T+3}"); A(f"v_add_f32 v{T}, v{T}, v{T+2}")
    xorsum(A, T, T+2)
    A(f"v_mul_f32 v{T}, {f32(1/32)}, v{T}")
    for r in range(8): A(f"v_sub_f32 v{Y+r}, v{Y+r}, v{T}")
    A(f"v_mul_f32 v{T+1}, v{Y}, v{Y}"); A(f"v_mul_f32 v{T+3}, v{Y+1}, v{Y+1}")
    for r in range(2, 8, 2):
        A(f"v_fmac_f32 v{T+1}, v{Y+r}, v{Y+r}"); A(f"v_fmac_f32 v{T+3}, v{Y+r+1}, v{Y+r+1}")
    A(f"v_add_f32 v{T+1}, v{T+1}, v{T+3}")
    xorsum(A, T+1, T+2)
    A(f"v_min_u32 v{T}, -2, v{T}"); A(f"v_min_u32 v{T+1}, -2, v{T+1}")
    A(f"buffer_store_dwordx2 {v(T,2)}, v{vrec}, s[32:35], s{sst} offen sc1")

def pack2(A, a0, b0):
    A(f"v_cvt_pk_bf16_f32 v{a0}, v{a0}, v{a0+1}"); A(f"v_cvt_pk_bf16_f32 v{a0+1}, v{a0+2}, v{a0+3}")
    A(f"v_cvt_pk_bf16_f32 v{a0+2}, v{b0}, v{b0+1}"); A(f"v_cvt_pk_bf16_f32 v{a0+3}, v{b0+2}, v{b0+3}")

def roleFill(A):
    A(f"s_lshr_b32 s44, s{SROLE}, 5"); A("s_sub_u32 s44, s44, 3"); A("s_lshl_b32 s44, s44, 2")
    A(f"s_add_u32 s44, s44, s{SRANK}"); A("s_sub_u32 s44, s44, 28")
    A("s_lshl_b32 s60, s44, 12"); A(f"s_add_u32 s60, s60, {LY.S1_BEG}")
    A(f"s_mov_b32 s61, {LY.S1_BEG + 8*LY.RS}"); A(f"s_mov_b32 s62, {LY.CNT + 17*128}")
    A("v_lshlrev_b32 v3, 4, v0")
    for r in range(4): A(f"v_mov_b32 v{4+r}, -1")
    A("v_mov_b32 v8, 0"); A("v_mov_b32 v9, 1")
    G = A.new("fgrp"); A.label(G)
    L = A.new("fill"); A.label(L)
    A("buffer_store_dwordx4 v[4:7], v3, s[32:35], s60 offen sc1")
    A(f"s_add_u32 s60, s60, {NFILL*4096}"); A("s_cmp_lt_u32 s60, s61"); A(f"s_cbranch_scc1 {L}")
    A("s_waitcnt vmcnt(0)"); A("s_barrier")
    sk = A.new("fd")
    A(f"s_cmp_lg_u32 s{SW}, 0"); A(f"s_cbranch_scc1 {sk}")
    A("s_mov_b64 exec, 1")
    A("buffer_atomic_add v9, v8, s[32:35], s62 offen sc1")
    A("s_mov_b64 exec, -1")
    A.label(sk)
    A(f"s_add_u32 s61, s61, {8*LY.RS}"); A("s_add_u32 s62, s62, 128")
    A(f"s_cmp_le_u32 s61, {LY.S1_END}"); A(f"s_cbranch_scc1 {G}")
    event(A, SROLE, 4, 10)
    A("s_endpgm")

def roleTA(A):
    SM, ST_, SH, SOWN, SMK = 60, 74, 59, 82, 86
    SS, SA, SB = 94, 95, 96
    ACC, FB, SC = 16, 72, 96
    acc = lambda j, tt: ACC + (j * 2 + tt) * 4
    LXS, LP = 0, 28672
    A(f"s_lshr_b32 s{SL}, s{SROLE}, 5"); A(f"s_sub_u32 s{SL}, s{SL}, 1")
    A(f"s_and_b32 s{SH}, s{SRANK}, 15")
    a_slots_setup(A, SM, ST_, SH)
    for i in range(4): A(f"s_mov_b32 s{SOWN+i}, s{SM+10+i}")
    for i in range(14): A(f"s_mov_b32 s{SM+i}, {i*1024}")
    load_A_weights(A, SM, ST_, wregA)
    A(f"s_lshl_b32 s97, s46, 3")
    A(f"s_mov_b32 s98, s46")
    A("v_and_b32 v9, 15, v1"); A("v_lshrrev_b32 v10, 4, v1")
    A(f"s_mul_i32 s45, s{SW}, 7168"); A("v_add_u32 v3, s45, v2")
    A(f"s_mul_i32 s45, s{SW}, 6656"); A(f"s_add_u32 s45, s45, {LP}")
    A("v_mul_u32_u24 v4, 208, v9"); A("v_lshl_add_u32 v4, v10, 4, v4"); A("v_add_u32 v4, s45, v4")
    A("v_lshrrev_b32 v9, 3, v0"); A("v_and_b32 v10, 7, v0")
    A("v_lshrrev_b32 v11, 1, v10"); A("v_lshlrev_b32 v11, 2, v11"); A("v_and_b32 v12, 1, v10"); A("v_lshl_add_u32 v11, v12, 4, v11")
    for r in range(4):
        A(f"v_add_u32 v12, {r}, v11"); A(f"v_cmp_le_u32 s[{SMK+2*r}:{SMK+2*r+1}], v12, v9")
    A("v_mul_u32_u24 v12, 208, v9"); A(f"v_add_u32 v12, {LP}, v12")
    A("v_lshl_add_u32 v5, v11, 2, v12"); A("v_add_u32 v5, 64, v5")
    A("v_lshl_add_u32 v6, v10, 2, v12")
    A("v_and_b32 v11, 15, v9"); A("v_lshrrev_b32 v12, 4, v9")
    A("v_lshrrev_b32 v7, 1, v10"); A("v_lshl_add_u32 v7, v7, 4, v11"); A("v_lshlrev_b32 v7, 4, v7")
    A("v_lshl_add_u32 v7, v12, 10, v7"); A("v_and_b32 v13, 1, v10"); A("v_lshl_add_u32 v7, v13, 3, v7")
    A(f"s_lshl_b32 s45, s{SH}, 11"); A("v_add_u32 v7, s45, v7")
    A("v_lshrrev_b32 v8, 1, v10"); A("v_lshl_add_u32 v8, v8, 4, v11"); A("v_lshlrev_b32 v8, 2, v8")
    A("v_lshl_add_u32 v8, v12, 8, v8")
    A(f"s_lshl_b32 s45, s{SH}, 9"); A("s_add_u32 s45, s45, 32768"); A("v_add_u32 v8, s45, v8")
    A("v_cmp_eq_u32 vcc, 0, v13"); A(f"v_mov_b32 v12, {OOB}"); A("v_cndmask_b32 v8, v12, v8, vcc")
    A("v_and_b32 v9, 15, v1"); A("v_lshrrev_b32 v10, 4, v1")
    A("v_lshl_add_u32 v15, v10, 3, v9"); A("v_lshlrev_b32 v15, 4, v15"); A("v_cmp_gt_u32 vcc, 8, v9"); A("v_cndmask_b32 v15, v12, v15, vcc")
    for i in range(4): A(f"s_lshr_b32 s{74+i}, s{SOWN+i}, 1")
    A("v_min_u32 v13, 27, v1"); A("v_lshlrev_b32 v13, 7, v13")
    A(f"v_mov_b32 v14, {f32(NEG)}")
    A(f"s_lshr_b32 s{SS}, s{SRANK}, 4")
    event(A, SROLE, 1, 10)
    top = A.new("ta"); A.label(top)
    A(f"s_mov_b32 s{SK}, s{SS}")
    stampB(A, 0, 116)
    nf = A.new("nf")
    A(f"s_cmp_eq_u32 s{SL}, 0"); A(f"s_cbranch_scc1 {nf}")
    task_off(A, SA, SS, 3584, LY.FX, False)
    p = Poll(A, 30, sleep=2); p.begin()
    A(f"buffer_load_dword v9, v13, s[32:35], s{SA} offen sc1"); A("s_waitcnt vmcnt(0)"); A("v_cmp_ne_u32 vcc, 1, v9")
    p.end()
    A.label(nf)
    stampB(A, 1, 116)
    task_off(A, SA, SS, 28672, LY.XS)
    loads7(A, SA, 47, 3, ACC)
    for i in range(7):
        A(f"s_waitcnt vmcnt({6-i})"); A(f"ds_write_b128 v3, {v(ACC+i*4,4)} offset:{LXS+i*1024}")
    A("s_waitcnt lgkmcnt(0)"); A("s_barrier")
    stampB(A, 2, 116)
    lds_gemm(A, 14, 2, lambda kk, f, d: f"ds_read_b128 {v(d,4)}, v2 offset:{LXS + f*14336 + kk*1024}", FB,
             lambda kk, fr: [f"{MM} {v(acc(j,tt),4)}, {wregA(j,kk)}, {v(fr[tt],4)}, {v(acc(j,tt),4) if kk else 0}" for j in range(7) for tt in range(2)])
    def pack(q, tt):
        a0 = acc(2*q, tt)
        if q < 3: pack2(A, a0, acc(2*q+1, tt))
        else:
            A(f"v_cvt_pk_bf16_f32 v{a0}, v{a0}, v{a0+1}"); A(f"v_cvt_pk_bf16_f32 v{a0+1}, v{a0+2}, v{a0+3}")
    sc = lambda kt, tt: SC + {(0,0): 0, (1,0): 4, (0,1): 8, (1,1): 12, (2,1): 16}[(kt, tt)]
    def keyread(ks):
        b = FB + 16 - (ks & 1) * 16
        A(f"v_add_u32 v9, s{SOWN+ks}, v2")
        if ks == 3: A("v_add_u32 v9, s97, v9")
        for tt in range(2):
            if ks < 3: A(f"ds_read_b128 {v(b+tt*4,4)}, v9 offset:{LXS + tt*14336}")
            else: A(f"ds_read_b64 {v(b+tt*4,2)}, v9 offset:{LXS + tt*14336}")
    keyread(0)
    for q in range(4):
        for tt in range(2): pack(q, tt)
    for ks in range(4):
        A("s_waitcnt lgkmcnt(0)")
        if ks < 3: keyread(ks + 1)
        b = FB + 16 - (ks & 1) * 16; w = 4 if ks < 3 else 2; op = MM if ks < 3 else MM16
        for (kt, tt) in ((1,0), (1,1), (2,1)):
            A(f"{op} {v(sc(kt,tt),4)}, {v(b+(kt-1)*4,w)}, {v(acc(2*ks,tt),w)}, {v(sc(kt,tt),4) if ks else 0}")
    for (kt, tt) in ((1,0), (1,1), (2,1)):
        A(f"ds_write_b128 v4, {v(sc(kt,tt),4)} offset:{tt*16*208 + kt*64}")
    stampB(A, 3, 116)
    MF = [acc(1,0), acc(1,1), acc(3,0), acc(3,1)]
    wait_ready(A, 9, 32, SS, 2)
    task_off(A, SB, SS, 7168, LY.MB); A(f"v_add_u32 v9, s{SB}, v15")
    rec_off(A, SA, SS, LY.R_PT, 40960)
    p = Poll(A, 31, sleep=1); p.begin()
    for ks in range(4): A(f"buffer_load_dwordx4 {v(MF[ks],4)}, v9, s[32:35], s{74+ks} offen sc1")
    A("s_waitcnt vmcnt(0)")
    for t in chk_tree(A, [MF[ks]+r for ks in range(4) for r in range(4)], 10): A(t)
    p.end()
    stampB(A, 4, 116)
    A(f"s_cmp_eq_u32 s98, 0"); A("s_cselect_b64 vcc, -1, 0")
    A(f"v_cndmask_b32 v{MF[3]}, v{MF[3]+2}, v{MF[3]}, vcc"); A(f"v_cndmask_b32 v{MF[3]+1}, v{MF[3]+3}, v{MF[3]+1}, vcc")
    for ks in range(4):
        w = 4 if ks < 3 else 2; op = MM if ks < 3 else MM16
        for tt in range(2):
            A(f"{op} {v(sc(0,tt),4)}, {v(MF[ks],w)}, {v(acc(2*ks,tt),w)}, {v(sc(0,tt),4) if ks else 0}")
    for tt in range(2):
        A(f"ds_write_b128 v4, {v(sc(0,tt),4)} offset:{tt*16*208}")
    A("s_waitcnt lgkmcnt(0)"); A("s_barrier")
    T = ACC
    for w in range(4): A(f"ds_read_b128 {v(T+w*4,4)}, v5 offset:{w*6656}")
    for w in range(4): A(f"ds_read_b32 v{T+16+w}, v6 offset:{w*6656}")
    A("s_waitcnt lgkmcnt(4)")
    for r in (0, 2):
        A(f"v_pk_add_f32 {v(T+r,2)}, {v(T+r,2)}, {v(T+4+r,2)}"); A(f"v_pk_add_f32 {v(T+8+r,2)}, {v(T+8+r,2)}, {v(T+12+r,2)}")
    for r in (0, 2): A(f"v_pk_add_f32 {v(T+r,2)}, {v(T+r,2)}, {v(T+8+r,2)}")
    A("s_waitcnt lgkmcnt(0)")
    A("s_barrier")
    A(f"v_add_f32 v{T+16}, v{T+16}, v{T+17}"); A(f"v_add_f32 v{T+18}, v{T+18}, v{T+19}")
    for r in range(4): A(f"v_cndmask_b32 v{T+r}, v14, v{T+r}, s[{SMK+2*r}:{SMK+2*r+1}]")
    A(f"v_add_f32 v{T+4}, v{T+16}, v{T+18}")
    A(f"v_max3_f32 v{T+5}, v{T}, v{T+1}, v{T+2}"); A(f"v_max3_f32 v{T+5}, v{T+5}, v{T+3}, v{T+4}")
    dpp_reduce8(A, "v_max_f32", T+5, None)
    for r in range(5): A(f"v_sub_f32 v{T+r}, v{T+r}, v{T+5}")
    for r in range(5): A(f"v_exp_f32 v{T+r}, v{T+r}")
    A(f"v_add_f32 v{T+5}, v{T}, v{T+1}"); A(f"v_add_f32 v{T+6}, v{T+2}, v{T+3}")
    A(f"v_add_f32 v{T+5}, v{T+5}, v{T+4}"); A(f"v_add_f32 v{T+5}, v{T+5}, v{T+6}")
    dpp_reduce8(A, "v_add_f32", T+5, None)
    A(f"v_rcp_f32 v{T+5}, v{T+5}")
    for r in range(5): A(f"v_mul_f32 v{T+r}, v{T+r}, v{T+5}")
    A(f"v_mov_b32_dpp v{T+6}, v{T+4} quad_perm:[1,0,3,2] row_mask:0xf bank_mask:0xf")
    A(f"v_cvt_pk_bf16_f32 v{T}, v{T}, v{T+1}"); A(f"v_cvt_pk_bf16_f32 v{T+1}, v{T+2}, v{T+3}")
    A(f"v_cvt_pk_bf16_f32 v{T+4}, v{T+4}, v{T+6}")
    for r in (0, 1, 4): A(f"v_min_u32 v{T+r}, -2, v{T+r}")
    A(f"buffer_store_dwordx2 {v(T,2)}, v7, s[32:35], s{SA} offen sc1")
    A(f"buffer_store_dword v{T+4}, v8, s[32:35], s{SA} offen sc1")
    stampB(A, 5, 116)
    A(f"s_add_u32 s{SS}, s{SS}, 2"); A(f"s_cmp_lt_u32 s{SS}, 64"); A(f"s_cbranch_scc1 {top}")
    if EV: A("s_waitcnt vmcnt(0)")
    event(A, SROLE, 4, 10)
    A("s_endpgm")

def roleU(A):
    SS, SA, SB, SC_, SN, SN2, SST, SFP, SFX_ = 61, 62, 63, 64, 65, 66, 67, 68, 69
    ACC, FB, STG, R_, T, CS, TB, ONE, RC, VAR = 24, 56, 80, 108, 148, 124, 128, 144, 156, 172
    LTAB = 65536
    wreg = lambda hh, kk: a((hh * 14 + kk) * 4, 4)
    A(f"s_lshr_b32 s{SL}, s{SROLE}, 5"); A(f"s_sub_u32 s{SL}, s{SL}, 3")
    for hh in range(4):
        A(f"s_lshl_b32 s44, s{SRANK}, 4"); A(f"s_lshl_b32 s45, s{SW}, 2"); A("s_add_u32 s44, s44, s45"); A(f"s_add_u32 s44, s44, {hh}")
        A("s_mul_i32 s44, s44, 14336"); A(f"s_add_u32 s44, s44, {LY.BF}")
        for kk in range(14):
            A(f"buffer_load_dwordx4 {wreg(hh,kk)}, v2, s[32:35], s44 offen offset:{(kk%4)*1024}")
            if kk % 4 == 3: A("s_add_u32 s44, s44, 4096")
    A("v_and_b32 v9, 15, v1"); A("v_lshrrev_b32 v10, 4, v1")
    A(f"s_mul_i32 s45, s{SW}, 7168"); A("v_add_u32 v3, s45, v2")
    A(f"s_lshl_b32 s45, s{SW}, 12"); A("v_add_u32 v5, s45, v2")
    A(f"v_mov_b32 v11, {OOB}"); A(f"s_lshl_b32 s45, s{SW}, 2"); A("v_mov_b32 v6, s45"); A("v_cmp_eq_u32 vcc, 0, v1")
    A("v_cndmask_b32 v6, v11, v6, vcc"); A("v_mov_b32 v7, 1")
    A("v_mov_b32 v4, v3"); A("v_mov_b32 v20, v2")
    def gemm(fill, every, start=1):
        return lds_gemm(A, 14, 2, lambda kk, f, d: f"ds_read_b128 {v(d,4)}, v20 offset:{f*14336 + kk*1024}", FB,
                 lambda kk, fr: [f"{MM} {v(ACC+(hh*2+tt)*4,4)}, {v(fr[tt],4)}, {wreg(hh,kk)}, {v(ACC+(hh*2+tt)*4,4) if kk else 0}" for hh in range(4) for tt in range(2)],
                 fill, every, start)
    task_off(A, SA, SK, 448 * 1024, LY.U); A(f"s_lshl_b32 s44, s{SRANK}, 14"); A(f"s_add_u32 s{SA}, s{SA}, s44")
    task_off(A, SB, SK, 3584, LY.FU); A(f"s_lshl_b32 s44, s{SRANK}, 7"); A(f"s_add_u32 s{SB}, s{SB}, s44")
    A(f"s_mov_b32 s{SFP}, {OOB}")
    flag = f"buffer_store_dword v7, v6, s[32:35], s{SFP} offen sc1"
    toggle = ["v_xor_b32 v4, 0x8000, v4", "v_xor_b32 v20, 0x8000, v20"]
    A(f"s_mov_b32 s{SS}, 0")
    A(f"s_cmp_eq_u32 s{SL}, 0"); A("s_cbranch_scc0 r_U1")
    A(f"s_mov_b32 s{SN}, {LY.XS}"); A(f"s_mov_b32 s{SN2}, {LY.XS + 4096}")
    nl = loads7_list(SN, SN2, 3, STG, "")
    for t in nl: A(t)
    for _ in range(4): A(f"buffer_store_dword v7, v11, s[32:35], 0 offen")
    event(A, SROLE, 1, 10)
    top = A.new("u0"); A.label(top)
    A(f"s_mov_b32 s{SK}, s{SS}")
    stampB(A, 0, 210)
    A("s_waitcnt vmcnt(4)" if not (GM.DIAG and GM.DIAGB) else "s_waitcnt vmcnt(0)")
    for i in range(7): A(f"ds_write_b128 v4, {v(STG+i*4,4)} offset:{i*1024}")
    A(f"s_add_u32 s{SN}, s{SN}, 28672"); A(f"s_add_u32 s{SN2}, s{SN2}, 28672")
    A("s_waitcnt lgkmcnt(0)"); A("s_barrier")
    stampB(A, 1, 210)
    rest = gemm(nl + [["s_waitcnt vmcnt(7)", flag]], 8, 4); assert not rest
    for hh in range(4):
        pack2(A, ACC + hh*8, ACC + hh*8 + 4)
        A(f"buffer_store_dwordx4 {v(ACC+hh*8,4)}, v5, s[32:35], s{SA} offen offset:{hh*1024} sc1")
    stampB(A, 2, 210)
    for x in toggle: A(x)
    A(f"s_mov_b32 s{SFP}, s{SB}"); A(f"s_add_u32 s{SA}, s{SA}, {448*1024}"); A(f"s_add_u32 s{SB}, s{SB}, 3584")
    stampB(A, 3, 210)
    A(f"s_add_u32 s{SS}, s{SS}, 1"); A(f"s_cmp_lt_u32 s{SS}, 64"); A(f"s_cbranch_scc1 {top}")
    if EV: A("s_waitcnt vmcnt(0)")
    event(A, SROLE, 4, 10)
    A("s_waitcnt vmcnt(0)"); A(flag)
    A("s_endpgm")
    A.label("r_U1")
    stat_addrs2(A, 9, 10, 12, 13, 14, 11)
    A(f"s_lshl_b32 s44, s{SW}, 8"); A(f"s_add_u32 s45, s44, {LTAB}")
    A("v_lshlrev_b32 v15, 2, v9"); A("v_add_u32 v15, s45, v15")
    A("v_lshlrev_b32 v16, 4, v10"); A(f"v_add_u32 v16, s45, v16")
    A(f"s_lshl_b32 s44, s{SRANK}, 10"); A("v_add_u32 v17, s44, v2"); A("v_mov_b32 v23, v17")
    A(f"s_cmp_ge_u32 s{SRANK}, 14"); A("s_cselect_b64 s[72:73], -1, 0")
    allready_init(A, VAR)
    sample_addr_staged(A, VAR+1, LY.R_ST + 8192 - LY.R_X2B, VAR+2)
    A(f"s_cmp_eq_u32 s{SW}, 3"); A("s_cselect_b64 vcc, 1, 0"); A(f"v_mov_b32 v11, {OOB}"); A("v_mov_b32 v19, 0"); A("v_cndmask_b32 v19, v11, v19, vcc")
    A(f"s_cmp_eq_u32 s{SW}, 3"); A("s_cselect_b64 vcc, -1, 0"); A("v_cndmask_b32 v18, v11, v17, vcc")
    toggle += ["v_xor_b32 v23, 0x8000, v23"]
    for q in range(4): A(f"v_mov_b32 v{ONE+q}, 0x3f803f80")
    A("s_waitcnt vmcnt(0)")
    for kk in range(14):
        for hh in range(4):
            A(f"{MM} {v(ACC+hh*4,4)}, {v(ONE,4)}, {wreg(hh,kk)}, {v(ACC+hh*4,4) if kk else 0}")
    for hh in range(4): A(f"v_mov_b32 v{CS+hh}, v{ACC+hh*4}")
    A(f"s_mov_b32 s{SN}, {LY.S1_BEG + LY.R_X2B}"); A(f"s_mov_b32 s{SN2}, {LY.S1_BEG + LY.R_X2B + 4096}"); A(f"s_mov_b32 s{SST}, {LY.S1_BEG + LY.R_ST + 8192}")
    A(f"s_mov_b32 s{SC_}, {LY.XS + 64*28672}")
    A(f"s_lshl_b32 s44, s{SRANK}, 7"); A(f"s_add_u32 s70, s44, {LY.FX}"); A(f"s_mov_b32 s{SFX_}, {OOB}")
    nl = stat_loads2(R_, 12, 13, SST) + loads7_list(SN, SN2, 3, STG)
    flags = [flag, f"buffer_store_dword v7, v19, s[32:35], s{SFX_} offen sc1", f"s_mov_b32 s{SFP}, {OOB}", f"s_mov_b32 s{SFX_}, {OOB}"]
    A(f"v_mov_b32 v{STG}, -1")
    event(A, SROLE, 1, 10)
    top = A.new("u1"); A.label(top)
    A(f"s_mov_b32 s{SK}, s{SS}")
    stampB(A, 0, 210)
    def miss():
        A("s_waitcnt vmcnt(0)")
        for x in flags: A(x)
        wait_ready(A, 21, 44, SS)
    staged_input2(A, nl, 0 if (GM.DIAG and GM.DIAGB) else 5, STG, R_, RC, 4, 40, 21, miss, VAR+1, SN)
    stampB(A, 1, 210)
    for r in (SN, SN2, SST): A(f"s_add_u32 s{r}, s{r}, {LY.RS}")
    sc_ = Rec()
    for tt in range(2): stat_combine(sc_, RC + tt*8, 14, T + tt*4)
    fill = [["s_waitcnt vmcnt(0)"] + flags] + sc_.l
    fill = fill + [None] * (90 - len(fill))
    k = 0
    for i in range(len(fill)):
        if i >= 30 and (i - 30) % 4 == 0 and k < len(nl):
            fill[i] = ([fill[i]] if fill[i] else []) + [nl[k]]; k += 1
    assert k == len(nl)
    fill = [x if x else [] for x in fill]
    rest = gemm(fill, 1, 6); assert not rest
    for tt in range(2):
        A(f"ds_write_b32 v15, v{T+tt*4} offset:{tt*64}"); A(f"ds_write_b32 v15, v{T+tt*4+1} offset:{128 + tt*64}")
    for tt in range(2):
        A(f"ds_read_b128 {v(TB+tt*8,4)}, v16 offset:{tt*64}"); A(f"ds_read_b128 {v(TB+tt*8+4,4)}, v16 offset:{128 + tt*64}")
    nn = A.new("nn"); nj = A.new("nj")
    A(f"s_cmp_lg_u32 s{SW}, 3"); A(f"s_cbranch_scc1 {nn}")
    A(f"ds_read_b128 {v(RC,4)}, v23")
    A(f"v_cndmask_b32 v{T}, v{T}, v{T+4}, s[72:73]"); A(f"v_cndmask_b32 v{T+1}, v{T+1}, v{T+5}, s[72:73]")
    A("s_waitcnt lgkmcnt(0)")
    unpack8(A, RC, RC+4)
    for r in range(8): A(f"v_fma_f32 v{RC+4+r}, v{RC+4+r}, v{T}, v{T+1}")
    for q in range(4): A(f"v_cvt_pk_bf16_f32 v{ONE+q}, v{RC+4+2*q}, v{RC+5+2*q}")
    A.label(nn)
    boundary_guard(A, SS, VAR, STG)
    A(f"buffer_store_dwordx4 {v(ONE,4)}, v18, s[32:35], s{SC_} offen sc1")
    A("s_waitcnt lgkmcnt(0)")
    for hh in range(4):
        for tt in range(2):
            r = ACC + (hh*2+tt) * 4
            cs = CS + (hh & ~1); sel = "op_sel:[0,1,0] op_sel_hi:[1,1,1]" if hh & 1 else "op_sel_hi:[1,0,1]"
            for q in (0, 2):
                A(f"v_pk_mul_f32 {v(r+q,2)}, {v(r+q,2)}, {v(TB+tt*8+q,2)}")
            for q in (0, 2):
                A(f"v_pk_fma_f32 {v(r+q,2)}, {v(TB+tt*8+4+q,2)}, {v(cs,2)}, {v(r+q,2)} {sel}")
        pack2(A, ACC + hh*8, ACC + hh*8 + 4)
        A(f"buffer_store_dwordx4 {v(ACC+hh*8,4)}, v5, s[32:35], s{SA} offen offset:{hh*1024} sc1")
    stampB(A, 2, 210)
    for x in toggle: A(x)
    A(f"s_mov_b32 s{SFP}, s{SB}"); A(f"s_mov_b32 s{SFX_}, s70")
    A(f"s_add_u32 s{SA}, s{SA}, {448*1024}"); A(f"s_add_u32 s{SB}, s{SB}, 3584"); A("s_add_u32 s70, s70, 3584"); A(f"s_add_u32 s{SC_}, s{SC_}, 28672")
    stampB(A, 3, 210)
    A(f"s_add_u32 s{SS}, s{SS}, 1"); A(f"s_cmp_lt_u32 s{SS}, 64"); A(f"s_cbranch_scc1 {top}")
    if EV: A("s_waitcnt vmcnt(0)")
    event(A, SROLE, 4, 10)
    A("s_waitcnt vmcnt(0)")
    for x in flags: A(x)
    A("s_endpgm")

def roleO(A):
    SS, SA, SB, SC_, SJ, SMB_ = 61, 62, 63, 64, 65, 66
    MR, WACC, WBUF, UR, PX, SG, FG, IDX = 24, 52, 84, 116, 148, 180, 188, 190
    D, RES = MR, MR + 24
    WP, Y, T = WACC, WACC + 8, WACC + 16
    MST, LRED = 131072, 131072 + 7168 + 1024
    regp = [p_ for p_ in range(7) if p_ not in LP]
    def wreg(p_, n, hf=None):
        idx = regp.index(p_) * 8 + n
        o, c = (0, 8) if hf is None else (hf * 4, 4)
        return a(idx * 8 + o, c) if idx < 32 else v(192 + (idx - 32) * 8 + o, c)
    A(f"s_cmp_ge_u32 s{SRANK}, 14"); A(f"s_cselect_b32 s{SL}, 1, 0"); A(f"s_mul_i32 s44, s{SL}, 14"); A(f"s_sub_u32 s{SJ}, s{SRANK}, s44")
    srd(A, 40, "x")
    load_B64_weights(A, SJ, wreg)
    sparse_idx(A, IDX, 9)
    A("v_and_b32 v9, 15, v1"); A("v_lshrrev_b32 v10, 4, v1")
    A(f"s_lshl_b32 s45, s{SW}, 15"); A(f"v_add_u32 v3, s45, v2")
    A(f"s_lshl_b32 s45, s{SW}, 12"); A("v_add_u32 v5, s45, v2")
    A(f"s_lshl_b32 s45, s{SW}, 13"); A("v_add_u32 v6, s45, v2")
    A("v_lshlrev_b32 v7, 2, v1"); A(f"s_lshl_b32 s45, s{SW}, 11"); A("v_add_u32 v4, s45, v2")
    A("s_add_u32 s45, s45, 32768"); A("v_add_u32 v7, s45, v7")
    A(f"s_cmp_eq_u32 s{SW}, 3"); A("s_cselect_b32 s45, 0, 1024"); A("v_add_u32 v18, s45, v4")
    A(f"v_add_u32 v19, {MST}, v4"); A(f"v_add_u32 v20, {MST}, v18")
    A("v_lshrrev_b32 v21, 1, v10"); A("v_lshlrev_b32 v21, 9, v21"); A("v_and_b32 v11, 1, v10"); A("v_lshl_add_u32 v21, v11, 8, v21")
    A("v_lshrrev_b32 v11, 1, v9"); A("v_lshl_add_u32 v21, v11, 4, v21"); A("v_and_b32 v11, 1, v9"); A("v_lshl_add_u32 v21, v11, 2, v21")
    A(f"v_add_u32 v21, {MST}, v21")
    A(f"s_lshl_b32 s45, s{SW}, 2"); A("v_mov_b32 v8, s45")
    A("v_bfe_u32 v12, v1, 1, 3"); A("v_and_b32 v11, 1, v1")
    A("v_lshlrev_b32 v22, 8, v12"); A("v_lshl_add_u32 v22, v11, 5, v22"); A(f"s_lshl_b32 s45, s{SW}, 11"); A("s_add_u32 s45, s45, 32768"); A("v_add_u32 v22, s45, v22")
    A("v_lshlrev_b32 v12, 10, v12"); A("v_lshl_add_u32 v12, v11, 7, v12"); A(f"s_lshl_b32 s45, s{SW}, 13"); A("v_add_u32 v12, s45, v12")
    A("v_cmp_gt_u32 vcc, 16, v1"); A("v_cndmask_b32 v12, v22, v12, vcc")
    A(f"v_mov_b32 v22, {OOB}"); A("v_cmp_gt_u32 vcc, 32, v1"); A("v_cndmask_b32 v12, v22, v12, vcc")
    final_addrs(A, SJ, 9, 10, 13, 14, 15, 16, 17, LRED, 11)
    zero = [f"v_mov_b32 v{WACC+r}, 0" for r in range(32)]
    SFU_, SU_, SPT, SX1, SST, SRS = 67, 68, 70, 72, 73, 74
    PM = SG
    A(f"s_mov_b32 s{SS}, 0")
    task_off(A, SMB_, SS, 7168, LY.MB)
    task_off(A, SFU_, SS, 3584, LY.FU); A(f"s_lshl_b32 s44, s{SJ}, 8"); A(f"s_add_u32 s{SFU_}, s{SFU_}, s44")
    task_off(A, SU_, SS, 448*1024, LY.U); A(f"s_lshl_b32 s44, s{SJ}, 15"); A(f"s_add_u32 s{SU_}, s{SU_}, s44"); A(f"s_add_u32 s{SU_+1}, s{SU_}, 16384")
    rec_off(A, SPT, SS, LY.R_PT, 40960); A(f"s_add_u32 s{SPT+1}, s{SPT}, 4096")
    rec_off(A, SX1, SS, LY.R_X1B, 28672); rec_off(A, SST, SS, LY.R_ST, 4096)
    A(f"s_cmp_eq_u32 s{SL}, 0"); A(f"s_cselect_b32 s{SRS}, 0, {LY.S1_BEG + LY.R_X2B}")
    fl = [f"buffer_load_dword v{FG}, v8, s[32:35], s{SFU_} offen sc1", f"buffer_load_dword v{FG+1}, v8, s[32:35], s{SFU_} offen offset:128 sc1"]
    ml = [f"buffer_load_dwordx4 {v(SG,4)}, v4, s[32:35], s{SMB_} offen sc1", f"buffer_load_dwordx4 {v(SG+4,4)}, v18, s[32:35], s{SMB_} offen sc1"]
    pml = [f"buffer_load_dword v{PM+tt*4+hh}, v7, s[32:35], s{SPT} offen offset:{(hh*2+tt)*256} sc1" for hh in range(4) for tt in range(2)]
    pxl = [f"buffer_load_dwordx4 {v(PX+n*4,4)}, v6, s[32:35], s{SPT + (n >> 2)} offen offset:{(n%4)*1024} sc1" for n in range(8)]
    for t in fl + ml: A(t)
    A("s_waitcnt vmcnt(0)")
    event(A, SROLE, 1, 10)
    top = A.new("o"); A.label(top)
    A(f"s_mov_b32 s{SK}, s{SS}")
    stampB(A, 0, 22)
    for t in zero: A(t)
    for q in range(8): A(f"ds_read_b128 {v(WBUF+q*4,4)}, v3 offset:{q*1024}")
    ok = A.new("mok")
    A("s_waitcnt vmcnt(0)" if (GM.DIAG and GM.DIAGB) or LATEPRE else "s_waitcnt vmcnt(2)")
    for t in chk_tree(A, range(SG, SG+8), 10): A(t)
    A(f"s_cbranch_vccz {ok}")
    p = Poll(A, 41); p.begin()
    for t in fl + ml: A(t)
    A("s_waitcnt vmcnt(0)")
    for t in chk_tree(A, range(SG, SG+8), 10): A(t)
    p.end()
    A.label(ok)
    stampB(A, 1, 22)
    A(f"ds_write_b128 v19, {v(SG,4)}"); A(f"ds_write_b128 v20, {v(SG+4,4)}")
    ok = A.new("fok")
    A(f"v_and_b32 v{FG}, v{FG}, v{FG+1}"); A(f"v_cmp_ne_u32 vcc, 1, v{FG}"); A(f"s_cbranch_vccz {ok}")
    p = Poll(A, 46, sleep=2); p.begin()
    for t in fl: A(t)
    A("s_waitcnt vmcnt(0)"); A(f"v_and_b32 v{FG}, v{FG}, v{FG+1}"); A(f"v_cmp_ne_u32 vcc, 1, v{FG}")
    p.end()
    A.label(ok)
    wait_ready(A, 10, 45, SS)
    A("s_waitcnt lgkmcnt(0)"); A("s_barrier")
    for i in (2, 0, 1, 3, 4, 5, 6):
        A(f"v_add_u32 v10, {i*1024}, v21")
        A(f"ds_read2_b32 {v(MR+i*4,2)}, v10 offset0:0 offset1:2"); A(f"ds_read2_b32 {v(MR+i*4+2,2)}, v10 offset0:32 offset1:34")
    ul = [f"buffer_load_dwordx4 {v(UR+(hh*2+ct)*4,4)}, v5, s[32:35], s{SU_+ct} offen offset:{hh*1024} sc1" for hh in range(4) for ct in range(2)]
    w_smf(A, MR, WACC, WBUF, wreg, IDX, 3, ul + pml + pxl, [1 + 3*q for q in range(8)] + [25 + q for q in range(8)] + [33 + 3*q for q in range(8)])
    for n in range(8):
        r = WACC + n*4
        A(f"v_add_f32 v{r}, v{r}, v{r+1}"); A(f"v_add_f32 v{r+2}, v{r+2}, v{r+3}")
    for n in range(8):
        hh, ct = n >> 1, n & 1
        A(f"v_cvt_pk_bf16_f32 v{WP+ct*4+hh}, v{WACC+n*4}, v{WACC+n*4+2}")
    stampB(A, 2, 22)
    A(f"s_add_u32 s{SMB_}, s{SMB_}, 7168"); A(f"s_add_u32 s{SFU_}, s{SFU_}, 3584")
    A(f"s_add_u32 s{SU_}, s{SU_}, {448*1024}"); A(f"s_add_u32 s{SU_+1}, s{SU_+1}, {448*1024}")
    res = A.new("res"); resd = A.new("resd")
    A(f"s_cmp_eq_u32 s{SL}, 0"); A(f"s_cbranch_scc0 {res}")
    A(f"buffer_load_dwordx4 {v(RES,4)}, v17, s[40:43], s{SRS} offen"); A(f"s_add_u32 s{SRS}, s{SRS}, 28672")
    A(f"s_branch {resd}")
    A.label(res)
    A(f"buffer_load_dwordx4 {v(RES,4)}, v15, s[32:35], s{SRS} offen sc1"); A(f"s_add_u32 s{SRS}, s{SRS}, {LY.RS}")
    A.label(resd)
    ok = A.new("pmok")
    A("s_waitcnt vmcnt(9)")
    for t in chk_tree(A, range(PM, PM+8), 11): A(t)
    A(f"s_cbranch_vccz {ok}")
    sample_poll(A, 12, SPT, 11, 49)
    p = Poll(A, 47); p.begin()
    for t in pml + pxl: A(t)
    A("s_waitcnt vmcnt(8)")
    for t in chk_tree(A, range(PM, PM+8), 11): A(t)
    p.end()
    A.label(ok)
    for ct in range(2):
        for tt in range(2):
            A(f"{MM} {v(D+(ct*2+tt)*4,4)}, {v(WP+ct*4,4)}, {v(PM+tt*4,4)}, 0")
    A("s_waitcnt vmcnt(0)")
    for t in chk_tree(A, range(PX, PX+32), 11): A(t)
    ok = A.new("pxok")
    A(f"s_cbranch_vccz {ok}")
    p = Poll(A, 48); p.begin()
    for t in pxl: A(t)
    A("s_waitcnt vmcnt(0)")
    for t in chk_tree(A, range(PX, PX+32), 11): A(t)
    p.end()
    A.label(ok)
    stampB(A, 3, 22)
    nx = fl + ml
    for hh in range(4):
        for ct in range(2):
            for tt in range(2):
                r = D + (ct*2+tt)*4
                A(f"{MM} {v(r,4)}, {v(UR+(hh*2+ct)*4,4)}, {v(PX+(hh*2+tt)*4,4)}, {v(r,4)}")
        if not LATEPRE: A(nx[hh])
    for q in range(4): A(f"ds_write_b128 v13, {v(D+q*4,4)} offset:{q*1024}")
    A(f"s_add_u32 s{SPT}, s{SPT}, {LY.RS}"); A(f"s_add_u32 s{SPT+1}, s{SPT+1}, {LY.RS}")
    A("s_waitcnt lgkmcnt(0)"); A("s_barrier")
    ne = A.new("noepi")
    A(f"s_cmp_ge_u32 s{SW}, 2"); A(f"s_cbranch_scc1 {ne}")
    final_sum(A, 14, PX, RES, Y)
    final_publish(A, Y, T, 15, 16, SX1, SST)
    A(f"s_branch {ne}_j")
    A.label(ne)
    A("s_waitcnt vmcnt(0)")
    A.label(ne + "_j")
    if LATEPRE:
        for x in nx: A(x)
    stampB(A, 4, 22)
    A(f"s_add_u32 s{SX1}, s{SX1}, {LY.RS}"); A(f"s_add_u32 s{SST}, s{SST}, {LY.RS}")
    A(f"s_add_u32 s{SS}, s{SS}, 1"); A(f"s_cmp_lt_u32 s{SS}, 64"); A(f"s_cbranch_scc1 {top}")
    if EV: A("s_waitcnt vmcnt(0)")
    event(A, SROLE, 4, 10)
    A("s_endpgm")

def load_T(A, srdn, stride, soff, dst):
    A("v_lshrrev_b32 v8, 2, v1"); A(f"v_mul_u32_u24 v8, {stride}, v8"); A("v_and_b32 v9, 3, v1"); A("v_lshl_add_u32 v8, v9, 4, v8")
    A(f"s_mul_i32 s46, s{SW}, 28672")
    for q in range(28):
        A(f"s_add_u32 m0, s46, {q*1024}"); A("s_nop 0")
        A(f"buffer_load_dwordx4 v8, s[{srdn}:{srdn+3}], s{soff} offen lds")
        A(f"s_add_u32 s{soff}, s{soff}, {16*stride}")
    A("v_lshrrev_b32 v8, 4, v1"); A("v_lshlrev_b32 v8, 3, v8"); A("v_bfe_u32 v10, v1, 2, 2"); A("v_add_u32 v8, v8, v10")
    A("v_lshlrev_b32 v8, 6, v8"); A("v_lshl_add_u32 v8, v9, 4, v8"); A("v_add_u32 v8, s46, v8")
    A("s_waitcnt vmcnt(0)")
    for kk in range(14):
        for b in range(2):
            for hh in range(2): A(f"ds_read_b64_tr_b16 {a(dst(b, kk) + hh*2, 2)}, v8 offset:{kk*2048 + hh*256 + b*8}")
        if kk % 3 == 2: A("s_waitcnt lgkmcnt(0)")
    A("s_waitcnt lgkmcnt(0)")

def roleF1(A):
    SS, SA, SN, SN2, SST = 61, 62, 65, 66, 67
    ACC, FB, STG, R_, CS, TB, ONE, OUT, RC, VAR = 24, 56, 80, 108, 124, 140, 148, 152, 160, 176
    LTAB = 65536
    wreg = lambda n, kk: a((n * 14 + kk) * 4, 4)
    for mat in range(2):
        srd(A, 40, "wu" if mat else "wg")
        A(f"s_lshl_b32 s44, s{SRANK}, 2"); A(f"s_add_u32 s44, s44, s{SW}"); A("s_lshl_b32 s44, s44, 6")
        load_T(A, 40, 3584, 44, lambda b, kk: ((mat*2 + b) * 14 + kk) * 4)
    A("s_barrier")
    A("v_and_b32 v9, 15, v1"); A("v_lshrrev_b32 v10, 4, v1")
    A(f"s_mul_i32 s45, s{SW}, 7168"); A("v_add_u32 v3, s45, v2"); A("v_mov_b32 v5, v3"); A("v_mov_b32 v20, v2")
    A(f"s_lshl_b32 s44, s{SRANK}, 2"); A(f"s_add_u32 s44, s44, s{SW}"); A("s_lshl_b32 s44, s44, 11"); A("v_add_u32 v4, s44, v2")
    stat_addrs2(A, 9, 10, 12, 13, 14, 11)
    allready_init(A, VAR)
    A(f"s_mul_i32 s45, s{SL}, {4096 - 28672}"); A(f"s_add_u32 s45, s45, {LY.R_ST - LY.R_X1B}")
    sample_addr_staged(A, VAR+1, "s45", VAR+2)
    toggle = ["v_xor_b32 v5, 0x8000, v5", "v_xor_b32 v20, 0x8000, v20"]
    for q in range(4): A(f"v_mov_b32 v{ONE+q}, 0x3f803f80")
    A("s_waitcnt vmcnt(0)")
    for kk in range(14):
        for n in range(4):
            A(f"{MM} {v(CS+n*4,4)}, {wreg(n,kk)}, {v(ONE,4)}, {v(CS+n*4,4) if kk else 0}")
    A(f"s_mov_b32 s{SS}, 0")
    rec_off(A, SN, SS, LY.R_X1B, 28672); A(f"s_add_u32 s{SN2}, s{SN}, 4096"); rec_off(A, SST, SS, LY.R_ST, 4096); rec_off(A, SA, SS, LY.R_HH, 114688)
    nl = stat_loads2(R_, 12, 13, SST) + loads7_list(SN, SN2, 3, STG)
    A(f"v_mov_b32 v{STG}, -1")
    event(A, SROLE, 1, 10)
    top = A.new("f1"); A.label(top)
    A(f"s_mov_b32 s{SK}, s{SS}")
    stampB(A, 0, 210)
    staged_input2(A, nl, 0 if (GM.DIAG and GM.DIAGB) else 2, STG, R_, RC, 5, 50, 21, lambda: wait_ready(A, 21, 51, SS), VAR+1, SN)
    stampB(A, 2, 210)
    for r in (SN, SN2, SST): A(f"s_add_u32 s{r}, s{r}, {LY.RS}")
    def epi(tt):
        out = []
        for q in range(2): out.append(f"v_mul_f32 v{TB+tt*4+2+q}, {f32(-LY.LOG2E)}, v{TB+tt*4+q}")
        for n in range(4):
            r = ACC + (n*2+tt)*4; tb = TB + tt*4 + (0 if n >= 2 else 2)
            for q in (0, 2): out.append(f"v_pk_mul_f32 {v(r+q,2)}, {v(r+q,2)}, {v(tb,2)} op_sel_hi:[1,0]")
            for q in (0, 2): out.append(f"v_pk_fma_f32 {v(r+q,2)}, {v(CS+n*4+q,2)}, {v(tb,2)}, {v(r+q,2)} op_sel:[0,1,0] op_sel_hi:[1,1,1]")
        G = [ACC + (b * 2 + tt) * 4 + r for b in range(2) for r in range(4)]
        Uu = [ACC + ((2 + b) * 2 + tt) * 4 + r for b in range(2) for r in range(4)]
        out += [f"v_exp_f32 v{g}, v{g}" for g in G] + [f"v_add_f32 v{g}, 1.0, v{g}" for g in G] + [f"v_rcp_f32 v{g}, v{g}" for g in G]
        out += [f"v_mul_f32 v{g}, v{g}, v{u}" for g, u in zip(G, Uu)]
        o = OUT + tt * 4
        out += [f"v_cvt_pk_bf16_f32 v{o+q}, v{G[2*q]}, v{G[2*q+1]}" for q in range(4)] + [f"v_min_u32 v{o+q}, -2, v{o+q}" for q in range(4)]
        return out
    st = lambda tt: f"buffer_store_dwordx4 {v(OUT+tt*4,4)}, v4, s[32:35], s{SA} offen offset:{tt*1024} sc1"
    def half(tt, fill, every, start):
        return lds_gemm(A, 14, 1, lambda kk, f, d: f"ds_read_b128 {v(d,4)}, v20 offset:{tt*14336 + kk*1024}", FB + tt*12,
                        lambda kk, fr: [f"{MM} {v(ACC+(n*2+tt)*4,4)}, {wreg(n,kk)}, {v(fr[0],4)}, {v(ACC+(n*2+tt)*4,4) if kk else 0}" for n in range(4)],
                        fill, every, start)
    sc_ = Rec()
    for tt in range(2): stat_combine(sc_, RC + tt*8, 14, TB + tt*4)
    n0 = len(sc_.l) // 2
    f0 = [[x, y] for x, y in zip(sc_.l[:n0], sc_.l[n0:])] + [[] for _ in range(54 - n0)]
    for k, x in enumerate(nl): f0[8 + 3*k].append(x)
    rest = half(0, f0, 1, 2); assert not rest
    e0 = epi(0)
    f1_ = [[e0[2*q], e0[2*q+1]] if q < 12 else [e0[12 + q]] for q in range(len(e0) - 12)]
    rest = half(1, f1_, 1, 3)
    stampB(A, 3, 210)
    boundary_guard(A, SS, VAR, STG)
    rest = [y for x in rest for y in x] + [st(0)]
    for x in rest: A(x)
    for x in epi(1): A(x)
    A(st(1))
    stampB(A, 4, 210)
    for x in toggle: A(x)
    A(f"s_add_u32 s{SA}, s{SA}, {LY.RS}")
    A(f"s_add_u32 s{SS}, s{SS}, 1"); A(f"s_cmp_lt_u32 s{SS}, 64"); A(f"s_cbranch_scc1 {top}")
    if EV: A("s_waitcnt vmcnt(0)")
    event(A, SROLE, 4, 10)
    A("s_endpgm")

def roleF2(A):
    SS, SA, SB, SC_, SJ = 61, 62, 63, 64, 65
    D, RES, Y, T, HB = 24, 40, 44, 52, 64
    wreg = lambda ct, i: a((ct * 14 + i) * 4, 4)
    A(f"s_sub_u32 s{SJ}, s{SRANK}, 14")
    srd(A, 40, "wd")
    A(f"s_mul_i32 s44, s{SW}, {448*896}"); A(f"s_lshl_b32 s45, s{SJ}, 6"); A("s_add_u32 s44, s44, s45")
    load_T(A, 40, 896, 44, lambda b, kk: (b * 14 + kk) * 4)
    A("s_barrier")
    srd(A, 40, "out")
    A("v_and_b32 v9, 15, v1"); A("v_lshrrev_b32 v10, 4, v1")
    A(f"s_mul_i32 s45, s{SW}, 28672"); A("v_add_u32 v3, s45, v2")
    final_addrs(A, SJ, 9, 10, 13, 14, 15, 16, 17, 0, 11)
    A(f"s_mov_b32 s{SS}, 0")
    rec_off(A, 66, SS, LY.R_HH, 114688)
    for q in range(1, 7): A(f"s_add_u32 s{66+q}, s66, {q*4096}"); A(f"s_add_u32 s{80+q}, s{66+q}, {LY.RS}")
    A(f"s_add_u32 s80, s66, {LY.RS}")
    hl = lambda n, base=66: f"buffer_load_dwordx4 {v(HB+n*4,4)}, v3, s[32:35], s{base+n//4} offen offset:{(n%4)*1024} sc1"
    A(f"v_mov_b32 v{HB}, -1")
    allready_init(A, 212)
    A(f"s_mul_i32 s44, s{SW}, 28672"); A("v_lshlrev_b32 v213, 10, v1"); A("v_add_u32 v213, s44, v213")
    A(f"v_mov_b32 v214, {OOB}"); A("v_cmp_gt_u32 vcc, 28, v1"); A("v_cndmask_b32 v213, v214, v213, vcc")
    event(A, SROLE, 1, 10)
    top = A.new("f2"); A.label(top)
    A(f"s_mov_b32 s{SK}, s{SS}")
    stampB(A, 0, 210)
    rec_off(A, SA, SS, LY.R_X1B, 28672)
    go = A.new("go")
    A("s_waitcnt vmcnt(26)")
    for t in chk_tree(A, range(HB, HB+8), 11): A(t)
    A(f"s_cbranch_vccz {go}")
    wait_ready(A, 11, 62, SS)
    sample_poll(A, 213, 66, 11, 64)
    p = Poll(A, 60); p.begin()
    for n in range(28): A(hl(n))
    A("s_waitcnt vmcnt(26)")
    for t in chk_tree(A, range(HB, HB+8), 11): A(t)
    p.end()
    A.label(go)
    stampB(A, 1, 210)
    vm = VM(A); ids = {}
    for n in range(2, 28): vm.n += 1; ids[n] = vm.n
    idr = vm.issue(f"buffer_load_dwordx4 {v(RES,4)}, v15, s[32:35], s{SA} offen sc1")
    stubs = []
    for i in range(14):
        nxt = chk_tree(A, range(HB+(2*i+2)*4, HB+(2*i+4)*4), 11) if i < 13 else []
        for ct in range(2):
            for tt in range(2):
                r = D + (ct * 2 + tt) * 4
                A(f"{MM} {v(r,4)}, {wreg(ct,i)}, {v(HB+(2*i+tt)*4,4)}, {v(r,4) if i else 0}")
        if nxt:
            vm.wait(ids[2*i+3])
            for t in nxt: A(t)
        if not LATEPRE: vm.issue(hl(2*i, 80)); vm.issue(hl(2*i+1, 80))
        if nxt:
            rl, bl = A.new("rt"), A.new("bk"); stubs.append((rl, bl, i + 1))
            A(f"s_cbranch_vccnz {rl}"); A.label(bl)
    for q in range(7): A(f"s_mov_b32 s{66+q}, s{80+q}"); A(f"s_add_u32 s{80+q}, s{80+q}, {LY.RS}")
    if not LATEPRE: boundary_guard(A, SS, 212, HB)
    stampB(A, 2, 210)
    for q in range(4): A(f"ds_write_b128 v13, {v(D+q*4,4)} offset:{q*1024}")
    A(f"s_waitcnt vmcnt({0 if LATEPRE else 28}) lgkmcnt(0)"); A("s_barrier")
    ne = A.new("noepi"); last = A.new("last")
    A(f"s_cmp_ge_u32 s{SW}, 2"); A(f"s_cbranch_scc1 {ne}")
    final_sum(A, 14, 176, RES, Y)
    stampB(A, 3, 210)
    A(f"s_cmp_eq_u32 s{SL}, 0"); A(f"s_cbranch_scc0 {last}")
    rec_off(A, SA, SS, LY.R_X2B)
    rec_off(A, SB, SS, LY.R_ST + 8192)
    final_publish(A, Y, T, 15, 16, SA, SB)
    A(f"s_branch {ne}")
    A.label(last)
    for q in range(4): A(f"v_cvt_pk_bf16_f32 v{T+q}, v{Y+2*q}, v{Y+2*q+1}")
    A(f"s_mul_i32 s44, s{SS}, 28672")
    A(f"buffer_store_dwordx4 {v(T,4)}, v17, s[40:43], s44 offen")
    A.label(ne)
    stampB(A, 4, 210)
    if LATEPRE:
        for n in range(28): A(hl(n))
        boundary_guard(A, SS, 212, HB)
    A("v_xor_b32 v13, 0x4000, v13"); A("v_xor_b32 v14, 0x4000, v14")
    A(f"s_add_u32 s{SS}, s{SS}, 1"); A(f"s_cmp_lt_u32 s{SS}, 64"); A(f"s_cbranch_scc1 {top}")
    if EV: A("s_waitcnt vmcnt(0)")
    event(A, SROLE, 4, 10)
    A("s_endpgm")
    for rl, bl, i in stubs:
        A.label(rl)
        sample_poll(A, 213, 66, 11, 65)
        p = Poll(A, 63); p.begin()
        for n in range(2*i, 28): A(hl(n))
        A("s_waitcnt vmcnt(0)")
        for t in chk_tree(A, range(HB+2*i*4, HB+28*4), 11): A(t)
        p.end()
        A(f"s_branch {bl}")

def roleF(A):
    A(f"s_lshr_b32 s{SL}, s{SROLE}, 5"); A(f"s_sub_u32 s{SL}, s{SL}, 5")
    A(f"s_cmp_ge_u32 s{SRANK}, 14"); A("s_cbranch_scc1 r_F2")
    roleF1(A)
    A.label("r_F2"); roleF2(A)

def gen_all(A, n0, n1):
    import gen_k0
    d0 = gen_k0.gen_k0(A, n0)
    d1 = gen_k1(A, n1, [(32, 96, "r_TA"), (96, 256, "r_rest")])
    A.label("r_rest")
    A(f"s_cmp_ge_u32 s{SRANK}, 28"); A("s_cbranch_scc1 r_fill")
    A(f"s_cmp_lt_u32 s{SROLE}, 160"); A("s_cbranch_scc1 r_U")
    A(f"s_cmp_lt_u32 s{SROLE}, 224"); A("s_cbranch_scc1 r_F")
    roleO(A)
    A.label("r_fill"); roleFill(A)
    A.label("r_TA"); roleTA(A)
    A.label("r_U"); roleU(A)
    A.label("r_F"); roleF(A)
    return d0 + d1
```

```python
import struct
from asmlib import *
import layout as LY

def f32(x): return "0x%08x" % struct.unpack("<I", struct.pack("<f", x))[0]

ARG = dict(x=4, mem0=6, wq=8, wk=10, wv=12, wo=14, wg=20, wu=22, wd=24, out=26, dbg=28, ws=30)
NB = dict(x=2048*448*2, mem0=8*448*2, wq=448*4096*2, wk=448*4096*2, wv=448*4096*2, wo=448*4096*2,
          wg=448*1792*2, wu=448*1792*2, wd=448*1792*2, out=2048*448*2, dbg=256, ws=LY.WS_BYTES)
WS = 32

def load_args(A):
    A("s_load_dwordx16 s[4:19], s[0:1], 0")
    A("s_load_dwordx8 s[20:27], s[0:1], 64")
    A("s_load_dwordx4 s[28:31], s[0:1], 96")
    A("s_waitcnt lgkmcnt(0)")

def srd(A, d, name, nbytes=None):
    p = ARG[name]
    A(f"s_mov_b32 s{d}, s{p}")
    A(f"s_and_b32 s{d+1}, s{p+1}, 0xffff")
    A(f"s_mov_b32 s{d+2}, {nbytes if nbytes is not None else NB[name]}")
    A(f"s_mov_b32 s{d+3}, 0x20000")

def sdiv(A, q, r, x, d, tmp):
    A(f"s_mov_b32 s{tmp}, {-(-(1 << 32) // d)}")
    A(f"s_mul_hi_u32 s{q}, s{x}, s{tmp}")
    A(f"s_mul_i32 s{tmp}, s{q}, {d}")
    A(f"s_sub_u32 s{r}, s{x}, s{tmp}")

def kernel_head(A, name):
    A.raw(".text"); A.raw(f".globl {name}"); A.raw(".p2align 8"); A.raw(f".type {name},@function"); A.label(name)

def kernel_desc(name, nvgpr, accum, nsgpr=102):
    return f""".section .rodata,"a"
.p2align 6
.amdhsa_kernel {name}
  .amdhsa_next_free_vgpr {nvgpr}
  .amdhsa_next_free_sgpr {nsgpr}
  .amdhsa_accum_offset {accum}
  .amdhsa_group_segment_fixed_size 0
  .amdhsa_kernarg_size 112
  .amdhsa_user_sgpr_count 2
  .amdhsa_user_sgpr_kernarg_segment_ptr 1
  .amdhsa_system_sgpr_workgroup_id_x 1
.end_amdhsa_kernel
"""

def wave_lane(A, sw, vl):
    A(f"v_lshrrev_b32 v{vl}, 6, v0")
    A(f"v_readfirstlane_b32 s{sw}, v{vl}")
    A(f"v_and_b32 v{vl}, 63, v0")

def dpp_reduce8(A, op, x, t):
    for ctl in ("quad_perm:[1,0,3,2]", "quad_perm:[2,3,0,1]", "row_half_mirror"):
        A(f"{op}_dpp v{x}, v{x}, v{x} {ctl} row_mask:0xf bank_mask:0xf")

def dpp_reduce16(A, op, x):
    for ctl in ("quad_perm:[1,0,3,2]", "quad_perm:[2,3,0,1]", "row_half_mirror", "row_mirror"):
        A(f"{op}_dpp v{x}, v{x}, v{x} {ctl} row_mask:0xf bank_mask:0xf")

import os
EV = bool(os.environ.get("EV"))
def event(A, sid, slot, vt, base=0):
    if not EV: return
    A("s_memrealtime s[100:101]")
    A(f"s_lshl_b32 s99, s{sid}, 5"); A(f"s_add_u32 s99, s99, {LY.DBG + base + slot*4}")
    A("s_waitcnt lgkmcnt(0)")
    A(f"v_mov_b32 v{vt}, s100"); A(f"v_mov_b32 v{vt+1}, 0")
    A(f"buffer_store_dword v{vt}, v{vt+1}, s[32:35], s99 offen")
```

```python
from gen_common import *

K0_NWG = 256
K0_LDS = 160 * 1024
ROWS = 65536
MM = "v_mfma_f32_16x16x32_bf16"

def stage_addrs(A, vg, vl, stride, tmp, st):
    A(f"s_mov_b32 s{st}, {-(-(1 << 32) // 56)}")
    for i in range(7):
        A(f"v_add_u32 v{tmp}, {256*i}, v0")
        A(f"v_mul_hi_u32 v{tmp+1}, v{tmp}, s{st}")
        A(f"v_mul_u32_u24 v{tmp+2}, 56, v{tmp+1}")
        A(f"v_sub_u32 v{tmp}, v{tmp}, v{tmp+2}")
        A(f"v_lshlrev_b32 v{tmp}, 4, v{tmp}")
        A(f"v_mul_u32_u24 v{tmp+2}, {stride}, v{tmp+1}")
        A(f"v_add_u32 v{vg+i}, v{tmp}, v{tmp+2}")
        A(f"v_mul_u32_u24 v{tmp+2}, 960, v{tmp+1}")
        A(f"v_add_u32 v{vl+i}, v{tmp}, v{tmp+2}")

def tr_addrs(A, vt, vlane, sw, tmp, st):
    A(f"v_lshrrev_b32 v{tmp}, 4, v{vlane}")
    A(f"v_lshlrev_b32 v{tmp}, 3, v{tmp}")
    A(f"v_bfe_u32 v{tmp+1}, v{vlane}, 2, 2")
    A(f"v_add_u32 v{tmp}, v{tmp}, v{tmp+1}")
    A(f"v_mul_u32_u24 v{tmp}, 960, v{tmp}")
    A(f"v_and_b32 v{tmp+1}, 3, v{vlane}")
    A(f"v_lshlrev_b32 v{tmp+1}, 4, v{tmp+1}")
    A(f"v_add_u32 v{tmp}, v{tmp}, v{tmp+1}")
    for j in range(7):
        A(f"s_mul_i32 s{st}, s{sw}, 7")
        A(f"s_add_u32 s{st}, s{st}, {j}")
        A(f"s_and_b32 s{st+1}, s{st}, 1")
        A(f"s_lshl_b32 s{st+1}, s{st+1}, 3")
        A(f"s_lshr_b32 s{st}, s{st}, 1")
        A(f"s_lshl_b32 s{st}, s{st}, 6")
        A(f"s_add_u32 s{st}, s{st}, s{st+1}")
        A(f"v_add_u32 v{vt+j}, s{st}, v{tmp}")

def rowperm_off(A, vd, vlane, stride, tmp):
    A(f"v_bfe_u32 v{tmp}, v{vlane}, 2, 2")
    A(f"v_lshlrev_b32 v{tmp}, 3, v{tmp}")
    A(f"v_and_b32 v{vd}, 3, v{vlane}")
    A(f"v_add_u32 v{vd}, v{vd}, v{tmp}")
    A(f"v_mul_u32_u24 v{vd}, {stride}, v{vd}")
    A(f"v_lshrrev_b32 v{tmp}, 4, v{vlane}")
    A(f"v_lshlrev_b32 v{tmp}, 4, v{tmp}")
    A(f"v_add_u32 v{vd}, v{vd}, v{tmp}")

def tile_dma(A, srdn, soff, ldsbase_s, ldsoff):
    for q in range(8):
        A(f"s_add_u32 m0, s{ldsbase_s}, {ldsoff + q*1024}"); A("s_nop 0")
        A(f"buffer_load_dwordx4 v{200+q}, s[{srdn}:{srdn+3}], s{soff} offen lds")

def gemm_issue(A, isB):
    srd(A, 76, "wv" if isB else "wq")
    srd(A, 80, "wo" if isB else "wk")
    rowperm_off(A, 2, 1, 8192, 3)
    for q in range(8):
        A("v_lshrrev_b32 v3, 5, v1"); A(f"v_add_u32 v3, {2*q}, v3"); A("v_and_b32 v4, 31, v1"); A("v_xor_b32 v4, v4, v3")
        A("v_lshrrev_b32 v5, 2, v3"); A("v_lshlrev_b32 v5, 3, v5"); A("v_and_b32 v3, 3, v3"); A("v_add_u32 v3, v3, v5")
        A("v_lshlrev_b32 v3, 13, v3"); A(f"v_lshl_add_u32 v{200+q}, v4, 4, v3")
    A("s_lshl_b32 s52, s70, 9")
    A("s_mul_i32 s74, s72, 7"); A("s_lshl_b32 s53, s73, 1"); A("s_add_u32 s74, s74, s53")
    A("s_cmp_lt_u32 s73, 3"); A("s_cselect_b32 s75, 1, 0"); A("s_add_u32 s75, s75, s74")
    for u in range(2):
        for b in range(2):
            A(f"s_lshl_b32 s53, s{74+u}, 5"); A(f"s_add_u32 s53, s53, {4*b}"); A("s_lshl_b32 s53, s53, 13"); A(f"s_add_u32 s{84+2*u+b}, s53, s52")
    if not isB:
        A("s_mov_b32 s55, 0")
        for q in range(2):
            sk = A.new("ct")
            if q: A("s_cmp_eq_u32 s73, 3"); A(f"s_cbranch_scc1 {sk}")
            A("s_mul_i32 s53, s71, 7"); A("s_add_u32 s53, s53, s73"); A(f"s_add_u32 s53, s53, {4*q}"); A("s_and_b32 s54, s53, 1"); A("s_lshl_b32 s54, s54, 2")
            A("s_lshr_b32 s53, s53, 1"); A("s_lshl_b32 s53, s53, 5"); A("s_add_u32 s53, s53, s54"); A("s_lshl_b32 s53, s53, 13"); A("s_add_u32 s53, s53, s52")
            A("s_lshl_b32 s54, s73, 13")
            tile_dma(A, 80, 53, 54, q * 32768)
            A.label(sk)
    else:
        A("v_lshrrev_b32 v3, 4, v1"); A("v_lshlrev_b32 v4, 2, v3"); A("v_sub_u32 v4, v1, v4"); A("v_and_b32 v4, 15, v4")
        A("v_mul_u32_u24 v3, 896, v3"); A("v_lshl_add_u32 v3, v4, 4, v3")
        A("s_mul_i32 s53, s71, 7"); A("s_lshr_b32 s53, s53, 1"); A("s_lshl_b32 s53, s53, 6")
        A("s_mul_i32 s54, s70, 229376"); A("s_add_u32 s53, s53, s54"); A(f"s_mul_i32 s54, s73, {64*896}"); A("s_add_u32 s53, s53, s54")
        for q in range(16):
            A("s_lshl_b32 s54, s73, 14"); A(f"s_add_u32 m0, s54, {q*1024}"); A("s_nop 0")
            A("buffer_load_dwordx4 v3, s[80:83], s53 offen lds")
            A(f"s_add_u32 s53, s53, {4*896}")
    w3 = A.new("w3"); dn = A.new("dn")
    A("s_cmp_eq_u32 s73, 3"); A(f"s_cbranch_scc1 {w3}")
    A("s_lshl_b32 s54, s73, 15")
    for rt in range(4): tile_dma(A, 76, 84 + rt, 54, ROWS + rt * 8192)
    A(f"s_branch {dn}")
    A.label(w3)
    for es in range(8):
        for rt in range(2):
            A(f"buffer_load_dwordx4 {a((es*4+rt)*4,4)}, v2, s[76:79], s{84+rt} offen offset:{es*64}")
    A.label(dn)

def gemm_run(A, isB):
    A("v_and_b32 v1, 63, v0"); A("v_lshlrev_b32 v3, 4, v1")
    ACC, CF, VT, VS = 8, 120, 176, 184
    acc = lambda rt, j: v(ACC + (rt * 7 + j) * 4, 4)
    A("v_and_b32 v4, 15, v1"); A("v_lshrrev_b32 v5, 4, v1")
    for e4 in range(4):
        A(f"v_add_u32 v6, {4*e4}, v5"); A("v_xor_b32 v6, v6, v4"); A("v_lshlrev_b32 v6, 4, v6"); A(f"v_lshl_add_u32 v{VS+e4}, v4, 9, v6")
        A("s_lshl_b32 s53, s73, 15"); A(f"s_add_u32 s53, s53, {ROWS}"); A(f"v_add_u32 v{VS+4+e4}, s53, v{VS+e4}")
    if isB:
        A("v_lshrrev_b32 v4, 4, v1"); A("v_lshlrev_b32 v4, 3, v4"); A("v_bfe_u32 v5, v1, 2, 2"); A("v_add_u32 v4, v4, v5"); A("v_lshlrev_b32 v4, 8, v4")
        A("v_and_b32 v6, 3, v1"); A("v_lshl_add_u32 v6, v5, 2, v6")
        for j in range(7):
            A("s_and_b32 s53, s71, 1"); A(f"s_add_u32 s53, s53, {j}")
            A("s_lshr_b32 s54, s53, 1"); A("s_lshl_b32 s54, s54, 2"); A("s_and_b32 s53, s53, 1"); A("s_lshl_b32 s53, s53, 3")
            A("v_add_u32 v7, s54, v6"); A("v_and_b32 v7, 15, v7"); A("v_lshl_add_u32 v7, v7, 4, v4"); A(f"v_add_u32 v{VT+j}, s53, v7")
    A("s_waitcnt vmcnt(0)"); A("s_barrier")
    event(A, 2, 4, 230, 65536)
    nr = A.new("nr")
    A("s_cmp_eq_u32 s73, 3"); A(f"s_cbranch_scc1 {nr}")
    for es in range(8):
        for rt in range(4): A(f"ds_read_b128 {a((es*4+rt)*4,4)}, v{VS+4+(es&3)} offset:{rt*8192 + (es>>2)*256}")
        if es & 1: A("s_waitcnt lgkmcnt(4)")
    A.label(nr)
    def rd(es):
        bs = es & 1
        for j in range(7):
            if isB:
                for hh in range(2): A(f"ds_read_b64_tr_b16 {v(CF+bs*28+j*4+hh*2,2)}, v{VT+j} offset:{es*8192 + hh*1024}")
            else: A(f"ds_read_b128 {v(CF+bs*28+j*4,4)}, v{VS+(es&3)} offset:{j*8192 + (es>>2)*256}")
    rd(0)
    for es in range(8):
        A("s_waitcnt lgkmcnt(0)")
        if es < 7: rd(es + 1)
        bs = es & 1
        for rt in range(4):
            for j in range(7):
                A(f"{MM} {acc(rt,j)}, {a((es*4+rt)*4,4)}, {v(CF+bs*28+j*4,4)}, {acc(rt,j) if es else 0}")
    event(A, 2, 5, 230, 65536)
    if not isB: A(f"s_mov_b32 s55, {f32(LY.LOG2E / 16.0)}")
    fin = A.new("fin")
    for u in range(2):
        if u: A("s_cmp_eq_u32 s73, 3"); A(f"s_cbranch_scc1 {fin}")
        for j in range(7):
            a0 = ACC + ((2*u) * 7 + j) * 4; b0 = ACC + ((2*u+1) * 7 + j) * 4
            if not isB:
                for r in range(4):
                    A(f"v_mul_f32 v{a0+r}, s55, v{a0+r}")
                    A(f"v_mul_f32 v{b0+r}, s55, v{b0+r}")
            A(f"v_cvt_pk_bf16_f32 v{a0}, v{a0}, v{a0+1}")
            A(f"v_cvt_pk_bf16_f32 v{a0+1}, v{a0+2}, v{a0+3}")
            A(f"v_cvt_pk_bf16_f32 v{a0+2}, v{b0}, v{b0+1}")
            A(f"v_cvt_pk_bf16_f32 v{a0+3}, v{b0+2}, v{b0+3}")
            A(f"s_mul_i32 s53, s71, 7"); A(f"s_add_u32 s53, s53, {j}")
            if not isB:
                A("s_mul_i32 s54, s70, 28"); A("s_add_u32 s53, s53, s54")
            else:
                A("s_lshl_b32 s53, s53, 4"); A("s_add_u32 s53, s53, s70")
            A("s_mul_i32 s53, s53, 14"); A(f"s_add_u32 s53, s53, s{74+u}")
            A(f"s_add_u32 s53, s53, {(LY.BF if isB else LY.AF)//1024}")
            A("s_lshl_b32 s53, s53, 10")
            A(f"buffer_store_dwordx4 {v(a0,4)}, v3, s[32:35], s53 offen{os.environ.get('K0ST', '')}")
    A.label(fin)
    if EV: A("s_waitcnt vmcnt(0)")
    event(A, 2, 1, 230, 65536)
    A("s_endpgm")

def ln1(A):
    srd(A, 36, "x")
    A("s_lshr_b32 s48, s2, 2"); A("s_and_b32 s49, s2, 3"); A("s_lshl_b32 s49, s49, 3")
    A("v_lshrrev_b32 v2, 3, v1"); A("v_add_u32 v2, s49, v2")
    A("v_and_b32 v3, 7, v1")
    A("v_mul_u32_u24 v4, 896, v2")
    A("v_lshl_add_u32 v4, v3, 4, v4")
    A("s_mul_i32 s56, s48, 28672")
    for i in range(7):
        A(f"buffer_load_dwordx4 {v(8+i*4,4)}, v4, s[36:39], s56 offen offset:{i*128}")
    A("v_lshrrev_b32 v5, 4, v2")
    A("v_mul_u32_u24 v5, 14, v5")
    A("v_lshrrev_b32 v6, 2, v3")
    A("v_add_u32 v5, v5, v6")
    A("v_lshlrev_b32 v5, 10, v5")
    A("v_and_b32 v6, 3, v3")
    A("v_lshlrev_b32 v6, 4, v6")
    A("v_and_b32 v7, 15, v2")
    A("v_add_u32 v6, v6, v7")
    A("v_lshl_add_u32 v199, v6, 4, v5")


def ln1_finish(A):
    X = 40
    for n in range(28):
        A(f"v_lshlrev_b32 v{X+2*n}, 16, v{8+n}")
        A(f"v_and_b32 v{X+2*n+1}, 0xffff0000, v{8+n}")
    A(f"v_add_f32 v6, v{X}, v{X+1}")
    A(f"v_add_f32 v7, v{X+2}, v{X+3}")
    for n in range(4, 56, 2):
        A(f"v_add_f32 v6, v6, v{X+n}")
        A(f"v_add_f32 v7, v7, v{X+n+1}")
    A("v_add_f32 v6, v6, v7")
    dpp_reduce8(A, "v_add_f32", 6, 7)
    A(f"v_mul_f32 v6, {f32(1/448)}, v6")
    for n in range(56):
        A(f"v_sub_f32 v{X+n}, v{X+n}, v6")
    A(f"v_mul_f32 v6, v{X}, v{X}")
    A(f"v_mul_f32 v7, v{X+1}, v{X+1}")
    for n in range(2, 56, 2):
        A(f"v_fmac_f32 v6, v{X+n}, v{X+n}")
        A(f"v_fmac_f32 v7, v{X+n+1}, v{X+n+1}")
    A("v_add_f32 v6, v6, v7")
    dpp_reduce8(A, "v_add_f32", 6, 7)
    A(f"v_mov_b32 v7, {f32(1e-5)}")
    A(f"v_fmac_f32 v7, {f32(1/448)}, v6")
    A("v_rsq_f32 v7, v7")
    for n in range(56):
        A(f"v_mul_f32 v{X+n}, v{X+n}, v7")
    for n in range(28):
        A(f"v_cvt_pk_bf16_f32 v{8+n}, v{X+2*n}, v{X+2*n+1}")
    A(f"s_add_u32 s56, s56, {LY.XS}")
    for i in range(7):
        A(f"buffer_store_dwordx4 {v(8+i*4,4)}, v199, s[32:35], s56 offen")
        A("s_add_u32 s56, s56, 2048")

def fills(A):
    A("s_mov_b32 s48, s2")
    A("s_lshl_b32 s49, s48, 12")
    A("v_lshl_add_u32 v2, v0, 4, s49")
    for r in range(4): A(f"v_mov_b32 v{4+r}, -1")
    for r in range(4): A(f"v_mov_b32 v{8+r}, 0")
    rngs = []
    for base in (LY.MS, LY.MB):
        for l in range(2): rngs.append((base + l*64*7168 + 7168, base + (l+1)*64*7168, 4))
    rngs += [(LY.PC, LY.SENT_END, 4), (LY.FL, LY.FL_END, 8)]
    for (lo, hi, reg) in rngs:
        A(f"s_mov_b32 s34, {hi}")
        A(f"s_mov_b32 s50, {lo}")
        L = A.new("fill")
        A.label(L)
        A(f"buffer_store_dwordx4 {v(reg,4)}, v2, s[32:35], s50 offen{os.environ.get('K0ST', '')}")
        A("s_add_u32 s50, s50, 1048576")
        A(f"s_cmp_lt_u32 s50, {hi}")
        A(f"s_cbranch_scc1 {L}")
    A(f"s_mov_b32 s34, {LY.WS_BYTES}")
    done = A.new("done")
    A("s_cmp_ge_u32 s48, 7"); A(f"s_cbranch_scc1 {done}")
    srd(A, 36, "mem0")
    A("v_lshrrev_b32 v12, 5, v0"); A("v_and_b32 v13, 31, v0")
    A("v_mul_u32_u24 v3, 896, v12"); A("v_lshl_add_u32 v3, v13, 2, v3"); A("s_lshl_b32 s50, s48, 7")
    A("buffer_load_dword v14, v3, s[36:39], s50 offen")
    A("v_lshrrev_b32 v15, 4, v13"); A("v_lshlrev_b32 v15, 9, v15"); A("v_bfe_u32 v16, v13, 2, 2"); A("v_lshl_add_u32 v16, v16, 3, v12")
    A("v_lshl_add_u32 v15, v16, 4, v15"); A("v_and_b32 v16, 3, v13"); A("v_lshl_add_u32 v15, v16, 2, v15")
    A("v_lshrrev_b32 v17, 3, v13"); A("v_lshlrev_b32 v17, 4, v17"); A("v_lshl_add_u32 v17, v12, 1, v17"); A("v_and_b32 v16, 1, v13")
    A("v_add_u32 v17, v17, v16"); A("v_lshlrev_b32 v17, 4, v17"); A("v_bfe_u32 v16, v13, 1, 2"); A("v_lshl_add_u32 v17, v16, 2, v17")
    A("s_lshl_b32 s50, s48, 10")
    A("s_waitcnt vmcnt(0)")
    A("v_min_u32 v14, -2, v14")
    for l in range(2):
        for base, va in ((LY.MS, 17), (LY.MB, 15)):
            A(f"s_add_u32 s51, s50, {base + l*64*7168}")
            A(f"buffer_store_dword v14, v{va}, s[32:35], s51 offen")
    A.label(done)

def gen_k0(A, name):
    kernel_head(A, name)
    A(f"s_cmp_ge_u32 s2, {K0_NWG}")
    A("s_cbranch_scc1 k0_exit")
    load_args(A)
    srd(A, WS, "ws")
    event(A, 2, 0, 230, 65536)
    wave_lane(A, 73, 1)
    A("s_and_b32 s70, s2, 7"); A("s_lshl_b32 s70, s70, 1"); A("s_bfe_u32 s71, s2, 0x10006"); A("s_add_u32 s70, s70, s71")
    A("s_bfe_u32 s71, s2, 0x20004"); A("s_bfe_u32 s72, s2, 0x10003")
    A("v_mov_b32 v199, 0"); A(f"s_mov_b32 s56, {LY.WS_BYTES}")
    fills(A)
    A("s_cmp_lg_u32 s73, 3"); A("s_cbranch_scc1 k0_noln")
    ln1(A)
    A.label("k0_noln")
    A("s_cmp_ge_u32 s2, 128"); A("s_cbranch_scc1 k0_ib")
    gemm_issue(A, False)
    A("s_branch k0_small")
    A.label("k0_ib")
    gemm_issue(A, True)
    A.label("k0_small")
    event(A, 2, 2, 230, 65536)
    A("s_cmp_lg_u32 s73, 3"); A("s_cbranch_scc1 k0_run")
    A("s_waitcnt vmcnt(24)")
    ln1_finish(A)
    A.label("k0_run")
    event(A, 2, 3, 230, 65536)
    A("s_cmp_ge_u32 s2, 128"); A("s_cbranch_scc1 k0_rb")
    gemm_run(A, False)
    A.label("k0_rb")
    gemm_run(A, True)
    A.label("k0_exit")
    A("s_endpgm")
    return kernel_desc(name, 400, 256)
```

```python
import os
from gen_common import *
MM = "v_mfma_f32_16x16x32_bf16"
MM16 = "v_mfma_f32_16x16x16_bf16"
K1_LDS = 160 * 1024 - 512
CAPS = [32, 32, 32, 32, 32, 32, 32, 32]
NPOLL = int(os.environ.get('NPOLL', '2'))
PRE_SM = int(os.environ.get('PRE_SM', '11'))
TOUCH = int(os.environ.get('TOUCH', '0'))
TPOS = int(os.environ.get('TPOS', '31'))
UEARLY = int(os.environ.get('UEARLY', '0'))
SPLIT = int(os.environ.get('SPLIT', '0'))
TFIRST = int(os.environ.get('TFIRST', '0'))
DOFF = int(os.environ.get('DOFF', '3'))
DMODE = int(os.environ.get('DMODE', '1'))
DSTEP = int(os.environ.get('DSTEP', '3'))
DMA_IN = int(os.environ.get('DMA_IN', '8'))
TMO = 60000
OOB = 0x40000000
NFILL = 20
SW, SROLE, SRANK, SK, STMO, SFAST = 48, 49, 50, 51, 52, 53
DIAG = False

def fail(A, code):
    A(f"s_mov_b32 s54, {code}")
    A("s_branch k1_fail")

BULKSLEEP = int(os.environ.get('BULKSLEEP', '2'))
GATE = int(os.environ.get('GATE', '0'))
XLEAD = int(os.environ.get('XLEAD', '0'))
class Poll:
    def __init__(self, A, code, sleep=0):
        if 30 <= code < 70 and sleep < BULKSLEEP: sleep = BULKSLEEP
        self.A = A; self.code = code; self.sleep = sleep
        self.top = A.new("poll"); self.ok = A.new("pok")
    def begin(self):
        self.A(f"s_mov_b32 s{STMO}, {TMO}")
        self.A.label(self.top)
    def end(self):
        A = self.A
        A(f"s_cbranch_vccz {self.ok}")
        if self.sleep: A(f"s_sleep {self.sleep}")
        A(f"s_sub_u32 s{STMO}, s{STMO}, 1")
        A(f"s_cbranch_scc0 {self.top}")
        fail(A, self.code)
        A.label(self.ok)

def chk_tree(A, regs_, t):
    out = []; rs = list(regs_)
    if len(rs) >= 3:
        out.append(f"v_max3_u32 v{t}, v{rs[0]}, v{rs[1]}, v{rs[2]}"); rs = rs[3:]
    else:
        out.append(f"v_max_u32 v{t}, v{rs[0]}, v{rs[1]}"); rs = rs[2:]
    while len(rs) >= 2:
        out.append(f"v_max3_u32 v{t}, v{t}, v{rs[0]}, v{rs[1]}"); rs = rs[2:]
    if rs: out.append(f"v_max_u32 v{t}, v{t}, v{rs[0]}")
    out.append(f"v_cmp_eq_u32 vcc, -1, v{t}")
    return out

FINE = os.environ.get('FINE', '')
def stamp(A, slot, vt=None):
    if not DIAG or FINE: return
    A(f"s_memrealtime s[{90+2*slot}:{91+2*slot}]")

def fine(A, name):
    if not DIAG or not FINE: return
    names = [n for n in FINE.split(",") if n[0] == name[0]]
    if name in names: A(f"s_memtime s[{90+2*names.index(name)}:{91+2*names.index(name)}]")

def stamp_flush(A, vt):
    if not DIAG: return
    A(f"s_mul_i32 s44, s{SROLE}, {LY.MAXSTEP}")
    A(f"s_add_u32 s44, s44, s{SK}")
    A(f"s_lshl_b32 s44, s44, 2")
    A(f"s_add_u32 s44, s44, s{SW}")
    A(f"s_lshl_b32 s44, s44, 5")
    A(f"s_add_u32 s44, s44, {LY.DBG}")
    A("s_waitcnt lgkmcnt(0)")
    for i in range(4): A(f"v_mov_b32 v{vt+i}, s{90+2*i}")
    A(f"v_mov_b32 v{vt+4}, 0")
    A(f"buffer_store_dwordx4 {v(vt,4)}, v{vt+4}, s[32:35], s44 offen")
    if FINE:
        A("s_nop 1")
        A(f"v_mov_b32 v{vt}, s98"); A(f"v_mov_b32 v{vt+1}, s100"); A(f"v_mov_b32 v{vt+2}, s{STMO}"); A(f"v_mov_b32 v{vt+3}, s57")
        A(f"buffer_store_dwordx4 {v(vt,4)}, v{vt+4}, s[32:35], s44 offen offset:16")
        A("s_mov_b32 s57, 0")

DIAGB = True
EVSEG = int(os.environ.get('EVSEG', '40'))
def stampB(A, slot, vt):
    if EV and not DIAG:
        sk = A.new("ev")
        A(f"s_cmp_lg_u32 s{SK}, {EVSEG}"); A(f"s_cbranch_scc1 {sk}")
        sk2 = A.new("ev")
        A(f"s_cmp_lg_u32 s{SW}, 0"); A(f"s_cbranch_scc1 {sk}")
        event(A, SROLE, slot, vt, 16384)
        A.label(sk)
        return
    if not DIAG or not DIAGB: return
    A("s_memrealtime s[100:101]")
    A(f"s_mul_i32 s99, s{SROLE}, {LY.MAXSTEP}")
    A(f"s_add_u32 s99, s99, s{SK}")
    A(f"s_lshl_b32 s99, s99, 2")
    A(f"s_add_u32 s99, s99, s{SW}")
    A(f"s_lshl_b32 s99, s99, 5")
    A(f"s_add_u32 s99, s99, {LY.DBG + slot*4}")
    A("s_waitcnt lgkmcnt(0)")
    A(f"v_mov_b32 v{vt}, s100"); A(f"v_mov_b32 v{vt+1}, 0")
    A(f"buffer_store_dword v{vt}, v{vt+1}, s[32:35], s99 offen")

def dispatch(A):
    A("s_cmp_ge_u32 s2, 256"); A("s_cbranch_scc1 k1_exit")
    load_args(A)
    srd(A, WS, "ws"); srd(A, 36, "dbg")
    event(A, 2, 0, 10, 32768)
    wave_lane(A, SW, 1)
    A("v_lshlrev_b32 v2, 4, v1")
    A(f"s_mov_b32 s{SK}, 0")
    A(f"s_mov_b32 s{SFAST}, 0")
    A(f"s_mov_b32 s{SROLE}, 999")
    A(f"s_cmp_lg_u32 s{SW}, 0"); A("s_cbranch_scc1 k1_role_wait")
    A("s_getreg_b32 s55, hwreg(HW_REG_XCC_ID, 0, 4)")
    A("s_lshl_b32 s56, s55, 7")
    A(f"s_add_u32 s56, s56, {LY.CNT}")
    A("v_mov_b32 v3, 1")
    A(f"v_cmp_eq_u32 vcc, 0, v1")
    A(f"v_mov_b32 v4, {OOB}")
    A("v_cndmask_b32 v4, v4, 0, vcc" if False else "v_cndmask_b32 v4, v4, v1, vcc")
    A("buffer_atomic_add v3, v4, s[32:35], s56 offen sc0 sc1")
    A("s_waitcnt vmcnt(0)")
    A(f"v_readfirstlane_b32 s{SRANK}, v3")
    A("s_mov_b32 s57, 0")
    for x, c in enumerate(CAPS):
        A(f"s_cmp_eq_u32 s55, {x}"); A(f"s_cselect_b32 s57, {c}, s57")
    A(f"s_cmp_lt_u32 s{SRANK}, s57"); A("s_cbranch_scc0 k1_left")
    A(f"s_lshl_b32 s{SROLE}, s55, 5")
    A(f"s_add_u32 s{SROLE}, s{SROLE}, s{SRANK}")
    A("s_branch k1_role_put")
    A.label("k1_left")
    A("v_mov_b32 v3, 1")
    A(f"s_mov_b32 s56, {LY.CNT + 16*128}")
    A("buffer_atomic_add v3, v4, s[32:35], s56 offen sc0 sc1")
    A("s_waitcnt vmcnt(0)")
    A("v_readfirstlane_b32 s58, v3")
    wait_all_registered(A, 1)
    for x, c in enumerate(CAPS):
        if c == 0: continue
        nxt = A.new("lf")
        A(f"v_readlane_b32 s59, v5, {x}")
        A(f"s_min_u32 s59, s59, {c}")
        A(f"s_sub_u32 s60, {c}, s59")
        A(f"s_cmp_lt_u32 s58, s60"); A(f"s_cbranch_scc0 {nxt}")
        A(f"s_add_u32 s{SROLE}, s59, s58")
        A(f"s_add_u32 s{SROLE}, s{SROLE}, {x*32}")
        A("s_branch k1_role_put")
        A.label(nxt)
        A("s_sub_u32 s58, s58, s60")
    A.label("k1_role_put")
    A(f"v_mov_b32 v3, s{SROLE}")
    A("v_mov_b32 v4, 0")
    A("ds_write_b32 v4, v3")
    A("s_waitcnt lgkmcnt(0)")
    A.label("k1_role_wait")
    A("s_barrier")
    A("v_mov_b32 v4, 0")
    A("ds_read_b32 v3, v4")
    A("s_waitcnt lgkmcnt(0)")
    A(f"v_readfirstlane_b32 s{SROLE}, v3")
    A("s_barrier")
    A(f"s_and_b32 s{SRANK}, s{SROLE}, 31")
    event(A, SROLE, 0, 10)

def wait_all_registered(A, code, or_chain_full=False):
    A("v_and_b32 v6, 15, v1"); A("v_lshlrev_b32 v6, 7, v6")
    A(f"s_mov_b32 s56, {LY.CNT}")
    p = Poll(A, code, sleep=4); p.begin()
    A("buffer_load_dword v5, v6, s[32:35], s56 offen sc1")
    A("s_waitcnt vmcnt(0)")
    A("v_mov_b32 v7, v5")
    dpp_reduce16(A, "v_add_u32", 7)
    A("v_cmp_ne_u32 vcc, 0x100, v7")
    if or_chain_full:
        A("v_readlane_b32 s59, v5, 0")
        A(f"s_cmp_ge_u32 s59, {CAPS[0]}")
        A(f"s_cselect_b32 s{SFAST}, 1, 0")
        A("s_cselect_b64 vcc, 0, vcc")
    p.end()

def wregA(j, slot):
    n = j * 14 + slot
    return a(n * 4, 4) if n < 64 else v(120 + (n - 64) * 4, 4)

def a_slots_setup(A, SM, ST_, hreg):
    A(f"s_and_b32 s46, s{SW}, 1")
    A(f"s_mul_i32 s47, s{SW}, 7")
    A(f"s_lshr_b32 s44, s47, 1")
    for i in range(14):
        if i < 10:
            A(f"s_add_u32 s45, s44, {4+i}")
            A(f"s_cmp_ge_u32 s45, 14"); A(f"s_cselect_b32 s55, 14, 0"); A(f"s_sub_u32 s45, s45, s55")
        elif i < 13:
            A(f"s_add_u32 s45, s44, {i-10}"); A(f"s_add_u32 s45, s45, s46")
        else:
            A(f"s_cmp_eq_u32 s46, 0"); A(f"s_cselect_b32 s55, 3, 0"); A(f"s_add_u32 s45, s44, s55")
        A(f"s_lshl_b32 s{SM+i}, s45, 10")
    for j in range(7):
        if j < 6:
            A(f"s_add_u32 s45, s47, {j}"); A(f"s_add_u32 s45, s45, s46")
        else:
            A(f"s_cmp_eq_u32 s46, 0"); A(f"s_cselect_b32 s55, 6, 0"); A(f"s_add_u32 s45, s47, s55")
        A(f"s_mul_i32 s55, s{hreg}, 28"); A("s_add_u32 s45, s45, s55")
        A(f"s_mul_i32 s45, s45, 14336")
        A(f"s_add_u32 s{ST_+j}, s45, {LY.AF}")

def load_A_weights(A, SM, ST_, wreg):
    for j in range(7):
        for i in range(14):
            A(f"s_add_u32 s45, s{ST_+j}, s{SM+i}")
            A(f"buffer_load_dwordx4 {wreg(j,i)}, v2, s[32:35], s45 offen")

SMF = "v_smfmac_f32_16x16x64_bf16"
SLY, SSG, SNL, SNS = 40, 41, 42, 43

def next_phase(A, l, s, nl, ns):
    d = A.new("np"); o = A.new("np1")
    A(f"s_cmp_eq_u32 s{l}, 0"); A(f"s_cbranch_scc0 {o}")
    A(f"s_sub_i32 s{ns}, s{s}, {LY.LAG}"); A(f"s_mov_b32 s{nl}, 1")
    A(f"s_cmp_ge_i32 s{ns}, 0"); A(f"s_cbranch_scc1 {d}")
    A(f"s_add_u32 s{ns}, s{s}, 1"); A(f"s_mov_b32 s{nl}, 0"); A(f"s_branch {d}")
    A.label(o)
    A(f"s_add_u32 s{ns}, s{s}, {LY.LAG + 1}"); A(f"s_mov_b32 s{nl}, 0")
    A(f"s_cmp_lt_u32 s{ns}, 64"); A(f"s_cbranch_scc1 {d}")
    A(f"s_add_u32 s{ns}, s{s}, 1"); A(f"s_mov_b32 s{nl}, 1")
    A.label(d)

def ls_off(A, sd, l, s, per, base):
    A(f"s_lshl_b32 s{sd}, s{l}, 6"); A(f"s_add_u32 s{sd}, s{sd}, s{s}"); A(f"s_mul_i32 s{sd}, s{sd}, {per}"); A(f"s_add_u32 s{sd}, s{sd}, {base}")

def sparse_idx(A, vd, t):
    A(f"v_and_b32 v{t}, 1, v1"); A(f"v_cmp_eq_u32 vcc, 0, v{t}")
    A(f"v_mov_b32 v{vd}, 0xeeee"); A(f"v_mov_b32 v{t}, 0x4444"); A(f"v_cndmask_b32 v{vd}, v{vd}, v{t}, vcc")

def wregA8(j, i):
    n = j * 14 + 2 * i
    return a(n * 4, 8) if n < 64 else v(120 + (n - 64) * 4, 8)

S0, S1, SALT, SPRE = 40, 41, 42, 43

def softmax16(A, T, vmask, fill, stores, stubs):
    fill = list(fill)
    def F(n):
        for _ in range(n):
            if fill: A(fill.pop(0))
    S = (T+8, T+9, T, T+1); E = (T+12, T+13, T+4, T+5)
    slow, back = A.new("smx"), A.new("smb")
    A("s_waitcnt lgkmcnt(2)")
    A(f"v_pk_add_f32 {v(T,2)}, {v(T,2)}, {v(T+2,2)}")
    A(f"v_pk_add_f32 {v(T+4,2)}, {v(T+4,2)}, {v(T+6,2)}")
    A("s_waitcnt lgkmcnt(0)")
    A(f"v_pk_add_f32 {v(T+8,2)}, {v(T+8,2)}, {v(T+10,2)}")
    A(f"v_pk_add_f32 {v(T+12,2)}, {v(T+12,2)}, {v(T+14,2)}")
    A(f"v_pk_add_f32 {v(T,2)}, {v(T,2)}, {v(T+4,2)}")
    A(f"v_pk_add_f32 {v(T+8,2)}, {v(T+8,2)}, {v(T+12,2)}")
    fine(A, "a5")
    A(f"v_exp_f32 v{E[2]}, v{S[2]}"); A(f"v_exp_f32 v{E[3]}, v{S[3]}")
    A(f"v_max3_f32 v{T+2}, abs(v{T}), abs(v{T+1}), abs(v{T+8})")
    A(f"v_exp_f32 v{E[0]}, v{S[0]}"); A(f"v_exp_f32 v{E[1]}, v{S[1]}")
    A(f"v_max_f32 v{T+2}, v{T+2}, abs(v{T+9})")
    A(f"v_cmp_nge_f32 vcc, s80, v{T+2}")
    A(f"s_cbranch_vccnz {slow}")
    A.label(back)
    def tail(F, sane):
        A(f"v_add_f32 v{T+2}, v{E[2]}, v{E[3]}")
        A(f"v_add_f32 v{T+3}, v{E[0]}, v{E[1]}")
        A(f"v_fmac_f32 v{T+2}, v{vmask}, v{T+3}")
        for ctl in ("quad_perm:[1,0,3,2]", "quad_perm:[2,3,0,1]", "row_half_mirror", "row_mirror"):
            F(2); A(f"v_add_f32_dpp v{T+2}, v{T+2}, v{T+2} {ctl} row_mask:0xf bank_mask:0xf")
        A(f"v_rcp_f32 v{T+2}, v{T+2}")
        F(1)
        A(f"v_pk_mul_f32 {v(T+4,2)}, {v(T+4,2)}, {v(T+2,2)} op_sel_hi:[1,0]")
        A(f"v_pk_mul_f32 {v(T+12,2)}, {v(T+12,2)}, {v(T+2,2)} op_sel_hi:[1,0]")
        A(f"v_cvt_pk_bf16_f32 v{T}, v{T+4}, v{T+5}")
        A(f"v_cvt_pk_bf16_f32 v{T+8}, v{T+12}, v{T+13}")
        if sane: A(f"v_min_u32 v{T}, -2, v{T}"); A(f"v_min_u32 v{T+8}, -2, v{T+8}")
    tail(F, True)
    st = A.new("sms"); A.label(st)
    A(stores[0]); A(stores[1])
    used = None
    def stub(rest=list(fill)):
        A.label(slow)
        A(f"v_max_f32 v{T+2}, v{T}, v{T+1}")
        A(f"v_max3_f32 v{T+2}, v{T+2}, v{T+8}, v{T+9}")
        dpp_reduce16(A, "v_max_f32", T+2)
        for s_, e_ in zip(S, E): A(f"v_sub_f32 v{e_}, v{s_}, v{T+2}")
        for e_ in E: A(f"v_exp_f32 v{e_}, v{e_}")
        for x in stub.fill: A(x)
        tail(lambda n: None, True)
        A(f"s_branch {st}")
    return fill, stub

def chainA(A):
    SM, ST_ = 60, 74
    SPC, SXS, SFX, SKB, SMS, SB2 = (60, 61), (62, 64), 66, (67, 68), (70, 71), 72
    MR, ACC, MK, SC, SG = 16, 44, 72, 88, 104
    IDX, FLG, VMK, VXW, VXR, VOWN, VMKA, VSW = 112, 113, 114, 115, 116, 0, 10, 15
    MST, KEY0 = 0, 16384
    LX, PART = KEY0 + 65536, KEY0 + 65536 + 8192
    a_slots_setup(A, SM, ST_, SRANK)
    VO = [117, 118, 119, 13]
    for i in range(4): A(f"v_add_u32 v{VO[i]}, s{SM+10+i}, v2"); A(f"s_mov_b32 s{90+i}, s{SM+10+i}")
    for i in range(14): A(f"s_mov_b32 s{SM+i}, {i*1024}")
    load_A_weights(A, SM, ST_, wregA)
    sparse_idx(A, IDX, 9)
    A("v_and_b32 v9, 15, v1"); A("v_lshrrev_b32 v10, 4, v1")
    A(f"s_mul_i32 s45, s{SW}, 3584"); A(f"s_add_u32 s45, s45, {PART}")
    A("v_mul_u32_u24 v3, 208, v9"); A("v_lshl_add_u32 v3, v10, 4, v3"); A("v_add_u32 v3, s45, v3")
    A(f"s_and_b32 s45, s{SW}, 1"); A("s_lshl_b32 s45, s45, 2"); A("v_add_u32 v11, s45, v10")
    A(f"s_lshr_b32 s45, s{SW}, 1"); A("s_mul_i32 s45, s45, 14336"); A(f"s_add_u32 s45, s45, {PART}")
    A("v_mul_u32_u24 v12, 208, v11"); A("v_add_u32 v12, s45, v12")
    A("v_lshrrev_b32 v16, 2, v9"); A("v_lshlrev_b32 v16, 2, v16")
    A("v_and_b32 v14, 1, v9"); A("v_lshl_add_u32 v16, v14, 1, v16")
    A("v_bfe_u32 v14, v9, 1, 1"); A("v_lshl_add_u32 v16, v14, 4, v16")
    A("v_add_u32 v16, 16, v16"); A("v_lshl_add_u32 v4, v16, 2, v12")
    A("v_and_b32 v16, 3, v9"); A("v_lshl_add_u32 v5, v16, 3, v12")
    A("v_lshrrev_b32 v16, 2, v9"); A("v_lshl_add_u32 v16, v16, 3, v11"); A("v_lshlrev_b32 v16, 4, v16")
    A("v_and_b32 v14, 3, v9"); A("v_lshl_add_u32 v6, v14, 2, v16")
    A(f"s_lshl_b32 s45, s{SRANK}, 9"); A("v_add_u32 v6, s45, v6")
    A("v_lshl_add_u32 v7, v9, 3, v11"); A("v_lshlrev_b32 v7, 4, v7")
    A(f"s_lshr_b32 s45, s{SRANK}, 2"); A("s_lshl_b32 s45, s45, 9"); A(f"s_and_b32 s44, s{SRANK}, 3"); A("s_lshl_b32 s44, s44, 2")
    A("s_add_u32 s45, s45, s44"); A("s_add_u32 s45, s45, 8192"); A("v_add_u32 v7, s45, v7")
    A(f"v_mov_b32 v16, {OOB}"); A("v_cmp_gt_u32 vcc, 4, v9"); A("v_cndmask_b32 v7, v16, v7, vcc")
    A(f"v_mov_b32 v{VMK}, 0"); A("v_mov_b32 v14, 1.0"); A(f"v_cndmask_b32 v{VMK}, v{VMK}, v14, vcc")
    for l in range(2):
        A(f"s_mov_b32 s{SMS[l]}, {LY.MS + l*64*7168}")
        A(f"s_mov_b32 s{SPC[l]}, {LY.PC + l*64*10240}")
        A(f"s_mov_b32 s{SXS[l]}, {LY.XS + l*64*28672}"); A(f"s_mov_b32 s{SXS[l]+1}, {LY.XS + l*64*28672 + 14336}")
        A(f"s_lshl_b32 s45, s{SW}, 13"); A(f"s_add_u32 s{SKB[l]}, s45, {KEY0 + l*32768}")
    A(f"s_mov_b32 s{SFX}, {LY.GO + 512}")
    A("v_mov_b32 v8, 0")
    STU = (74, 75); STC = 76
    TL = int(os.environ.get("TLEAD", "0")) * 448 * 1024
    A(f"s_mov_b32 s{STU[0]}, {LY.U + 448*1024 + TL}"); A(f"s_mov_b32 s{STU[1]}, {LY.U + 64*448*1024 + TL}")
    A(f"s_lshl_b32 s45, s{SRANK}, 2"); A(f"s_add_u32 s45, s45, s{SW}"); A("s_lshl_b32 s45, s45, 13")
    A("v_lshlrev_b32 v87, 7, v1"); A("v_add_u32 v87, s45, v87")
    if SPLIT:
        A("s_lshr_b32 s45, s45, 13"); A("s_mul_i32 s45, s45, 28"); A("v_add_u32 v86, s45, v1")
        A("v_lshrrev_b32 v87, 7, v86"); A("v_lshlrev_b32 v87, 15, v87"); A("v_and_b32 v86, 127, v86"); A("v_lshl_add_u32 v87, v86, 7, v87")
        A("v_add_u32 v87, 16384, v87"); A(f"v_mov_b32 v86, {OOB}"); A("v_cmp_gt_u32 vcc, 28, v1"); A("v_cndmask_b32 v87, v86, v87, vcc")
    A(f"s_lshl_b32 s45, s{SW}, 11"); A(f"s_add_u32 s45, s45, {LX}")
    A("v_lshrrev_b32 v16, 2, v9"); A("v_lshlrev_b32 v16, 3, v16"); A("v_and_b32 v14, 3, v9"); A("v_add_u32 v16, v16, v14")
    A("v_lshlrev_b32 v16, 4, v16"); A("v_lshl_add_u32 v16, v10, 2, v16"); A(f"v_add_u32 v{VXW}, s45, v16")
    A("v_bfe_u32 v16, v1, 2, 2"); A("v_lshl_add_u32 v16, v10, 3, v16"); A("v_lshlrev_b32 v16, 4, v16")
    A("v_and_b32 v14, 1, v1"); A("v_lshl_add_u32 v16, v14, 3, v16"); A(f"v_add_u32 v{VXR}, s45, v16")
    A("v_lshrrev_b32 v16, 1, v10"); A("v_lshlrev_b32 v16, 4, v16"); A("v_and_b32 v14, 7, v9"); A("v_lshl_add_u32 v16, v14, 1, v16")
    A("v_lshlrev_b32 v16, 4, v16"); A("v_and_b32 v14, 1, v10"); A("v_lshl_add_u32 v16, v14, 3, v16"); A(f"v_add_u32 v16, {MST}, v16")
    VMA = [0, 10, 14, 9]
    A("s_lshr_b32 s45, s90, 1"); A("v_add_u32 v0, s45, v16"); A("s_lshr_b32 s45, s91, 1"); A("v_add_u32 v10, s45, v16")
    A("s_lshr_b32 s45, s92, 1"); A("v_add_u32 v14, s45, v16")
    A("s_lshr_b32 s45, s93, 1"); A("s_lshl_b32 s44, s46, 2"); A("s_add_u32 s45, s45, s44"); A("v_add_u32 v9, s45, v16")
    A(f"s_add_u32 s45, s{SKB[0]}, 0"); A("v_add_u32 v11, s45, v2")
    A("s_lshl_b32 s45, s46, 3"); A("v_add_u32 v12, s45, v11")
    A(f"s_lshl_b32 s45, s46, 12"); A(f"v_add_u32 v{VSW}, s45, v2")
    A(f"s_lshl_b32 s45, s46, 10"); A(f"s_sub_u32 s{SB2}, 3072, s45")
    CT = 103
    dma = lambda n, l: [f"s_add_u32 m0, s{SKB[l]}, {n*1024}", "s_nop 0", f"buffer_load_dwordx4 v{VO[n>>1]}, s[32:35], s{SXS[l]+(n&1)} offen sc1 lds"]
    def keys(l):
        for n in range(8):
            for t in dma(n, l): A(t)
        A(f"s_add_u32 s{SXS[l]}, s{SXS[l]}, 28672"); A(f"s_add_u32 s{SXS[l]+1}, s{SXS[l]+1}, 28672")
        if l: A(f"s_add_u32 s{SFX}, s{SFX}, 4")
    keys(0)
    for q in range(5, 8): A(f"v_mov_b32 v{88+q}, v{q}")
    wait_all_registered(A, 2, True)
    for q in range(5, 8): A(f"v_mov_b32 v{q}, v{88+q}")
    A(f"v_add_u32 v1, s{SB2}, v{VSW}")
    A("s_waitcnt vmcnt(0)")
    A(f"s_mov_b32 s{S0}, 0"); A(f"s_mov_b32 s{S1}, 0"); A(f"s_mov_b32 s{SPRE}, 0"); A(f"v_mov_b32 v{FLG}, 0")
    A(f"s_mov_b32 s80, {f32(60.0)}")
    A("s_mov_b32 s73, 0")
    zero = [f"v_mov_b32 v{ACC+r}, 0" for r in range(28)]
    for z in zero: A(z)
    if GATE:
        A("v_mov_b32 v88, 1"); A(f"s_mov_b32 s44, {LY.CNT + 31*128}"); A("buffer_store_dword v88, off, s[32:35], s44 sc1")
    event(A, SROLE, 1, 88)
    if EV: A("s_memtime s[84:85]")
    mr = lambda i: MR + i * 4
    SNM = 78
    mloads = [f"buffer_load_dwordx4 {v(mr(q),4)}, v{VSW}, s[32:35], s{SNM} offen offset:{q*1024} sc1" for q in range(3)] + \
             [f"buffer_load_dwordx4 {v(mr(3),4)}, v1, s[32:35], s{SNM} offen sc1"]
    def stage(fill, issued=False):
        ok = A.new("sok")
        if not issued:
            for t in mloads: A(t)
        for t in fill: A(t)
        A("s_waitcnt vmcnt(0)")
        for t in chk_tree(A, range(MR, MR+16), CT): A(t)
        A(f"s_cbranch_vccz {ok}")
        if DIAG: A("s_add_u32 s57, s57, 256")
        p = Poll(A, 10); p.begin()
        for t in mloads: A(t)
        A("s_waitcnt vmcnt(0)")
        for t in chk_tree(A, range(MR, MR+16), CT): A(t)
        p.end()
        A.label(ok)
        for q in range(3): A(f"ds_write_b128 v{SG}, {v(mr(q),4)} offset:{q*1024}")
        A(f"ds_write_b128 v{SG+1}, {v(mr(3),4)}")
        A("s_waitcnt lgkmcnt(0)")
    def flagwait(code):
        ok = A.new("fxok")
        A(f"v_cmp_ne_u32 vcc, 1, v{FLG}"); A(f"s_cbranch_vccz {ok}")
        if DIAG: A("s_add_u32 s57, s57, 1")
        p = Poll(A, code, sleep=2); p.begin()
        A(f"buffer_load_dword v{FLG}, v8, s[32:35], s{SFX} offen sc1")
        A("s_waitcnt vmcnt(0)")
        A(f"v_cmp_ne_u32 vcc, 1, v{FLG}")
        p.end()
        A.label(ok)
    def keys1(code):
        sk = A.new("k1")
        A("s_cmp_ge_u32 s73, 63"); A(f"s_cbranch_scc1 {sk}")
        flagwait(code); keys(1); A("s_add_u32 s73, s73, 1")
        A.label(sk)
    A(f"s_mov_b32 s{SNM}, s{SMS[0]}"); A(f"v_mov_b32 v{SG}, v{VSW}"); A(f"v_mov_b32 v{SG+1}, v1")
    st0 = A.new("st0")
    A(f"s_cmp_lt_u32 s{SW}, 2"); A(f"s_cbranch_scc1 {st0}")
    stage([])
    A.label(st0)
    A(f"s_cmp_eq_u32 s{SFAST}, 1"); A("s_cbranch_scc0 chainA_slow")
    for fast in (True, False):
        if not fast: A.label("chainA_slow")
        SF = "" if fast else " sc1"
        tops = [A.new("cabody0"), A.new("cabody1")]
        smstubs = []; fstubs = []
        for l in range(2):
            o = 1 - l; SS_ = (S0, S1)[l]
            mo = MST + l * 7168
            A.label(tops[l])
            stamp(A, 0, 9); fine(A, "a0")
            A("s_barrier")
            fine(A, "ab")
            for i in range(7): A(f"ds_read_b128 {v(mr(i),4)}, v2 offset:{mo + i*1024}")
            if DIAG: A(f"s_add_u32 s{SK}, s{SS_}, {64*l}")
            if l == 0: A(f"s_cmp_ge_u32 s{S0}, {LY.LAG}")
            else: A(f"s_cmp_lt_u32 s{S0}, 63")
            A(f"s_cselect_b32 s{SALT}, 1, 0"); A(f"s_cselect_b32 s{STC}, s{STU[o]}, s{STU[l]}")
            A(f"s_cselect_b32 s77, s{SKB[o]}, {PART + 28672}")
            A(f"s_cselect_b32 s79, {7168 if o else 0}, {7168 if l else 0}")
            A(f"s_cselect_b32 s44, {448*1024}, 0"); A(f"s_cselect_b64 s[82:83], -1, 0")
            A(f"s_waitcnt vmcnt({3 if TOUCH == 1 and not TFIRST else 2})")
            book = {0: [f"s_add_u32 s{SMS[l]}, s{SMS[l]}, 7168", f"s_cmp_eq_u32 s{SALT}, 1", f"s_cselect_b32 s{SNM}, s{SMS[o]}, s{SMS[l]}"],
                    4: [f"s_add_u32 s{STU[o]}, s{STU[o]}, s44", f"s_sub_u32 s44, {448*1024}, s44", f"s_add_u32 s{STU[l]}, s{STU[l]}, s44"],
                    5: [f"v_add_u32 v{SG}, s79, v{VSW}"], 6: [f"v_add_u32 v{SG+1}, s79, v1"]}
            if l == 0:
                fr, fb = A.new("frt"), A.new("fbk"); fstubs.append((fr, fb))
                book[1] = [f"v_cmp_ne_u32 vcc, 1, v{FLG}"]
                book[2] = ["s_and_b64 vcc, vcc, s[82:83]", f"s_cbranch_vccnz {fr}", fb + ":"]
            nl = 7
            xk = lambda ks, tt: mr(ks * 2 + tt) if ks < 3 else mr(6) + tt * 2
            def post(j):
                r = ACC + j * 4
                ks, b = (j >> 1, j & 1) if j < 6 else (3, 0)
                return [f"v_add_f32 v{r}, v{r}, v{r+1}", f"v_add_f32 v{r+2}, v{r+2}, v{r+3}", f"v_cvt_pk_bf16_f32 v{r}, v{r}, v{r+2}",
                        f"ds_write_b32 v{VXW}, v{r} offset:{ks*512 + b*64}"]
            kb = l * 32768; d4 = l * 7168 // 4
            mk = []
            for ks in range(3):
                mk.append(f"ds_read2_b32 {v(MK+ks*4,2)}, v{VMA[ks]} offset0:0 offset1:4"); mk.append(f"ds_read2_b32 {v(MK+ks*4+2,2)}, v{VMA[ks]} offset0:1 offset1:5")
            mk.append(f"ds_read2_b32 {v(MK+12,2)}, v{VMA[3]} offset0:0 offset1:4")
            def tr(ks):
                return [f"ds_read_b64_tr_b16 {v(ACC+ks*8+hh*2,2)}, v{VXR} offset:{ks*512 + hh*64}" for hh in range(2 if ks < 3 else 1)]
            lds_ids = {}
            def emit(t, name=None):
                nonlocal nl
                A(t)
                if t.startswith("ds_"):
                    nl += 1
                    if name: lds_ids[name] = nl
            tch = f"buffer_load_dword v86, v87, s[32:35], s{STC} offen"
            def vmem_slot(g):
                if TOUCH == 1 and TFIRST and g == 0: A(tch)
                n = g - DOFF
                if n < 0: return
                if n % DSTEP == 0 and n // DSTEP < 8: A(f"s_add_u32 m0, s77, {(n // DSTEP)*1024}")
                if n % DSTEP == 1 and n // DSTEP < 8: A(dma(n // DSTEP, o)[2])
                if n == 7*DSTEP + 3: A(f"buffer_load_dword v{FLG}, v8, s[32:35], s{SFX} offen sc1")
                if TOUCH == 1 and not TFIRST and n == 7*DSTEP + 4: A(tch)
                if n == 7*DSTEP + 2:
                    A(f"s_cmp_eq_u32 s{SALT}, 1"); A("s_cselect_b32 s44, 28672, 0")
                    A(f"s_add_u32 s{SXS[o]}, s{SXS[o]}, s44"); A(f"s_add_u32 s{SXS[o]+1}, s{SXS[o]+1}, s44")
                    if o: A(f"s_lshl_b32 s44, s{SALT}, 2"); A(f"s_add_u32 s{SFX}, s{SFX}, s44"); A(f"s_add_u32 s73, s73, s{SALT}")
            assert DOFF + 7*DSTEP + 4 <= 48 and DOFF >= 3
            for i in range(5):
                A(f"s_waitcnt lgkmcnt({min(15, nl - 1 - i - (1 if i == 4 else 0) * 2)})")
                extra = dict(book) if i == 0 else {}
                if i == 1:
                    for q in range(7): extra[q] = [mk[q]]
                if i == 2:
                    if not DMODE: extra[0] = [f"s_waitcnt vmcnt({9 if TOUCH == 2 else 8})"]
                    pass
                if 2 <= i <= 4: extra.setdefault(1, []).append(f"ds_read_b128 {v(mr(i-2),4)}, v11 offset:{kb + (i-2)*1024}")
                if i == 4:
                    extra[3] = [f"ds_read_b128 {v(mr(3),4)}, v11 offset:{kb + 3*1024}"]
                    pass
                for j in range(7):
                    A(f"{SMF} {v(ACC+j*4,4)}, {v(mr(i),4)}, {wregA8(j,i)}, v{IDX}")
                    for t in extra.get(j, []): emit(t)
                    vmem_slot(i * 7 + j)
                fine(A, f"ag{i}")
            seq = []
            for j in range(7): seq += [(j, 5), (j, 6)]
            P_ = [post(j) for j in range(7)]
            fillers = {1: [f"ds_read_b128 {v(mr(4),4)}, v11 offset:{kb + 4*1024}"],
                       5: P_[0][:2], 6: P_[0][2:], 7: P_[1][:2], 8: P_[1][2:], 9: [("T0", x) for x in tr(0)],
                       10: P_[2][:2], 11: P_[2][2:], 12: P_[3][:2], 13: P_[3][2:] + [("T1", x) for x in tr(1)]}
            for n, (j, i) in enumerate(seq):
                A(f"{SMF} {v(ACC+j*4,4)}, {v(mr(i),4)}, {wregA8(j,i)}, v{IDX}")
                for t in fillers.get(n, []):
                    if isinstance(t, tuple): emit(t[1], t[0])
                    else: emit(t)
                vmem_slot(35 + n)
            stamp(A, 1, 9); fine(A, "a1")
            def sc(ks, name):
                A(f"s_waitcnt lgkmcnt({nl - lds_ids[name]})")
                op = MM if ks < 3 else MM16; w = 4 if ks < 3 else 2
                tb = ACC + ks * 8
                A(f"{op} {v(SC,4)}, {v(MK+ks*4,w)}, {v(tb,w)}, {v(SC,4) if ks else 0}")
                for tt in range(2):
                    A(f"{op} {v(SC+4+tt*4,4)}, {v(xk(ks,tt),w)}, {v(tb,w)}, {v(SC+4+tt*4,4) if ks else 0}")
            emit(f"ds_read_b128 {v(mr(5),4)}, v11 offset:{kb + 5*1024}")
            for tt in range(2): emit(f"ds_read_b64 {v(mr(6)+tt*2,2)}, v12 offset:{kb + (6+tt)*1024}")
            for q in range(4):
                emit(P_[4][q]); emit(P_[5][q])
            for x in tr(2): emit(x, "T2")
            sc(0, "T0")
            for x in P_[6]: emit(x)
            for x in tr(3): emit(x, "T3")
            sc(1, "T1")
            sc(2, "T2")
            sc(3, "T3")
            for z in zero[:5]: A(z)
            fine(A, "a2")
            for q in range(3): A(f"ds_write_b128 v3, {v(SC+q*4,4)} offset:{l*14336 + q*64}")
            el = A.new("el")
            A(f"s_cmp_lt_u32 s{SW}, 2"); A(f"s_cbranch_scc{0 if l else 1} {el}")
            for t in mloads: A(t)
            A.label(el)
            for z in zero[5:12]: A(z)
            A("s_waitcnt lgkmcnt(0)")
            fine(A, "a3")
            A("s_barrier")
            fine(A, "a4")
            nosm = A.new("nosm"); join = A.new("join")
            A(f"s_cmp_lt_u32 s{SW}, 2"); A(f"s_cbranch_scc{1 if l else 0} {nosm}")
            T = SC
            A(f"ds_read2st64_b64 {v(T,4)}, v4 offset0:0 offset1:7")
            A(f"ds_read2st64_b64 {v(T+4,4)}, v4 offset0:14 offset1:21")
            A(f"ds_read2st64_b64 {v(T+8,4)}, v5 offset0:0 offset1:7")
            A(f"ds_read2st64_b64 {v(T+12,4)}, v5 offset0:14 offset1:21")
            for z in zero[12:19]: A(z)
            stamp(A, 2, 9)
            rest, stub = softmax16(A, T, VMK, zero[19:],
                             [f"buffer_store_dword v{T}, v6, s[32:35], s{SPC[l]} offen{SF}", f"buffer_store_dword v{T+8}, v7, s[32:35], s{SPC[l]} offen{SF}"], None)
            assert not rest
            stub.fill = zero[19:]; smstubs.append(stub)
            stamp(A, 3, 9); fine(A, "a6")
            stamp_flush(A, 96)
            A(f"s_cmp_eq_u32 s{SALT}, 1"); A(f"s_cbranch_scc1 {join}")
            if l == 0: keys(0)
            else:
                A("s_waitcnt vmcnt(0)")
                keys1(13)
            A("s_waitcnt vmcnt(0)")
            A(f"s_branch {join}")
            A.label(nosm)
            alt = A.new("alt"); ex = A.new("caend")
            A(f"s_cmp_eq_u32 s{SALT}, 1"); A(f"s_cbranch_scc1 {alt}")
            A(f"s_cmp_ge_u32 s{SS_}, 62"); A(f"s_cbranch_scc1 {ex}")
            if l == 0: keys(0)
            else:
                A("s_waitcnt vmcnt(0)")
                keys1(15)
            A.label(alt)
            stage(zero[12:], True)
            A.label(join)
            A(f"s_add_u32 s{SPC[l]}, s{SPC[l]}, 10240"); A(f"s_add_u32 s{SS_}, s{SS_}, 1")
            sw = A.new("sw")
            A(f"s_cmp_eq_u32 s{SALT}, 1"); A(f"s_cbranch_scc1 {sw}")
            A(f"s_cmp_lt_u32 s{SS_}, 63"); A(f"s_cbranch_scc1 {tops[l]}")
            A.label(ex)
            event(A, SROLE, 4, 88)
            if EV:
                A("s_memtime s[100:101]"); A("s_waitcnt lgkmcnt(0)"); A("s_sub_u32 s100, s100, s84"); A("v_mov_b32 v88, s100")
                A("buffer_store_dword v88, v89, s[32:35], s99 offen offset:4")
            A("s_endpgm")
            A.label(sw)
            if EV:
                ne = A.new("ne")
                A(f"s_cmp_lg_u32 s{S0}, {LY.LAG + 1 if l == 0 else 62}"); A(f"s_cbranch_scc1 {ne}")
                event(A, SROLE, 2 + l, 88)
                A.label(ne)
            for q in range(4): A(f"v_add_u32 v{VMA[q]}, {7168 if l == 0 else -7168 & 0xffffffff}, v{VMA[q]}")
            A(f"s_branch {tops[o]}")
        for st_ in smstubs: st_()
        for fr, fb in fstubs:
            A.label(fr)
            if DIAG: A("s_add_u32 s57, s57, 1")
            p = Poll(A, 16, sleep=2); p.begin()
            A(f"buffer_load_dword v{FLG}, v8, s[32:35], s{SFX} offen sc1")
            A("s_waitcnt vmcnt(0)")
            A(f"v_cmp_ne_u32 vcc, 1, v{FLG}")
            p.end()
            A(f"s_branch {fb}")

LP = (2, 5)
WBPOS = os.environ.get('WBPOS', 'late')
MSTART = int(os.environ.get('MSTART', '16'))
MGAP = int(os.environ.get('MGAP', '20'))
USTEP = int(os.environ.get('USTEP', '3'))
USTART = int(os.environ.get('USTART', '1'))
BTP = int(os.environ.get('BTP', '0'))
PSTEP = int(os.environ.get('PSTEP', '2'))
def load_B64_weights(A, SJ, wreg):
    for n in range(8):
        hh, ct = n >> 1, n & 1
        A(f"s_lshl_b32 s44, s{SJ}, 1"); A(f"s_add_u32 s44, s44, {ct}"); A("s_lshl_b32 s44, s44, 4")
        A(f"s_lshl_b32 s45, s{SW}, 2"); A("s_add_u32 s44, s44, s45"); A(f"s_add_u32 s44, s44, {hh}")
        A("s_mul_i32 s44, s44, 14336"); A(f"s_add_u32 s44, s44, {LY.BF}")
        for kk in range(14):
            p_, hf = kk >> 1, kk & 1
            A(f"s_add_u32 s45, s44, {kk*1024}")
            if p_ in LP:
                A(f"s_lshl_b32 s47, s{SW}, 15"); A(f"s_add_u32 m0, s47, {((LP.index(p_)*8 + n)*2 + hf)*1024}")
                A("s_nop 0")
                A(f"buffer_load_dwordx4 v2, s[32:35], s45 offen lds")
            else:
                A(f"buffer_load_dwordx4 {wreg(p_,n,hf)}, v2, s[32:35], s45 offen")

def w_smf(A, MR, WACC, WBUF, wreg, IDX, vw, vl, ustep, regfirst=False):
    sched = vl if isinstance(vl, dict) else None
    vl = [] if sched else list(vl); cnt = [0]
    def slot():
        cnt[0] += 1
        if sched:
            for x in sched.get(cnt[0], []): A(x)
            return
        if (cnt[0] in ustep if isinstance(ustep, (list, tuple)) else cnt[0] % ustep == 0) and vl: A(vl.pop(0))
    regp = [p_ for p_ in range(7) if p_ not in LP]
    regl = [(p_, n) for p_ in regp for n in range(8)]
    ldsl = [(p_, n) for p_ in LP for n in range(8)]
    mreg = MR if callable(MR) else (lambda p_: MR + p_ * 4)
    if regfirst:
        regl = [(0, n) for n in (2, 3, 4, 5, 6, 7, 0, 1)] + regl[8:]
        issued = [regs(v(mreg(p_), 4)) for p_ in regfirst]
        done = [0]
        class Tr:
            def __call__(self, text):
                A0(text)
                if text.startswith("ds_"): issued.append(Ins(text).ldst)
            def __getattr__(self, k): return getattr(A0, k)
        A0 = A; A = Tr()
        def smf(n, m, w):
            need_ = regs(m) | regs(w)
            last = max([i + 1 for i, d in enumerate(issued) if d & need_] + [0])
            if last > done[0]:
                A0(f"s_waitcnt lgkmcnt({min(15, len(issued) - last)})"); done[0] = last
            A0(f"{SMF} {v(WACC+n*4,4)}, {m}, {w}, v{IDX}")
        def slot2():
            cnt[0] += 1
            for x in sched.get(cnt[0], []): A(x)
        for bq in range(4):
            for q in range(10):
                p_, n = regl[bq*10+q]
                smf(n, v(mreg(p_),4), wreg(p_,n))
                if q < 8: A(f"ds_read_b128 {v(WBUF+q*4,4)}, v{vw} offset:{(bq*8+q)*1024}")
                slot2()
            for q in range(4):
                p_, n = ldsl[bq*4+q]
                smf(n, v(mreg(p_),4), v(WBUF+q*8,8))
                slot2()
        return
    for bq in range(4):
        A("s_waitcnt lgkmcnt(0)")
        for q in range(4):
            p_, n = ldsl[bq*4+q]
            A(f"{SMF} {v(WACC+n*4,4)}, {v(mreg(p_),4)}, {v(WBUF+q*8,8)}, v{IDX}")
            slot()
        for q in range(10):
            p_, n = regl[bq*10+q]
            A(f"{SMF} {v(WACC+n*4,4)}, {v(mreg(p_),4)}, {wreg(p_,n)}, v{IDX}")
            if bq < 3 and q < 8: A(f"ds_read_b128 {v(WBUF+q*4,4)}, v{vw} offset:{((bq+1)*8+q)*1024}")
            slot()
    assert not vl

def chainB(A):
    SJ = 60
    SMS, SPC, SU, SWB, SFU = (62, 63), (70, 71), (72, 74), (78, 79), (80, 81)
    SFL, SFW = 82, 83
    WACC, PX, PM, WBUF, SG, FLG, IDX = 44, 76, 92, 96, 152, 10, 13
    WP, D = WACC, SG
    mreg = lambda p_: {2: 16, 5: 20, 0: 24, 1: 28, 3: 32, 4: 24, 6: 28}[p_]
    U1R = [36, 40, 128, 132, 136, 140, 144, 148]
    UREG = 0
    LRED = 131072; MST = LRED + 16384
    regp = [p_ for p_ in range(7) if p_ not in LP]
    def wreg(p_, n, hf=None):
        idx = regp.index(p_) * 8 + n
        o, c = (0, 8) if hf is None else (hf * 4, 4)
        return a(32 + idx * 8 + o, c) if idx < 28 else v(160 + (idx - 28) * 8 + o, c)
    A(f"s_sub_u32 s{SJ}, s{SRANK}, 16")
    load_B64_weights(A, SJ, wreg)
    A(f"s_lshl_b32 s45, s{SW}, 15"); A(f"v_add_u32 v3, s45, v2")
    A("v_and_b32 v9, 15, v1"); A("v_lshrrev_b32 v10, 4, v1")
    A(f"v_mov_b32 v11, {OOB}"); A("v_cmp_gt_u32 vcc, 8, v9")
    A("v_lshl_add_u32 v12, v10, 3, v9"); A("v_lshlrev_b32 v12, 4, v12")
    A(f"s_lshl_b32 s45, s{SW}, 11"); A("v_add_u32 v6, s45, v12"); A("v_cndmask_b32 v6, v11, v6, vcc")
    A(f"s_lshl_b32 s45, s{SW}, 9"); A("s_add_u32 s45, s45, 8192"); A("v_add_u32 v7, s45, v12"); A("v_cndmask_b32 v7, v11, v7, vcc")
    A("v_bfe_u32 v9, v1, 2, 3"); A("v_and_b32 v10, 3, v1"); A("v_cmp_gt_u32 vcc, 32, v1")
    A("v_and_b32 v14, 1, v10"); A("v_lshl_add_u32 v14, v9, 1, v14"); A("v_lshlrev_b32 v14, 4, v14")
    A("v_lshrrev_b32 v15, 1, v10"); A("v_lshl_add_u32 v14, v15, 2, v14")
    A(f"s_lshl_b32 s45, s{SJ}, 9"); A(f"s_lshr_b32 s44, s{SW}, 1"); A("s_lshl_b32 s44, s44, 8"); A("s_add_u32 s45, s45, s44")
    A(f"s_and_b32 s44, s{SW}, 1"); A("s_lshl_b32 s44, s44, 3"); A("s_add_u32 s45, s45, s44"); A("s_add_u32 s45, s45, 7168")
    A("v_add_u32 v14, s45, v14"); A("v_cndmask_b32 v14, v11, v14, vcc")
    A("v_lshlrev_b32 v12, 10, v15"); A("v_lshl_add_u32 v12, v9, 4, v12"); A("v_and_b32 v15, 1, v10"); A("v_lshl_add_u32 v12, v15, 3, v12")
    A(f"s_lshl_b32 s45, s{SW}, 8"); A(f"s_add_u32 s45, s45, {LRED}"); A("v_add_u32 v12, s45, v12")
    A(f"s_lshl_b32 s45, s{SW}, 12"); A("v_add_u32 v8, s45, v2")
    A(f"s_lshl_b32 s45, s{SW}, 11"); A("v_add_u32 v4, s45, v2")
    A(f"s_cmp_eq_u32 s{SW}, 3"); A("s_cselect_b32 s45, 0, 1024"); A("v_add_u32 v15, s45, v4")
    A(f"v_add_u32 v11, {LRED}, v4")
    sparse_idx(A, IDX, 9)
    A(f"v_mov_b32 v{FLG}, 0")
    for l in range(2):
        A(f"s_mov_b32 s{SMS[l]}, {LY.MS + l*64*7168}")
        A(f"s_mov_b32 s{SPC[l]}, {LY.PC + l*64*10240}")
        A(f"s_lshl_b32 s45, s{SJ}, 15"); A(f"s_add_u32 s{SU[l]}, s45, {LY.U + l*64*448*1024}"); A(f"s_add_u32 s{SU[l]+1}, s{SU[l]}, 16384")
        A(f"s_mov_b32 s{SFU[l]}, {LY.GO + l*256}")
    A(f"s_mov_b32 s{SFL}, s{SFU[0]}")
    for q in range(5, 8): A(f"v_mov_b32 v{100+q}, v{q}")
    wait_all_registered(A, 3, True)
    for q in range(5, 8): A(f"v_mov_b32 v{q}, v{100+q}")
    A("s_waitcnt vmcnt(0)")
    flagloads = [f"buffer_load_dword v{FLG}, off, s[32:35], s{SFL} sc1"]
    def flagchk(): A(f"v_cmp_ne_u32 vcc, 1, v{FLG}")
    zero = [f"v_mov_b32 v{WACC+r}, 0" for r in range(32)]
    wb0 = [f"ds_read_b128 {v(WBUF+q*4,4)}, v3 offset:{q*1024}" for q in range(8)]
    mloads = lambda l: [f"buffer_load_dwordx4 {v(SG,4)}, v4, s[32:35], s{SMS[l]} offen sc1", f"buffer_load_dwordx4 {v(SG+4,4)}, v15, s[32:35], s{SMS[l]} offen sc1"]
    def mstage(l, code, first_try):
        ok = A.new("mok")
        if first_try:
            for t in chk_tree(A, range(SG, SG+8), 9): A(t)
            A(f"s_cbranch_vccz {ok}")
        p = Poll(A, code); p.begin()
        for t in mloads(l): A(t)
        A("s_waitcnt vmcnt(0)")
        for t in chk_tree(A, range(SG, SG+8), 9): A(t)
        p.end()
        A.label(ok)
        A(f"ds_write_b128 v4, {v(SG,4)} offset:{MST - 0 + l*7168}" if False else f"ds_write_b128 v0, {v(SG,4)} offset:{l*7168}")
        A(f"ds_write_b128 v5, {v(SG+4,4)} offset:{l*7168}")
    A(f"v_add_u32 v0, {MST}, v4"); A(f"v_add_u32 v5, {MST}, v15"); A(f"v_add_u32 v1, {MST}, v2")
    A(f"s_mov_b32 s{S0}, 0"); A(f"s_mov_b32 s{S1}, 0"); A(f"s_mov_b32 s{SPRE}, 0")
    A("s_mov_b32 s85, 0")
    for t in zero: A(t)
    event(A, SROLE, 1, 76)
    A(f"s_cmp_eq_u32 s{SFAST}, 1"); A("s_cbranch_scc0 chainB_slow")
    for fast in (True, False):
        if not fast: A.label("chainB_slow")
        SF = "" if fast else " sc1"
        tops = [A.new("cbbody0"), A.new("cbbody1")]
        for l in range(2):
            o = 1 - l; SS_ = (S0, S1)[l]; SO_ = (S0, S1)[o]
            A.label(tops[l])
            if DIAG: A(f"s_add_u32 s{SK}, s{SS_}, {64*l}")
            go = A.new("go")
            mrd1 = lambda ll, i: f"ds_read_b128 {v(mreg(i),4)}, v1 offset:{ll*7168 + i*1024}"
            mrd = lambda ll: [mrd1(ll, i) for i in (0, 1, 2)]
            A(f"s_cmp_eq_u32 s{SPRE}, 1"); A(f"s_cbranch_scc1 {go}")
            mstage(l, 20, False)
            A("s_waitcnt lgkmcnt(0)"); A("s_barrier")
            for t in mrd(l): A(t)
            A.label(go)
            stamp(A, 0, 9); fine(A, "b0")
            sk = A.new("ufl"); fr = A.new("frt")
            A("s_cmp_eq_u32 s85, 0"); A(f"s_cbranch_scc1 {fr}"); A.label(sk)
            fine(A, "b1")
            A(f"s_add_u32 s{SFU[l]}, s{SFU[l]}, 4")
            if not os.environ.get("UFIX"): A(f"s_add_u32 s{SU[l]}, s{SU[l]}, {448*1024}"); A(f"s_add_u32 s{SU[l]+1}, s{SU[l]+1}, {448*1024}")
            if l == 0: A(f"s_cmp_ge_u32 s{S0}, {LY.LAG}")
            else: A(f"s_cmp_lt_u32 s{S0}, 63")
            A(f"s_cselect_b32 s{SALT}, 1, 0"); A(f"s_cselect_b32 s{SFL}, s{SFU[o]}, s{SFU[l]}")
            ureg = lambda ll, hh, ct: v(U1R[hh*2+ct], 4) if ll else a(UREG + (hh * 2 + ct) * 4, 4)
            pxl = lambda hh: f"buffer_load_dwordx4 {v(PX+hh*4,4)}, v6, s[32:35], s{SPC[l]} offen offset:{hh*512} sc1"
            pround = [f"buffer_load_dwordx4 {v(PM,4)}, v7, s[32:35], s{SPC[l]} offen sc1"] + [pxl(hh) for hh in range(4)]
            uls = lambda ll: [f"buffer_load_dwordx4 {ureg(ll,hh,ct)}, v8, s[32:35], s{SU[ll]+ct} offen offset:{hh*1024} sc1" for hh in range(4) for ct in range(2)]
            mr_, mb_ = A.new("mrt"), A.new("mbk")
            ck = chk_tree(A, range(SG, SG+8), 9)
            sched = {}
            for q, x in enumerate(flagloads + mloads(o)): sched[MSTART + 2 * q] = [x]
            base = MSTART + MGAP
            def fst(name):
                names = [n for n in FINE.split(",") if n and n[0] == name[0]]
                return [f"s_memtime s[{90+2*names.index(name)}:{91+2*names.index(name)}]"] if DIAG and name in names else []
            sched[base] = fst("bw0") + ["s_waitcnt vmcnt(0)"] + fst("bw1") + [ck[0]]
            for q in range(1, 5): sched[base + q] = [ck[q]]
            sched[base + 5] = [f"s_and_b64 vcc, vcc, s[88:89]", f"s_cbranch_vccnz {mr_}", mb_ + ":"]
            sched[base + 6] = [f"ds_write_b128 v0, {v(SG,4)} offset:{o*7168}"]; sched[base + 7] = [f"ds_write_b128 v5, {v(SG+4,4)} offset:{o*7168}"]
            assert base + 7 < 56 - PSTEP * 5
            for q, x in enumerate(pround): sched[56 - PSTEP * (5 - q)] = [x]
            sched.setdefault(9, []).append(mrd1(l, 3)); sched.setdefault(10, []).append(mrd1(l, 4)); sched.setdefault(23, []).append(mrd1(l, 6))
            sched.setdefault(24, []).append(mrd1(l, 5))
            for q in range(4): sched.setdefault(1 + q, []).extend(zero[2*q:2*q+2])
            A(f"s_cselect_b64 s[88:89], -1, 0")
            w_smf(A, mreg, WACC, WBUF, wreg, IDX, 3, sched, None, (0, 1, 2))
            fine(A, "bw2")
            for n in range(8):
                r = WACC + n*4
                A(f"v_add_f32 v{r}, v{r}, v{r+1}"); A(f"v_add_f32 v{r+2}, v{r+2}, v{r+3}")
            for n in range(8):
                hh, ct = n >> 1, n & 1
                A(f"v_cvt_pk_bf16_f32 v{WP+ct*4+hh}, v{WACC+n*4}, v{WACC+n*4+2}")
            nxt = A.new("cbnext"); pok = A.new("pok"); redo = A.new("redo"); fin = A.new("fin")
            fine(A, "bw3")
            A(f"v_readfirstlane_b32 s85, v{FLG}"); A(f"s_and_b32 s85, s85, s{SALT}")
            stamp(A, 1, 9); fine(A, "b2")
            A("s_waitcnt vmcnt(4)")
            pchk = chk_tree(A, list(range(PM, PM+4)), 9)
            for t in pchk: A(t)
            A(f"s_cbranch_vccz {pok}")
            p = Poll(A, 22); p.begin()
            for t in pround: A(t)
            A("s_waitcnt vmcnt(4)")
            for t in pchk: A(t)
            p.end()
            A.label(pok)
            stamp(A, 2, 9); fine(A, "b3")
            def final_mm(zf, ul):
                zf = list(zf); ul = list(ul); nu = 0
                for ct in range(2):
                    A(f"{MM} {v(D+ct*4,4)}, {v(WP+ct*4,4)}, {v(PM,4)}, 0")
                    if ul: A(ul.pop(0)); nu += 1
                for hh in range(4):
                    A(f"s_waitcnt vmcnt({3 - hh + nu})")
                    for ct in range(2):
                        A(f"{MM} {v(D+ct*4,4)}, {ureg(l,hh,ct)}, {v(PX+hh*4,4)}, {v(D+ct*4,4)}")
                        if ul: A(ul.pop(0)); nu += 1
                        elif zf: A(zf.pop(0))
                for t in zf[:6]: A(t)
                fine(A, "b4")
                for ct in range(2): A(f"ds_write_b128 v11, {v(D+ct*4,4)} offset:{l*8192 + ct*1024}")
                for t in zf[6:]: A(t)
                A("s_waitcnt lgkmcnt(0)"); fine(A, "b5"); A("s_barrier"); fine(A, "b6")
                A(f"ds_read2st64_b64 {v(D,4)}, v12 offset0:{16*l} offset1:{16*l+4}")
                A(f"ds_read2st64_b64 {v(D+4,4)}, v12 offset0:{16*l+8} offset1:{16*l+12}")
            def final_sum_():
                A(f"v_pk_add_f32 {v(D,2)}, {v(D,2)}, {v(D+2,2)}")
                A(f"v_pk_add_f32 {v(D+4,2)}, {v(D+4,2)}, {v(D+6,2)}")
                A(f"v_pk_add_f32 {v(D,2)}, {v(D,2)}, {v(D+4,2)}")
            plain = A.new("pl"); fj = A.new("fj")
            A("s_cmp_eq_u32 s85, 0"); A(f"s_cbranch_scc1 {plain}")
            final_mm(zero[8:24], uls(o))
            A(f"s_branch {fj}")
            A.label(plain)
            final_mm(zero[8:24], [])
            A.label(fj)
            for t in mrd(o): A(t)
            for t in zero[24:]: A(t)
            A("s_waitcnt lgkmcnt(3)")
            final_sum_()
            A(f"v_cmp_u_f32 vcc, v{D}, v{D+1}")
            A(f"v_cvt_pk_bf16_f32 v{D+2}, v{D}, v{D+1}")
            A(f"s_cbranch_vccnz {redo}")
            A.label(fin)
            A(f"buffer_store_dword v{D+2}, v14, s[32:35], s{SMS[l]} offen{SF}")
            stamp(A, 3, 9); fine(A, "b7")
            if EV and not DIAG:
                A(f"s_add_u32 s{SK}, s{SS_}, 1"); stampB(A, l, 92)
            stamp_flush(A, 80)
            A.label(nxt)
            A(f"s_mov_b32 s{SPRE}, s{SALT}")
            A(f"s_add_u32 s{SMS[l]}, s{SMS[l]}, 7168")
            A(f"s_add_u32 s{SPC[l]}, s{SPC[l]}, 10240");
            A(f"s_add_u32 s{SS_}, s{SS_}, 1")
            A(f"s_cmp_eq_u32 s{SALT}, 1"); A(f"s_cbranch_scc1 {tops[o]}")
            A(f"s_cmp_lt_u32 s{SS_}, 63"); A(f"s_cbranch_scc1 {tops[l]}")
            A("s_endpgm")
            A.label(fr)
            p = Poll(A, 21, sleep=2); p.begin()
            for t in flagloads: A(t)
            A("s_waitcnt vmcnt(0)")
            flagchk()
            p.end()
            for t in uls(l): A(t)
            A(f"s_branch {sk}")
            A.label(mr_)
            p = Poll(A, 24); p.begin()
            for t in mloads(o): A(t)
            A("s_waitcnt vmcnt(0)")
            for t in ck: A(t)
            p.end()
            A(f"s_branch {mb_}")
            A.label(redo)
            if DIAG: A("s_add_u32 s57, s57, 1")
            p = Poll(A, 23); p.begin()
            for hh in range(4): A(pxl(hh))
            A("s_waitcnt vmcnt(0)")
            for t in chk_tree(A, range(PX, PX+16), 9): A(t)
            p.end()
            A("s_waitcnt lgkmcnt(0)"); A("s_barrier")
            final_mm([], [])
            A("s_waitcnt lgkmcnt(0)")
            final_sum_()
            A(f"v_cvt_pk_bf16_f32 v{D+2}, v{D}, v{D+1}")
            A(f"v_min_u32 v{D+2}, -2, v{D+2}")
            A(f"s_branch {fin}")

def touch_lines(A, vaddr, vd, soff, n):
    for q in range(n):
        A(f"buffer_load_dword v{vd}, v{vaddr}, s[32:35], s{soff} offen")
        if q < n - 1: A(f"s_add_u32 s{soff}, s{soff}, 8192")

def chainR(A):
    wait_all_registered(A, 4, True)
    A(f"s_cmp_eq_u32 s{SRANK}, 31"); A("s_cbranch_scc1 r_chainG")
    A(f"s_lshl_b32 s45, s{SW}, 11"); A("v_add_u32 v3, s45, v2")
    A(f"s_cmp_eq_u32 s{SW}, 3"); A("s_cselect_b32 s44, 0, 1024"); A("v_add_u32 v4, s44, v3")
    A("v_lshrrev_b32 v8, 4, v1"); A("v_lshlrev_b32 v8, 8, v8"); A("v_and_b32 v9, 7, v1"); A("v_lshl_add_u32 v8, v9, 5, v8")
    A("v_bfe_u32 v9, v1, 3, 1"); A("v_lshl_add_u32 v8, v9, 3, v8"); A("v_add_u32 v8, s45, v8"); A("v_add_u32 v9, s44, v8")
    A(f"s_mov_b32 s{SLY}, 0"); A(f"s_mov_b32 s{SSG}, 0")
    top = A.new("rr"); A.label(top)
    next_phase(A, SLY, SSG, SNL, SNS)
    A(f"s_mov_b32 s{SLY}, s{SNL}"); A(f"s_mov_b32 s{SSG}, s{SNS}")
    A(f"s_cmp_ge_u32 s{SSG}, 64"); A("s_cbranch_scc1 k1_exit")
    A(f"s_cmp_eq_u32 s{SSG}, 0"); A(f"s_cbranch_scc1 {top}")
    ls_off(A, 60, SLY, SSG, 7168, LY.MS); A(f"s_add_u32 s61, s60, {LY.MB - LY.MS}")
    p = Poll(A, 70); p.begin()
    A("buffer_load_dwordx4 v[12:15], v3, s[32:35], s60 offen sc1"); A("buffer_load_dwordx4 v[16:19], v4, s[32:35], s60 offen sc1")
    A("s_waitcnt vmcnt(0)")
    for t in chk_tree(A, range(12, 20), 10): A(t)
    p.end()
    A("ds_write_b128 v3, v[12:15]"); A("ds_write_b128 v4, v[16:19]")
    A("ds_read2_b32 v[20:21], v8 offset0:0 offset1:4"); A("ds_read2_b32 v[22:23], v8 offset0:1 offset1:5")
    A("ds_read2_b32 v[24:25], v9 offset0:0 offset1:4"); A("ds_read2_b32 v[26:27], v9 offset0:1 offset1:5")
    A("s_waitcnt lgkmcnt(2)"); A("buffer_store_dwordx4 v[20:23], v3, s[32:35], s61 offen sc1")
    A("s_waitcnt lgkmcnt(0)"); A("buffer_store_dwordx4 v[24:27], v4, s[32:35], s61 offen sc1")
    A(f"s_branch {top}")
    A.label("r_chainG")
    A("v_min_u32 v3, 27, v1"); A("v_lshlrev_b32 v3, 7, v3"); A("v_lshlrev_b32 v4, 7, v1"); A("v_mov_b32 v8, 0"); A("v_mov_b32 v9, 1")
    A("s_mov_b32 s60, 0")
    A(f"s_lshl_b32 s62, s{SW}, 8"); A(f"s_add_u32 s62, s62, {LY.GO}")
    def go_store():
        sl = A.new("gs"); dn = A.new("gd")
        A("s_mov_b64 exec, 1")
        A(f"s_cmp_eq_u32 s{SFAST}, 1"); A(f"s_cbranch_scc0 {sl}")
        A("buffer_store_dword v9, v8, s[32:35], s62 offen"); A(f"s_branch {dn}")
        A.label(sl); A("buffer_store_dword v9, v8, s[32:35], s62 offen sc1")
        A.label(dn); A("s_mov_b64 exec, -1"); A("s_add_u32 s62, s62, 4")
    A(f"s_cmp_ge_u32 s{SW}, 2"); A("s_cbranch_scc1 r_chainX")
    A(f"s_mul_i32 s61, s{SW}, {64*3584}"); A(f"s_add_u32 s61, s61, {LY.FU}")
    top = A.new("gu"); A.label(top)
    p = Poll(A, 71, sleep=2); p.begin()
    A("buffer_load_dwordx4 v[12:15], v3, s[32:35], s61 offen sc1"); A("s_waitcnt vmcnt(0)")
    A("v_and_b32 v12, v12, v13"); A("v_and_b32 v14, v14, v15"); A("v_and_b32 v12, v12, v14"); A("v_cmp_ne_u32 vcc, 1, v12")
    p.end()
    go_store()
    A("s_add_u32 s61, s61, 3584"); A("s_add_u32 s60, s60, 1"); A("s_cmp_lt_u32 s60, 63"); A(f"s_cbranch_scc1 {top}")
    A("s_endpgm")
    A.label("r_chainX")
    A(f"s_cmp_eq_u32 s{SW}, 3"); A("s_cbranch_scc1 r_chainT")
    A(f"s_mov_b32 s61, {LY.FX}"); A(f"s_mov_b32 s63, {LY.XS + 64*28672}")
    top = A.new("gx"); A.label(top)
    p = Poll(A, 72, sleep=2); p.begin()
    A("buffer_load_dword v12, v3, s[32:35], s61 offen sc1"); A("s_waitcnt vmcnt(0)"); A("v_cmp_ne_u32 vcc, 1, v12")
    p.end()
    A("s_mov_b32 s64, s63"); touch_lines(A, 4, 13, 64, 4)
    A("s_waitcnt vmcnt(0)")
    go_store()
    A("s_add_u32 s61, s61, 3584"); A("s_add_u32 s63, s63, 28672"); A("s_add_u32 s60, s60, 1"); A("s_cmp_lt_u32 s60, 63"); A(f"s_cbranch_scc1 {top}")
    A("s_endpgm")
    A.label("r_chainT")
    A(f"s_mov_b32 s63, {LY.XS + 28672}"); A(f"s_mov_b32 s61, {LY.MS}")
    A("s_mov_b32 s64, s63"); touch_lines(A, 4, 13, 64, 8); A(f"s_add_u32 s63, s63, {2*28672}")
    A(f"s_mov_b32 s64, {LY.PC}"); touch_lines(A, 4, 13, 64, 3)
    A(f"s_mov_b32 s64, {LY.MS}"); touch_lines(A, 4, 13, 64, 3)
    A(f"s_mov_b32 s65, {LY.PC + 2*10240}"); A(f"s_mov_b32 s66, {LY.MS + 3*7168}")
    A(f"s_mov_b32 s67, {LY.PC + 64*10240}"); A(f"s_mov_b32 s68, {LY.MS + 64*7168}"); A(f"s_mov_b32 s69, {LY.XS + 63*28672 + XLEAD*28672}")
    top = A.new("gt"); A.label(top)
    p = Poll(A, 73, sleep=4); p.begin()
    A("buffer_load_dword v12, v8, s[32:35], s61 offen sc1"); A("s_waitcnt vmcnt(0)"); A("v_cmp_eq_u32 vcc, -1, v12")
    p.end()
    if EV:
        A("s_memtime s[70:71]"); A(f"s_mul_i32 s64, s60, {448*1024}"); A(f"s_add_u32 s64, s64, {LY.U + 3*448*1024}")
        A("s_waitcnt lgkmcnt(0)"); touch_lines(A, 4, 13, 64, 1); A("s_waitcnt vmcnt(0)"); A("s_memtime s[72:73]"); A("s_waitcnt lgkmcnt(0)")
        A("s_sub_u32 s72, s72, s70"); A("v_mov_b32 v14, s72"); A("s_lshl_b32 s64, s60, 2"); A(f"s_add_u32 s64, s64, {LY.DBG + 131072}")
        A("buffer_store_dword v14, v8, s[32:35], s64 offen")
    A("s_mov_b32 s64, s65"); touch_lines(A, 4, 13, 64, 2)
    A("s_mov_b32 s64, s66"); touch_lines(A, 4, 13, 64, 1)
    n1 = A.new("n1")
    A(f"s_cmp_lt_u32 s60, {LY.LAG - 3}"); A(f"s_cbranch_scc1 {n1}")
    A("s_mov_b32 s64, s67"); touch_lines(A, 4, 13, 64, 2)
    A("s_mov_b32 s64, s68"); touch_lines(A, 4, 13, 64, 1)
    A("s_mov_b32 s64, s69"); touch_lines(A, 4, 13, 64, 4)
    A("s_add_u32 s67, s67, 10240"); A("s_add_u32 s68, s68, 7168"); A("s_add_u32 s69, s69, 28672")
    A.label(n1)
    A("s_mov_b32 s64, s63"); touch_lines(A, 4, 13, 64, 4)
    A("s_add_u32 s65, s65, 10240"); A("s_add_u32 s66, s66, 7168")
    A("s_add_u32 s61, s61, 7168"); A("s_add_u32 s63, s63, 28672"); A("s_add_u32 s60, s60, 1"); A("s_cmp_lt_u32 s60, 64"); A(f"s_cbranch_scc1 {top}")
    touch_lines(A, 4, 13, 67, (LY.LAG * 10240) // 8192 + 1)
    touch_lines(A, 4, 13, 68, (LY.LAG * 7168) // 8192 + 1)
    A("s_endpgm")

def gen_k1(A, name, roles):
    kernel_head(A, name)
    dispatch(A)
    A("s_mov_b32 s76, 4096"); A("s_mov_b32 s77, 8192"); A("s_mov_b32 s57, 0")
    A(f"s_cmp_lt_u32 s{SROLE}, 16"); A("s_cbranch_scc1 r_chainA")
    A(f"s_cmp_lt_u32 s{SROLE}, 30"); A("s_cbranch_scc1 r_chainB")
    A(f"s_cmp_lt_u32 s{SROLE}, 32"); A("s_cbranch_scc1 r_chainR")
    if GATE:
        ng = A.new("ng")
        A(f"s_cmp_lt_u32 s{SROLE}, 64"); A(f"s_cbranch_scc1 {ng}")
        A(f"s_cmp_ge_u32 s{SRANK}, 28"); A(f"s_cselect_b32 s44, 3, s{SROLE}"); A(f"s_cmp_lt_u32 s{SROLE}, 96"); A(f"s_cselect_b32 s44, s{SROLE}, s44")
        A("s_lshr_b32 s45, s44, 5"); A("s_cmp_eq_u32 s45, 3"); A(f"s_cbranch_scc1 {ng}"); A("s_cmp_eq_u32 s44, 3"); A(f"s_cbranch_scc1 {ng}")
        A(f"s_mov_b32 s44, {LY.CNT + 31*128}")
        p = Poll(A, 5, sleep=16); p.begin()
        A("buffer_load_dword v3, off, s[32:35], s44 sc1"); A("s_waitcnt vmcnt(0)"); A("v_cmp_ne_u32 vcc, 1, v3")
        p.end()
        A.label(ng)
    for lo, hi, lab in roles:
        A(f"s_cmp_lt_u32 s{SROLE}, {hi}"); A(f"s_cbranch_scc1 {lab}")
    A.label("k1_exit")
    A("s_endpgm")
    A.label("k1_fail")
    A(f"s_lshl_b32 s55, s{SROLE}, 16"); A(f"s_lshl_b32 s56, s{SK}, 8"); A("s_or_b32 s54, s54, s55"); A("s_or_b32 s54, s54, s56")
    A("v_mov_b32 v3, s54"); A("s_and_b32 s55, s54, 15"); A("s_lshl_b32 s55, s55, 2"); A("v_mov_b32 v4, s55")
    A("buffer_store_dword v3, v4, s[36:39], 0 offen")
    A("s_endpgm")
    A.label("r_chainA"); chainA(A)
    A.label("r_chainB"); chainB(A)
    A.label("r_chainR"); chainR(A)
    return kernel_desc(name, 512, 256)
```

```python
import os
from gen_common import *
from gen_main import *
import gen_main as GM
LATEPRE = int(os.environ.get('LATEPRE', '0'))
LOCALF = int(os.environ.get('LOCALF', '1'))
FULL1 = int(os.environ.get('FULL1', '1'))
PRELATE = int(os.environ.get('PRELATE', '1'))
SL = 58
NEG = -1e9 * LY.LOG2E
NFILL = GM.NFILL

def task_off(A, sd, sseg, bytes_per, base, use_layer=True):
    if use_layer:
        A(f"s_lshl_b32 s{sd}, s{SL}, 6"); A(f"s_add_u32 s{sd}, s{sd}, s{sseg}"); A(f"s_mul_i32 s{sd}, s{sd}, {bytes_per}")
    else:
        A(f"s_mul_i32 s{sd}, s{sseg}, {bytes_per}")
    A(f"s_add_u32 s{sd}, s{sd}, {base}")

def rec_off(A, sd, sseg, field, per_layer=0, step=False):
    if step:
        A(f"s_mul_i32 s{sd}, s{SL}, {LY.LAG}"); A(f"s_add_u32 s{sd}, s{sd}, s{sseg}"); A(f"s_mul_i32 s{sd}, s{sd}, {LY.RS}")
    else:
        A(f"s_mul_i32 s{sd}, s{sseg}, {LY.RS}")
    if per_layer:
        A(f"s_mul_i32 s43, s{SL}, {per_layer}") if False else None
        A(f"s_cmp_eq_u32 s{SL}, 0"); A(f"s_cselect_b32 s47, 0, {per_layer}"); A(f"s_add_u32 s{sd}, s{sd}, s47")
    A(f"s_add_u32 s{sd}, s{sd}, {LY.S1_BEG + field}")

def step_off(A, sd, sseg, bytes_per, base):
    A(f"s_mul_i32 s{sd}, s{SL}, {LY.LAG}"); A(f"s_add_u32 s{sd}, s{sd}, s{sseg}"); A(f"s_mul_i32 s{sd}, s{sd}, {bytes_per}")
    A(f"s_add_u32 s{sd}, s{sd}, {base}")

def wait_ready(A, vt, code, sseg, stride=1):
    sk = A.new("rdy")
    A(f"s_and_b32 s44, s{sseg}, 7"); A(f"s_cmp_ge_u32 s44, {stride}"); A(f"s_cbranch_scc1 {sk}")
    A(f"s_lshr_b32 s44, s{sseg}, 3"); A("s_lshl_b32 s44, s44, 7"); A(f"s_add_u32 s44, s44, {LY.CNT + 17*128}")
    A(f"v_mov_b32 v{vt}, 0")
    p = Poll(A, code, sleep=8); p.begin()
    A(f"buffer_load_dword v{vt+1}, v{vt}, s[32:35], s44 offen sc1")
    A("s_waitcnt vmcnt(0)")
    A(f"v_cmp_ne_u32 vcc, {NFILL}, v{vt+1}")
    p.end()
    A.label(sk)

SAR = 59
def allready_load(vt): return f"buffer_load_dword v{vt}, off, s[32:35], s57 sc1"
def allready_init(A, vt):
    A(f"s_mov_b32 s{SAR}, 0"); A(f"s_mov_b32 s57, {LY.CNT + (17 + LY.NGRP - 1)*128}"); A(f"v_mov_b32 v{vt}, 0")
def boundary_guard(A, SS, vt, poison):
    ng = A.new("ng")
    A(f"v_readfirstlane_b32 s44, v{vt}"); A(f"s_cmp_eq_u32 s44, {NFILL}"); A(f"s_cbranch_scc1 {ng}")
    A(f"s_add_u32 s44, s{SS}, 1"); A("s_and_b32 s44, s44, 7"); A("s_cmp_eq_u32 s44, 0"); A(f"s_cbranch_scc0 {ng}_l")
    A("s_waitcnt vmcnt(0)"); A(f"v_mov_b32 v{poison}, -1")
    A.label(ng + "_l")
    A(allready_load(vt)); A("s_waitcnt vmcnt(0)")
    A.label(ng)

def loads7(A, ssrc, stmp, vwl, regs0, flags=" sc1"):
    A(f"s_add_u32 s{stmp}, s{ssrc}, 4096")
    for i in range(7):
        A(f"buffer_load_dwordx4 {v(regs0+i*4,4)}, v{vwl}, s[32:35], s{ssrc if i < 4 else stmp} offen offset:{(i%4)*1024}{flags}")

def xorsum(A, x, t):
    for op in ("v_permlane16_swap_b32", "v_permlane32_swap_b32"):
        A(f"v_mov_b32 v{t}, v{x}")
        A(f"{op} v{x}, v{t}")
        A(f"v_add_f32 v{x}, v{x}, v{t}")

def stat_addrs(A, vj, vg, va, va4, vmask, t):
    A(f"s_lshr_b32 s44, s{SW}, 1"); A("s_lshl_b32 s44, s44, 11")
    A(f"v_lshlrev_b32 v{va}, 7, v{vg}"); A(f"v_lshl_add_u32 v{va}, v{vj}, 3, v{va}"); A(f"v_add_u32 v{va}, s44, v{va}")
    A(f"v_add_u32 v{va4}, 1536, v{va}"); A(f"v_mov_b32 v{t}, {OOB}"); A(f"v_cmp_gt_u32 vcc, 2, v{vg}")
    A(f"v_cndmask_b32 v{va4}, v{t}, v{va4}, vcc")
    A(f"v_mov_b32 v{t}, 1.0"); A(f"v_mov_b32 v{vmask}, 0"); A(f"v_cndmask_b32 v{vmask}, v{vmask}, v{t}, vcc")

def stat_loads(A, R_, va, va4, sst):
    for q in range(3): A(f"buffer_load_dwordx2 {v(R_+2*q,2)}, v{va}, s[32:35], s{sst} offen offset:{q*512} sc1")
    A(f"buffer_load_dwordx2 {v(R_+6,2)}, v{va4}, s[32:35], s{sst} offen sc1")

def stat_combine(A, R_, vmask, T):
    A(f"v_add_f32 v{T}, v{R_}, v{R_+2}"); A(f"v_add_f32 v{T+1}, v{R_+4}, v{R_+6}"); A(f"v_add_f32 v{T}, v{T}, v{T+1}")
    xorsum(A, T, T+2)
    A(f"v_mul_f32 v{T}, {f32(1/14)}, v{T}")
    A(f"v_add_f32 v{T+1}, v{R_+1}, v{R_+3}"); A(f"v_add_f32 v{T+2}, v{R_+5}, v{R_+7}"); A(f"v_add_f32 v{T+1}, v{T+1}, v{T+2}")
    for q in range(4): A(f"v_sub_f32 v{R_+2*q}, v{R_+2*q}, v{T}")
    A(f"v_mul_f32 v{R_+6}, v{R_+6}, v{vmask}")
    A(f"v_mul_f32 v{T+2}, v{R_}, v{R_}")
    for q in range(1, 4): A(f"v_fmac_f32 v{T+2}, v{R_+2*q}, v{R_+2*q}")
    A(f"v_fmac_f32 v{T+1}, {f32(32.0)}, v{T+2}")
    xorsum(A, T+1, T+2)
    A(f"v_mov_b32 v{T+2}, {f32(1e-5)}")
    A(f"v_fmac_f32 v{T+2}, {f32(1/448)}, v{T+1}")
    A(f"v_rsq_f32 v{T+2}, v{T+2}")
    A(f"v_mul_f32 v{T+1}, v{T}, v{T+2}"); A(f"v_sub_f32 v{T+1}, 0, v{T+1}")
    A(f"v_mov_b32 v{T}, v{T+2}")

def checked_stage(A, ssrc, sst, vwl, STG, R_, va, va4, vmask, T, vtab, ldsbase, code, tchk):
    p = Poll(A, code, sleep=1); p.begin()
    stat_loads(A, R_, va, va4, sst)
    loads7(A, ssrc, 47, vwl, STG)
    A("s_waitcnt vmcnt(0)")
    for t in chk_tree(A, list(range(STG, STG+28)) + list(range(R_, R_+8)), tchk): A(t)
    p.end()
    for i in range(7): A(f"ds_write_b128 v{vwl}, {v(STG+i*4,4)} offset:{ldsbase+i*1024}")
    stat_combine(A, R_, vmask, T)
    A(f"ds_write_b32 v{vtab}, v{T}"); A(f"ds_write_b32 v{vtab}, v{T+1} offset:128")
    A("s_waitcnt lgkmcnt(0)"); A("s_barrier")

def lds_gemm(A, nk, nfr, rd, FB, mf, fill=(), every=2, start=1):
    fill = list(fill); cnt = 0
    buf = lambda kk, f: FB + ((kk % 3) * nfr + f) * 4
    for kk in range(min(2, nk)):
        for f in range(nfr): A(rd(kk, f, buf(kk, f)))
    for kk in range(nk):
        A(f"s_waitcnt lgkmcnt({nfr if kk + 1 < nk else 0})")
        for n, m in enumerate(mf(kk, [buf(kk, f) for f in range(nfr)])):
            A(m)
            if kk + 2 < nk and n < nfr: A(rd(kk + 2, n, buf(kk + 2, n)))
            cnt += 1
            if fill and cnt >= start and (cnt - start) % every == 0:
                x = fill.pop(0)
                for y in (x if isinstance(x, (list, tuple)) else [x]): A(y)
    return fill

def loads7_list(ssrc, stmp, vwl, regs0, flags=" sc1"):
    return [f"buffer_load_dwordx4 {v(regs0+i*4,4)}, v{vwl}, s[32:35], s{ssrc if i < 4 else stmp} offen offset:{(i%4)*1024}{flags}" for i in range(7)]

def stat_loads_list(R_, va, va4, sst):
    return [f"buffer_load_dwordx2 {v(R_+2*q,2)}, v{va}, s[32:35], s{sst} offen offset:{q*512} sc1" for q in range(3)] + \
           [f"buffer_load_dwordx2 {v(R_+6,2)}, v{va4}, s[32:35], s{sst} offen sc1"]

def staged_input(A, loads, nyoung, STG, R_, vwl, vmask, T, vtab, code, tchk, on_miss=None):
    ok = A.new("sok")
    regs_ = list(range(STG, STG+28)) + list(range(R_, R_+8))
    A(f"s_waitcnt vmcnt({nyoung})")
    for t in chk_tree(A, regs_, tchk): A(t)
    A(f"s_cbranch_vccz {ok}")
    if on_miss: on_miss()
    p = Poll(A, code); p.begin()
    for t in loads: A(t)
    A("s_waitcnt vmcnt(0)")
    for t in chk_tree(A, regs_, tchk): A(t)
    p.end()
    A.label(ok)
    for i in range(7): A(f"ds_write_b128 v{vwl}, {v(STG+i*4,4)} offset:{i*1024}")
    stat_combine(A, R_, vmask, T)
    A(f"ds_write_b32 v{vtab}, v{T}"); A(f"ds_write_b32 v{vtab}, v{T+1} offset:128")
    A("s_waitcnt lgkmcnt(0)"); A("s_barrier")

def sample_poll(A, vaddr, soff, vt, code):
    p = Poll(A, code); p.begin()
    A(f"buffer_load_dword v{vt}, v{vaddr}, s[32:35], s{soff} offen sc1")
    A("s_waitcnt vmcnt(0)")
    A(f"v_cmp_eq_u32 vcc, -1, v{vt}")
    p.end()

def sample_addr_staged(A, vd, st_rel, t):
    A(f"s_mul_i32 s44, s{SW}, 7168"); A(f"v_lshlrev_b32 v{vd}, 10, v1"); A(f"v_add_u32 v{vd}, s44, v{vd}")
    A(f"v_mov_b32 v{t}, {OOB}"); A("v_cmp_gt_u32 vcc, 7, v1"); A(f"v_cndmask_b32 v{vd}, v{t}, v{vd}, vcc")
    A(f"v_subrev_u32 v{t+1}, 32, v1"); A(f"v_cmp_lt_u32 vcc, 13, v{t+1}"); A(f"v_cndmask_b32 v{t+2}, 0, 2, vcc" if False else f"v_mov_b32 v{t+2}, 2")
    A(f"v_cndmask_b32 v{t+2}, 0, v{t+2}, vcc"); A(f"v_add_u32 v{t+2}, v{t+1}, v{t+2}"); A(f"v_lshlrev_b32 v{t+2}, 7, v{t+2}")
    A(f"v_add_u32 v{t+2}, {st_rel}, v{t+2}") if isinstance(st_rel, int) else A(f"v_add_u32 v{t+2}, {st_rel}, v{t+2}")
    A(f"v_cmp_gt_u32 vcc, 28, v{t+1}"); A(f"v_cndmask_b32 v{vd}, v{vd}, v{t+2}, vcc")

class Rec:
    def __init__(self): self.l = []
    def __call__(self, x): self.l.append(x)

def stat_addrs2(A, vj, vg, va, va4, vmask, t):
    A(f"v_lshlrev_b32 v{va}, 7, v{vg}"); A(f"v_lshl_add_u32 v{va}, v{vj}, 3, v{va}")
    A(f"v_add_u32 v{va4}, 1536, v{va}"); A(f"v_mov_b32 v{t}, {OOB}"); A(f"v_cmp_gt_u32 vcc, 2, v{vg}")
    A(f"v_cndmask_b32 v{va4}, v{t}, v{va4}, vcc")
    A(f"v_mov_b32 v{t}, 1.0"); A(f"v_mov_b32 v{vmask}, 0"); A(f"v_cndmask_b32 v{vmask}, v{vmask}, v{t}, vcc")

def stat_loads2(R_, va, va4, sst):
    out = []
    for tt in range(2):
        out += [f"buffer_load_dwordx2 {v(R_+tt*8+2*q,2)}, v{va}, s[32:35], s{sst} offen offset:{tt*2048 + q*512} sc1" for q in range(3)]
        out += [f"buffer_load_dwordx2 {v(R_+tt*8+6,2)}, v{va4}, s[32:35], s{sst} offen offset:{tt*2048} sc1"]
    return out

def staged_input2(A, loads, nyoung, STG, R_, RC, vwl, code, tchk, on_miss, vsmp, ssrc):
    ok = A.new("sok")
    regs_ = list(range(STG, STG+28)) + list(range(R_, R_+16))
    A(f"s_waitcnt vmcnt({nyoung})")
    for t in chk_tree(A, regs_, tchk): A(t)
    A(f"s_cbranch_vccz {ok}")
    if on_miss: on_miss()
    for _ in range(FULL1):
        for t in loads: A(t)
        A("s_waitcnt vmcnt(0)")
        for t in chk_tree(A, regs_, tchk): A(t)
        A(f"s_cbranch_vccz {ok}")
    sample_poll(A, vsmp, ssrc, tchk, code + 2)
    p = Poll(A, code); p.begin()
    for t in loads: A(t)
    A("s_waitcnt vmcnt(0)")
    for t in chk_tree(A, regs_, tchk): A(t)
    p.end()
    A.label(ok)
    for i in range(7):
        A(f"ds_write_b128 v{vwl}, {v(STG+i*4,4)} offset:{i*1024}")
        for q in range(2*i, min(16, 2*i + (2 if i < 6 else 4))): A(f"v_mov_b32 v{RC+q}, v{R_+q}")
    A("s_waitcnt lgkmcnt(0)"); A("s_barrier")

def unpack8(A, src, dst):
    for q in range(4):
        A(f"v_lshlrev_b32 v{dst+2*q}, 16, v{src+q}"); A(f"v_and_b32 v{dst+2*q+1}, 0xffff0000, v{src+q}")

def final_addrs(A, sj, vj, vg, vred_w, vred_r, vfrag, vrec, vrow, lred, t):
    A(f"s_lshl_b32 s45, s{SW}, 12"); A(f"s_add_u32 s45, s45, {lred}"); A(f"v_add_u32 v{vred_w}, s45, v2")
    A(f"s_and_b32 s46, s{SW}, 1")
    A(f"s_lshl_b32 s45, s46, 10"); A(f"s_add_u32 s45, s45, {lred}"); A(f"v_add_u32 v{vred_r}, s45, v2")
    A(f"s_mul_i32 s45, s46, 14"); A(f"s_add_u32 s45, s45, s{sj}"); A("s_lshl_b32 s45, s45, 10"); A(f"v_add_u32 v{vfrag}, s45, v2")
    A(f"s_lshl_b32 s45, s46, 11"); A(f"s_lshl_b32 s44, s{sj}, 7"); A("s_add_u32 s45, s45, s44")
    A(f"v_lshlrev_b32 v{vrec}, 3, v{vj}"); A(f"v_add_u32 v{vrec}, s45, v{vrec}")
    A(f"v_mov_b32 v{t}, {OOB}"); A(f"v_cmp_eq_u32 vcc, 0, v{vg}"); A(f"v_cndmask_b32 v{vrec}, v{t}, v{vrec}, vcc")
    A(f"s_lshl_b32 s45, s46, 4"); A(f"v_add_u32 v{vrow}, s45, v{vj}"); A(f"v_mul_u32_u24 v{vrow}, 896, v{vrow}")
    A(f"v_lshl_add_u32 v{vrow}, v{vg}, 4, v{vrow}"); A(f"s_lshl_b32 s45, s{sj}, 6"); A(f"v_add_u32 v{vrow}, s45, v{vrow}")

def final_sum(A, vred_r, PR, RES, Y):
    for ct in range(2):
        for w in range(4): A(f"ds_read_b128 {v(PR+(ct*4+w)*4,4)}, v{vred_r} offset:{w*4096 + ct*2048}")
    unpack8(A, RES, Y)
    for ct in range(2):
        A(f"s_waitcnt lgkmcnt({4 - 4*ct})")
        b = PR + ct * 16
        for r in (0, 2):
            A(f"v_pk_add_f32 {v(b+r,2)}, {v(b+r,2)}, {v(b+4+r,2)}"); A(f"v_pk_add_f32 {v(b+8+r,2)}, {v(b+8+r,2)}, {v(b+12+r,2)}")
        for r in (0, 2): A(f"v_pk_add_f32 {v(b+r,2)}, {v(b+r,2)}, {v(b+8+r,2)}")
        for r in (0, 2): A(f"v_pk_add_f32 {v(Y+ct*4+r,2)}, {v(Y+ct*4+r,2)}, {v(b+r,2)}")

def final_publish(A, Y, T, vfrag, vrec, sdst, sst):
    for q in range(4): A(f"v_cvt_pk_bf16_f32 v{T+4+q}, v{Y+2*q}, v{Y+2*q+1}")
    for q in range(4): A(f"v_min_u32 v{T+4+q}, -2, v{T+4+q}")
    A(f"buffer_store_dwordx4 {v(T+4,4)}, v{vfrag}, s[32:35], s{sdst} offen sc1")
    A(f"v_add_f32 v{T}, v{Y}, v{Y+1}"); A(f"v_add_f32 v{T+1}, v{Y+2}, v{Y+3}")
    A(f"v_add_f32 v{T+2}, v{Y+4}, v{Y+5}"); A(f"v_add_f32 v{T+3}, v{Y+6}, v{Y+7}")
    A(f"v_add_f32 v{T}, v{T}, v{T+1}"); A(f"v_add_f32 v{T+2}, v{T+2}, v{T+3}"); A(f"v_add_f32 v{T}, v{T}, v{T+2}")
    xorsum(A, T, T+2)
    A(f"v_mul_f32 v{T}, {f32(1/32)}, v{T}")
    for r in range(8): A(f"v_sub_f32 v{Y+r}, v{Y+r}, v{T}")
    A(f"v_mul_f32 v{T+1}, v{Y}, v{Y}"); A(f"v_mul_f32 v{T+3}, v{Y+1}, v{Y+1}")
    for r in range(2, 8, 2):
        A(f"v_fmac_f32 v{T+1}, v{Y+r}, v{Y+r}"); A(f"v_fmac_f32 v{T+3}, v{Y+r+1}, v{Y+r+1}")
    A(f"v_add_f32 v{T+1}, v{T+1}, v{T+3}")
    xorsum(A, T+1, T+2)
    A(f"v_min_u32 v{T}, -2, v{T}"); A(f"v_min_u32 v{T+1}, -2, v{T+1}")
    A(f"buffer_store_dwordx2 {v(T,2)}, v{vrec}, s[32:35], s{sst} offen sc1")

def pack2(A, a0, b0):
    A(f"v_cvt_pk_bf16_f32 v{a0}, v{a0}, v{a0+1}"); A(f"v_cvt_pk_bf16_f32 v{a0+1}, v{a0+2}, v{a0+3}")
    A(f"v_cvt_pk_bf16_f32 v{a0+2}, v{b0}, v{b0+1}"); A(f"v_cvt_pk_bf16_f32 v{a0+3}, v{b0+2}, v{b0+3}")

def roleFill(A):
    A(f"s_lshr_b32 s44, s{SROLE}, 5"); A("s_sub_u32 s44, s44, 3"); A("s_lshl_b32 s44, s44, 2")
    A(f"s_add_u32 s44, s44, s{SRANK}"); A("s_sub_u32 s44, s44, 28")
    A("s_lshl_b32 s60, s44, 12"); A(f"s_add_u32 s60, s60, {LY.S1_BEG}")
    A(f"s_mov_b32 s61, {LY.S1_BEG + 8*LY.RS}"); A(f"s_mov_b32 s62, {LY.CNT + 17*128}")
    A("v_lshlrev_b32 v3, 4, v0")
    for r in range(4): A(f"v_mov_b32 v{4+r}, -1")
    A("v_mov_b32 v8, 0"); A("v_mov_b32 v9, 1")
    G = A.new("fgrp"); A.label(G)
    L = A.new("fill"); A.label(L)
    A("buffer_store_dwordx4 v[4:7], v3, s[32:35], s60 offen sc1")
    A(f"s_add_u32 s60, s60, {NFILL*4096}"); A("s_cmp_lt_u32 s60, s61"); A(f"s_cbranch_scc1 {L}")
    A("s_waitcnt vmcnt(0)"); A("s_barrier")
    sk = A.new("fd")
    A(f"s_cmp_lg_u32 s{SW}, 0"); A(f"s_cbranch_scc1 {sk}")
    A("s_mov_b64 exec, 1")
    A("buffer_atomic_add v9, v8, s[32:35], s62 offen sc1")
    A("s_mov_b64 exec, -1")
    A.label(sk)
    A(f"s_add_u32 s61, s61, {8*LY.RS}"); A("s_add_u32 s62, s62, 128")
    A(f"s_cmp_le_u32 s61, {LY.S1_END}"); A(f"s_cbranch_scc1 {G}")
    event(A, SROLE, 4, 10)
    A("s_endpgm")

def roleTA(A):
    SM, ST_, SH, SOWN, SMK = 60, 74, 59, 82, 86
    SS, SA, SB = 94, 95, 96
    ACC, FB, SC = 16, 72, 96
    acc = lambda j, tt: ACC + (j * 2 + tt) * 4
    LXS, LP = 0, 28672
    A(f"s_lshr_b32 s{SL}, s{SROLE}, 5"); A(f"s_sub_u32 s{SL}, s{SL}, 1")
    A(f"s_and_b32 s{SH}, s{SRANK}, 15")
    a_slots_setup(A, SM, ST_, SH)
    for i in range(4): A(f"s_mov_b32 s{SOWN+i}, s{SM+10+i}")
    for i in range(14): A(f"s_mov_b32 s{SM+i}, {i*1024}")
    load_A_weights(A, SM, ST_, wregA)
    A(f"s_lshl_b32 s97, s46, 3")
    A(f"s_mov_b32 s98, s46")
    A("v_and_b32 v9, 15, v1"); A("v_lshrrev_b32 v10, 4, v1")
    A(f"s_mul_i32 s45, s{SW}, 7168"); A("v_add_u32 v3, s45, v2")
    A(f"s_mul_i32 s45, s{SW}, 6656"); A(f"s_add_u32 s45, s45, {LP}")
    A("v_mul_u32_u24 v4, 208, v9"); A("v_lshl_add_u32 v4, v10, 4, v4"); A("v_add_u32 v4, s45, v4")
    A("v_lshrrev_b32 v9, 3, v0"); A("v_and_b32 v10, 7, v0")
    A("v_lshrrev_b32 v11, 1, v10"); A("v_lshlrev_b32 v11, 2, v11"); A("v_and_b32 v12, 1, v10"); A("v_lshl_add_u32 v11, v12, 4, v11")
    for r in range(4):
        A(f"v_add_u32 v12, {r}, v11"); A(f"v_cmp_le_u32 s[{SMK+2*r}:{SMK+2*r+1}], v12, v9")
    A("v_mul_u32_u24 v12, 208, v9"); A(f"v_add_u32 v12, {LP}, v12")
    A("v_lshl_add_u32 v5, v11, 2, v12"); A("v_add_u32 v5, 64, v5")
    A("v_lshl_add_u32 v6, v10, 2, v12")
    A("v_and_b32 v11, 15, v9"); A("v_lshrrev_b32 v12, 4, v9")
    A("v_lshrrev_b32 v7, 1, v10"); A("v_lshl_add_u32 v7, v7, 4, v11"); A("v_lshlrev_b32 v7, 4, v7")
    A("v_lshl_add_u32 v7, v12, 10, v7"); A("v_and_b32 v13, 1, v10"); A("v_lshl_add_u32 v7, v13, 3, v7")
    A(f"s_lshl_b32 s45, s{SH}, 11"); A("v_add_u32 v7, s45, v7")
    A("v_lshrrev_b32 v8, 1, v10"); A("v_lshl_add_u32 v8, v8, 4, v11"); A("v_lshlrev_b32 v8, 2, v8")
    A("v_lshl_add_u32 v8, v12, 8, v8")
    A(f"s_lshl_b32 s45, s{SH}, 9"); A("s_add_u32 s45, s45, 32768"); A("v_add_u32 v8, s45, v8")
    A("v_cmp_eq_u32 vcc, 0, v13"); A(f"v_mov_b32 v12, {OOB}"); A("v_cndmask_b32 v8, v12, v8, vcc")
    A("v_and_b32 v9, 15, v1"); A("v_lshrrev_b32 v10, 4, v1")
    A("v_lshl_add_u32 v15, v10, 3, v9"); A("v_lshlrev_b32 v15, 4, v15"); A("v_cmp_gt_u32 vcc, 8, v9"); A("v_cndmask_b32 v15, v12, v15, vcc")
    for i in range(4): A(f"s_lshr_b32 s{74+i}, s{SOWN+i}, 1")
    A("v_min_u32 v13, 27, v1"); A("v_lshlrev_b32 v13, 7, v13")
    A(f"v_mov_b32 v14, {f32(NEG)}")
    A(f"s_lshr_b32 s{SS}, s{SRANK}, 4")
    event(A, SROLE, 1, 10)
    top = A.new("ta"); A.label(top)
    A(f"s_mov_b32 s{SK}, s{SS}")
    stampB(A, 0, 116)
    nf = A.new("nf")
    A(f"s_cmp_eq_u32 s{SL}, 0"); A(f"s_cbranch_scc1 {nf}")
    task_off(A, SA, SS, 3584, LY.FX, False)
    p = Poll(A, 30, sleep=2); p.begin()
    A(f"buffer_load_dword v9, v13, s[32:35], s{SA} offen sc1"); A("s_waitcnt vmcnt(0)"); A("v_cmp_ne_u32 vcc, 1, v9")
    p.end()
    A.label(nf)
    stampB(A, 1, 116)
    task_off(A, SA, SS, 28672, LY.XS)
    loads7(A, SA, 47, 3, ACC)
    for i in range(7):
        A(f"s_waitcnt vmcnt({6-i})"); A(f"ds_write_b128 v3, {v(ACC+i*4,4)} offset:{LXS+i*1024}")
    A("s_waitcnt lgkmcnt(0)"); A("s_barrier")
    stampB(A, 2, 116)
    lds_gemm(A, 14, 2, lambda kk, f, d: f"ds_read_b128 {v(d,4)}, v2 offset:{LXS + f*14336 + kk*1024}", FB,
             lambda kk, fr: [f"{MM} {v(acc(j,tt),4)}, {wregA(j,kk)}, {v(fr[tt],4)}, {v(acc(j,tt),4) if kk else 0}" for j in range(7) for tt in range(2)])
    def pack(q, tt):
        a0 = acc(2*q, tt)
        if q < 3: pack2(A, a0, acc(2*q+1, tt))
        else:
            A(f"v_cvt_pk_bf16_f32 v{a0}, v{a0}, v{a0+1}"); A(f"v_cvt_pk_bf16_f32 v{a0+1}, v{a0+2}, v{a0+3}")
    sc = lambda kt, tt: SC + {(0,0): 0, (1,0): 4, (0,1): 8, (1,1): 12, (2,1): 16}[(kt, tt)]
    def keyread(ks):
        b = FB + 16 - (ks & 1) * 16
        A(f"v_add_u32 v9, s{SOWN+ks}, v2")
        if ks == 3: A("v_add_u32 v9, s97, v9")
        for tt in range(2):
            if ks < 3: A(f"ds_read_b128 {v(b+tt*4,4)}, v9 offset:{LXS + tt*14336}")
            else: A(f"ds_read_b64 {v(b+tt*4,2)}, v9 offset:{LXS + tt*14336}")
    keyread(0)
    for q in range(4):
        for tt in range(2): pack(q, tt)
    for ks in range(4):
        A("s_waitcnt lgkmcnt(0)")
        if ks < 3: keyread(ks + 1)
        b = FB + 16 - (ks & 1) * 16; w = 4 if ks < 3 else 2; op = MM if ks < 3 else MM16
        for (kt, tt) in ((1,0), (1,1), (2,1)):
            A(f"{op} {v(sc(kt,tt),4)}, {v(b+(kt-1)*4,w)}, {v(acc(2*ks,tt),w)}, {v(sc(kt,tt),4) if ks else 0}")
    for (kt, tt) in ((1,0), (1,1), (2,1)):
        A(f"ds_write_b128 v4, {v(sc(kt,tt),4)} offset:{tt*16*208 + kt*64}")
    stampB(A, 3, 116)
    MF = [acc(1,0), acc(1,1), acc(3,0), acc(3,1)]
    wait_ready(A, 9, 32, SS, 2)
    task_off(A, SB, SS, 7168, LY.MB); A(f"v_add_u32 v9, s{SB}, v15")
    rec_off(A, SA, SS, LY.R_PT, 40960)
    p = Poll(A, 31, sleep=1); p.begin()
    for ks in range(4): A(f"buffer_load_dwordx4 {v(MF[ks],4)}, v9, s[32:35], s{74+ks} offen sc1")
    A("s_waitcnt vmcnt(0)")
    for t in chk_tree(A, [MF[ks]+r for ks in range(4) for r in range(4)], 10): A(t)
    p.end()
    stampB(A, 4, 116)
    A(f"s_cmp_eq_u32 s98, 0"); A("s_cselect_b64 vcc, -1, 0")
    A(f"v_cndmask_b32 v{MF[3]}, v{MF[3]+2}, v{MF[3]}, vcc"); A(f"v_cndmask_b32 v{MF[3]+1}, v{MF[3]+3}, v{MF[3]+1}, vcc")
    for ks in range(4):
        w = 4 if ks < 3 else 2; op = MM if ks < 3 else MM16
        for tt in range(2):
            A(f"{op} {v(sc(0,tt),4)}, {v(MF[ks],w)}, {v(acc(2*ks,tt),w)}, {v(sc(0,tt),4) if ks else 0}")
    for tt in range(2):
        A(f"ds_write_b128 v4, {v(sc(0,tt),4)} offset:{tt*16*208}")
    A("s_waitcnt lgkmcnt(0)"); A("s_barrier")
    T = ACC
    for w in range(4): A(f"ds_read_b128 {v(T+w*4,4)}, v5 offset:{w*6656}")
    for w in range(4): A(f"ds_read_b32 v{T+16+w}, v6 offset:{w*6656}")
    A("s_waitcnt lgkmcnt(4)")
    for r in (0, 2):
        A(f"v_pk_add_f32 {v(T+r,2)}, {v(T+r,2)}, {v(T+4+r,2)}"); A(f"v_pk_add_f32 {v(T+8+r,2)}, {v(T+8+r,2)}, {v(T+12+r,2)}")
    for r in (0, 2): A(f"v_pk_add_f32 {v(T+r,2)}, {v(T+r,2)}, {v(T+8+r,2)}")
    A("s_waitcnt lgkmcnt(0)")
    A("s_barrier")
    A(f"v_add_f32 v{T+16}, v{T+16}, v{T+17}"); A(f"v_add_f32 v{T+18}, v{T+18}, v{T+19}")
    for r in range(4): A(f"v_cndmask_b32 v{T+r}, v14, v{T+r}, s[{SMK+2*r}:{SMK+2*r+1}]")
    A(f"v_add_f32 v{T+4}, v{T+16}, v{T+18}")
    A(f"v_max3_f32 v{T+5}, v{T}, v{T+1}, v{T+2}"); A(f"v_max3_f32 v{T+5}, v{T+5}, v{T+3}, v{T+4}")
    dpp_reduce8(A, "v_max_f32", T+5, None)
    for r in range(5): A(f"v_sub_f32 v{T+r}, v{T+r}, v{T+5}")
    for r in range(5): A(f"v_exp_f32 v{T+r}, v{T+r}")
    A(f"v_add_f32 v{T+5}, v{T}, v{T+1}"); A(f"v_add_f32 v{T+6}, v{T+2}, v{T+3}")
    A(f"v_add_f32 v{T+5}, v{T+5}, v{T+4}"); A(f"v_add_f32 v{T+5}, v{T+5}, v{T+6}")
    dpp_reduce8(A, "v_add_f32", T+5, None)
    A(f"v_rcp_f32 v{T+5}, v{T+5}")
    for r in range(5): A(f"v_mul_f32 v{T+r}, v{T+r}, v{T+5}")
    A(f"v_mov_b32_dpp v{T+6}, v{T+4} quad_perm:[1,0,3,2] row_mask:0xf bank_mask:0xf")
    A(f"v_cvt_pk_bf16_f32 v{T}, v{T}, v{T+1}"); A(f"v_cvt_pk_bf16_f32 v{T+1}, v{T+2}, v{T+3}")
    A(f"v_cvt_pk_bf16_f32 v{T+4}, v{T+4}, v{T+6}")
    for r in (0, 1, 4): A(f"v_min_u32 v{T+r}, -2, v{T+r}")
    A(f"buffer_store_dwordx2 {v(T,2)}, v7, s[32:35], s{SA} offen sc1")
    A(f"buffer_store_dword v{T+4}, v8, s[32:35], s{SA} offen sc1")
    stampB(A, 5, 116)
    A(f"s_add_u32 s{SS}, s{SS}, 2"); A(f"s_cmp_lt_u32 s{SS}, 64"); A(f"s_cbranch_scc1 {top}")
    if EV: A("s_waitcnt vmcnt(0)")
    event(A, SROLE, 4, 10)
    A("s_endpgm")

def roleU(A):
    SS, SA, SB, SC_, SN, SN2, SST, SFP, SFX_ = 61, 62, 63, 64, 65, 66, 67, 68, 69
    ACC, FB, STG, R_, T, CS, TB, ONE, RC, VAR = 24, 56, 80, 108, 148, 124, 128, 144, 156, 172
    LTAB = 65536
    wreg = lambda hh, kk: a((hh * 14 + kk) * 4, 4)
    A(f"s_lshr_b32 s{SL}, s{SROLE}, 5"); A(f"s_sub_u32 s{SL}, s{SL}, 3")
    for hh in range(4):
        A(f"s_lshl_b32 s44, s{SRANK}, 4"); A(f"s_lshl_b32 s45, s{SW}, 2"); A("s_add_u32 s44, s44, s45"); A(f"s_add_u32 s44, s44, {hh}")
        A("s_mul_i32 s44, s44, 14336"); A(f"s_add_u32 s44, s44, {LY.BF}")
        for kk in range(14):
            A(f"buffer_load_dwordx4 {wreg(hh,kk)}, v2, s[32:35], s44 offen offset:{(kk%4)*1024}")
            if kk % 4 == 3: A("s_add_u32 s44, s44, 4096")
    A("v_and_b32 v9, 15, v1"); A("v_lshrrev_b32 v10, 4, v1")
    A(f"s_mul_i32 s45, s{SW}, 7168"); A("v_add_u32 v3, s45, v2")
    A(f"s_lshl_b32 s45, s{SW}, 12"); A("v_add_u32 v5, s45, v2")
    A(f"v_mov_b32 v11, {OOB}"); A(f"s_lshl_b32 s45, s{SW}, 2"); A("v_mov_b32 v6, s45"); A("v_cmp_eq_u32 vcc, 0, v1")
    A("v_cndmask_b32 v6, v11, v6, vcc"); A("v_mov_b32 v7, 1")
    A("v_mov_b32 v4, v3"); A("v_mov_b32 v20, v2")
    def gemm(fill, every, start=1):
        return lds_gemm(A, 14, 2, lambda kk, f, d: f"ds_read_b128 {v(d,4)}, v20 offset:{f*14336 + kk*1024}", FB,
                 lambda kk, fr: [f"{MM} {v(ACC+(hh*2+tt)*4,4)}, {v(fr[tt],4)}, {wreg(hh,kk)}, {v(ACC+(hh*2+tt)*4,4) if kk else 0}" for hh in range(4) for tt in range(2)],
                 fill, every, start)
    task_off(A, SA, SK, 448 * 1024, LY.U); A(f"s_lshl_b32 s44, s{SRANK}, 14"); A(f"s_add_u32 s{SA}, s{SA}, s44")
    task_off(A, SB, SK, 3584, LY.FU); A(f"s_lshl_b32 s44, s{SRANK}, 7"); A(f"s_add_u32 s{SB}, s{SB}, s44")
    A(f"s_mov_b32 s{SFP}, {OOB}")
    flag = f"buffer_store_dword v7, v6, s[32:35], s{SFP} offen sc1"
    toggle = ["v_xor_b32 v4, 0x8000, v4", "v_xor_b32 v20, 0x8000, v20"]
    A(f"s_mov_b32 s{SS}, 0")
    A(f"s_cmp_eq_u32 s{SL}, 0"); A("s_cbranch_scc0 r_U1")
    A(f"s_mov_b32 s{SN}, {LY.XS}"); A(f"s_mov_b32 s{SN2}, {LY.XS + 4096}")
    nl = loads7_list(SN, SN2, 3, STG, "")
    for t in nl: A(t)
    for _ in range(4): A(f"buffer_store_dword v7, v11, s[32:35], 0 offen")
    event(A, SROLE, 1, 10)
    top = A.new("u0"); A.label(top)
    A(f"s_mov_b32 s{SK}, s{SS}")
    stampB(A, 0, 210)
    A("s_waitcnt vmcnt(4)" if not (GM.DIAG and GM.DIAGB) else "s_waitcnt vmcnt(0)")
    for i in range(7): A(f"ds_write_b128 v4, {v(STG+i*4,4)} offset:{i*1024}")
    A(f"s_add_u32 s{SN}, s{SN}, 28672"); A(f"s_add_u32 s{SN2}, s{SN2}, 28672")
    A("s_waitcnt lgkmcnt(0)"); A("s_barrier")
    stampB(A, 1, 210)
    rest = gemm(nl + [["s_waitcnt vmcnt(7)", flag]], 8, 4); assert not rest
    for hh in range(4):
        pack2(A, ACC + hh*8, ACC + hh*8 + 4)
        A(f"buffer_store_dwordx4 {v(ACC+hh*8,4)}, v5, s[32:35], s{SA} offen offset:{hh*1024} sc1")
    stampB(A, 2, 210)
    for x in toggle: A(x)
    A(f"s_mov_b32 s{SFP}, s{SB}"); A(f"s_add_u32 s{SA}, s{SA}, {448*1024}"); A(f"s_add_u32 s{SB}, s{SB}, 3584")
    stampB(A, 3, 210)
    A(f"s_add_u32 s{SS}, s{SS}, 1"); A(f"s_cmp_lt_u32 s{SS}, 64"); A(f"s_cbranch_scc1 {top}")
    if EV: A("s_waitcnt vmcnt(0)")
    event(A, SROLE, 4, 10)
    A("s_waitcnt vmcnt(0)"); A(flag)
    A("s_endpgm")
    A.label("r_U1")
    stat_addrs2(A, 9, 10, 12, 13, 14, 11)
    A(f"s_lshl_b32 s44, s{SW}, 8"); A(f"s_add_u32 s45, s44, {LTAB}")
    A("v_lshlrev_b32 v15, 2, v9"); A("v_add_u32 v15, s45, v15")
    A("v_lshlrev_b32 v16, 4, v10"); A(f"v_add_u32 v16, s45, v16")
    A(f"s_lshl_b32 s44, s{SRANK}, 10"); A("v_add_u32 v17, s44, v2"); A("v_mov_b32 v23, v17")
    A(f"s_cmp_ge_u32 s{SRANK}, 14"); A("s_cselect_b64 s[72:73], -1, 0")
    allready_init(A, VAR)
    sample_addr_staged(A, VAR+1, LY.R_ST + 8192 - LY.R_X2B, VAR+2)
    A(f"s_cmp_eq_u32 s{SW}, 3"); A("s_cselect_b64 vcc, 1, 0"); A(f"v_mov_b32 v11, {OOB}"); A("v_mov_b32 v19, 0"); A("v_cndmask_b32 v19, v11, v19, vcc")
    A(f"s_cmp_eq_u32 s{SW}, 3"); A("s_cselect_b64 vcc, -1, 0"); A("v_cndmask_b32 v18, v11, v17, vcc")
    toggle += ["v_xor_b32 v23, 0x8000, v23"]
    for q in range(4): A(f"v_mov_b32 v{ONE+q}, 0x3f803f80")
    A("s_waitcnt vmcnt(0)")
    for kk in range(14):
        for hh in range(4):
            A(f"{MM} {v(ACC+hh*4,4)}, {v(ONE,4)}, {wreg(hh,kk)}, {v(ACC+hh*4,4) if kk else 0}")
    for hh in range(4): A(f"v_mov_b32 v{CS+hh}, v{ACC+hh*4}")
    A(f"s_mov_b32 s{SN}, {LY.S1_BEG + LY.R_X2B}"); A(f"s_mov_b32 s{SN2}, {LY.S1_BEG + LY.R_X2B + 4096}"); A(f"s_mov_b32 s{SST}, {LY.S1_BEG + LY.R_ST + 8192}")
    A(f"s_mov_b32 s{SC_}, {LY.XS + 64*28672}")
    A(f"s_lshl_b32 s44, s{SRANK}, 7"); A(f"s_add_u32 s70, s44, {LY.FX}"); A(f"s_mov_b32 s{SFX_}, {OOB}")
    nl = stat_loads2(R_, 12, 13, SST) + loads7_list(SN, SN2, 3, STG)
    flags = [flag, f"buffer_store_dword v7, v19, s[32:35], s{SFX_} offen sc1", f"s_mov_b32 s{SFP}, {OOB}", f"s_mov_b32 s{SFX_}, {OOB}"]
    A(f"v_mov_b32 v{STG}, -1")
    event(A, SROLE, 1, 10)
    top = A.new("u1"); A.label(top)
    A(f"s_mov_b32 s{SK}, s{SS}")
    stampB(A, 0, 210)
    def miss():
        A("s_waitcnt vmcnt(0)")
        for x in flags: A(x)
        wait_ready(A, 21, 44, SS)
    staged_input2(A, nl, 0 if (GM.DIAG and GM.DIAGB) else 5, STG, R_, RC, 4, 40, 21, miss, VAR+1, SN)
    stampB(A, 1, 210)
    for r in (SN, SN2, SST): A(f"s_add_u32 s{r}, s{r}, {LY.RS}")
    sc_ = Rec()
    for tt in range(2): stat_combine(sc_, RC + tt*8, 14, T + tt*4)
    fill = [["s_waitcnt vmcnt(0)"] + flags] + sc_.l
    fill = fill + [None] * (106 - len(fill))
    k = 0
    P0, PS = (76, 2) if PRELATE else (30, 4)
    for i in range(len(fill)):
        if i >= P0 and (i - P0) % PS == 0 and k < len(nl):
            fill[i] = ([fill[i]] if fill[i] else []) + [nl[k]]; k += 1
    assert k == len(nl)
    fill = [x if x else [] for x in fill]
    rest = gemm(fill, 1, 6); assert not rest
    for tt in range(2):
        A(f"ds_write_b32 v15, v{T+tt*4} offset:{tt*64}"); A(f"ds_write_b32 v15, v{T+tt*4+1} offset:{128 + tt*64}")
    for tt in range(2):
        A(f"ds_read_b128 {v(TB+tt*8,4)}, v16 offset:{tt*64}"); A(f"ds_read_b128 {v(TB+tt*8+4,4)}, v16 offset:{128 + tt*64}")
    nn = A.new("nn"); nj = A.new("nj")
    A(f"s_cmp_lg_u32 s{SW}, 3"); A(f"s_cbranch_scc1 {nn}")
    A(f"ds_read_b128 {v(RC,4)}, v23")
    A(f"v_cndmask_b32 v{T}, v{T}, v{T+4}, s[72:73]"); A(f"v_cndmask_b32 v{T+1}, v{T+1}, v{T+5}, s[72:73]")
    A("s_waitcnt lgkmcnt(0)")
    unpack8(A, RC, RC+4)
    for r in range(8): A(f"v_fma_f32 v{RC+4+r}, v{RC+4+r}, v{T}, v{T+1}")
    for q in range(4): A(f"v_cvt_pk_bf16_f32 v{ONE+q}, v{RC+4+2*q}, v{RC+5+2*q}")
    A.label(nn)
    boundary_guard(A, SS, VAR, STG)
    A(f"buffer_store_dwordx4 {v(ONE,4)}, v18, s[32:35], s{SC_} offen sc1")
    A("s_waitcnt lgkmcnt(0)")
    for hh in range(4):
        for tt in range(2):
            r = ACC + (hh*2+tt) * 4
            cs = CS + (hh & ~1); sel = "op_sel:[0,1,0] op_sel_hi:[1,1,1]" if hh & 1 else "op_sel_hi:[1,0,1]"
            for q in (0, 2):
                A(f"v_pk_mul_f32 {v(r+q,2)}, {v(r+q,2)}, {v(TB+tt*8+q,2)}")
            for q in (0, 2):
                A(f"v_pk_fma_f32 {v(r+q,2)}, {v(TB+tt*8+4+q,2)}, {v(cs,2)}, {v(r+q,2)} {sel}")
        pack2(A, ACC + hh*8, ACC + hh*8 + 4)
        A(f"buffer_store_dwordx4 {v(ACC+hh*8,4)}, v5, s[32:35], s{SA} offen offset:{hh*1024} sc1")
    stampB(A, 2, 210)
    for x in toggle: A(x)
    A(f"s_mov_b32 s{SFP}, s{SB}"); A(f"s_mov_b32 s{SFX_}, s70")
    A(f"s_add_u32 s{SA}, s{SA}, {448*1024}"); A(f"s_add_u32 s{SB}, s{SB}, 3584"); A("s_add_u32 s70, s70, 3584"); A(f"s_add_u32 s{SC_}, s{SC_}, 28672")
    stampB(A, 3, 210)
    A(f"s_add_u32 s{SS}, s{SS}, 1"); A(f"s_cmp_lt_u32 s{SS}, 64"); A(f"s_cbranch_scc1 {top}")
    if EV: A("s_waitcnt vmcnt(0)")
    event(A, SROLE, 4, 10)
    A("s_waitcnt vmcnt(0)")
    for x in flags: A(x)
    A("s_endpgm")

def roleO(A):
    SS, SA, SB, SC_, SJ, SMB_ = 61, 62, 63, 64, 65, 66
    MR, WACC, WBUF, UR, PX, SG, FG, IDX = 24, 52, 84, 116, 148, 180, 188, 190
    D, RES = MR, MR + 24
    WP, Y, T = WACC, WACC + 8, WACC + 16
    MST, LRED = 131072, 131072 + 7168 + 1024
    regp = [p_ for p_ in range(7) if p_ not in LP]
    def wreg(p_, n, hf=None):
        idx = regp.index(p_) * 8 + n
        o, c = (0, 8) if hf is None else (hf * 4, 4)
        return a(idx * 8 + o, c) if idx < 32 else v(192 + (idx - 32) * 8 + o, c)
    A(f"s_cmp_ge_u32 s{SRANK}, 14"); A(f"s_cselect_b32 s{SL}, 1, 0"); A(f"s_mul_i32 s44, s{SL}, 14"); A(f"s_sub_u32 s{SJ}, s{SRANK}, s44")
    srd(A, 40, "x")
    load_B64_weights(A, SJ, wreg)
    sparse_idx(A, IDX, 9)
    A("v_and_b32 v9, 15, v1"); A("v_lshrrev_b32 v10, 4, v1")
    A(f"s_lshl_b32 s45, s{SW}, 15"); A(f"v_add_u32 v3, s45, v2")
    A(f"s_lshl_b32 s45, s{SW}, 12"); A("v_add_u32 v5, s45, v2")
    A(f"s_lshl_b32 s45, s{SW}, 13"); A("v_add_u32 v6, s45, v2")
    A("v_lshlrev_b32 v7, 2, v1"); A(f"s_lshl_b32 s45, s{SW}, 11"); A("v_add_u32 v4, s45, v2")
    A("s_add_u32 s45, s45, 32768"); A("v_add_u32 v7, s45, v7")
    A(f"s_cmp_eq_u32 s{SW}, 3"); A("s_cselect_b32 s45, 0, 1024"); A("v_add_u32 v18, s45, v4")
    A(f"v_add_u32 v19, {MST}, v4"); A(f"v_add_u32 v20, {MST}, v18")
    A("v_lshrrev_b32 v21, 1, v10"); A("v_lshlrev_b32 v21, 9, v21"); A("v_and_b32 v11, 1, v10"); A("v_lshl_add_u32 v21, v11, 8, v21")
    A("v_lshrrev_b32 v11, 1, v9"); A("v_lshl_add_u32 v21, v11, 4, v21"); A("v_and_b32 v11, 1, v9"); A("v_lshl_add_u32 v21, v11, 2, v21")
    A(f"v_add_u32 v21, {MST}, v21")
    A(f"s_lshl_b32 s45, s{SW}, 2"); A("v_mov_b32 v8, s45")
    A("v_bfe_u32 v12, v1, 1, 3"); A("v_and_b32 v11, 1, v1")
    A("v_lshlrev_b32 v22, 8, v12"); A("v_lshl_add_u32 v22, v11, 5, v22"); A(f"s_lshl_b32 s45, s{SW}, 11"); A("s_add_u32 s45, s45, 32768"); A("v_add_u32 v22, s45, v22")
    A("v_lshlrev_b32 v12, 10, v12"); A("v_lshl_add_u32 v12, v11, 7, v12"); A(f"s_lshl_b32 s45, s{SW}, 13"); A("v_add_u32 v12, s45, v12")
    A("v_cmp_gt_u32 vcc, 16, v1"); A("v_cndmask_b32 v12, v22, v12, vcc")
    A(f"v_mov_b32 v22, {OOB}"); A("v_cmp_gt_u32 vcc, 32, v1"); A("v_cndmask_b32 v12, v22, v12, vcc")
    final_addrs(A, SJ, 9, 10, 13, 14, 15, 16, 17, LRED, 11)
    zero = [f"v_mov_b32 v{WACC+r}, 0" for r in range(32)]
    SFU_, SU_, SPT, SX1, SST, SRS = 67, 68, 70, 72, 73, 74
    PM = SG
    A(f"s_mov_b32 s{SS}, 0")
    task_off(A, SMB_, SS, 7168, LY.MB)
    task_off(A, SFU_, SS, 3584, LY.FU); A(f"s_lshl_b32 s44, s{SJ}, 8"); A(f"s_add_u32 s{SFU_}, s{SFU_}, s44")
    task_off(A, SU_, SS, 448*1024, LY.U); A(f"s_lshl_b32 s44, s{SJ}, 15"); A(f"s_add_u32 s{SU_}, s{SU_}, s44"); A(f"s_add_u32 s{SU_+1}, s{SU_}, 16384")
    rec_off(A, SPT, SS, LY.R_PT, 40960); A(f"s_add_u32 s{SPT+1}, s{SPT}, 4096")
    rec_off(A, SX1, SS, LY.R_X1B, 28672); rec_off(A, SST, SS, LY.R_ST, 4096)
    A(f"s_cmp_eq_u32 s{SL}, 0"); A(f"s_cselect_b32 s{SRS}, 0, {LY.S1_BEG + LY.R_X2B}")
    fl = [f"buffer_load_dword v{FG}, v8, s[32:35], s{SFU_} offen sc1", f"buffer_load_dword v{FG+1}, v8, s[32:35], s{SFU_} offen offset:128 sc1"]
    ml = [f"buffer_load_dwordx4 {v(SG,4)}, v4, s[32:35], s{SMB_} offen sc1", f"buffer_load_dwordx4 {v(SG+4,4)}, v18, s[32:35], s{SMB_} offen sc1"]
    pml = [f"buffer_load_dword v{PM+tt*4+hh}, v7, s[32:35], s{SPT} offen offset:{(hh*2+tt)*256} sc1" for hh in range(4) for tt in range(2)]
    pxl = [f"buffer_load_dwordx4 {v(PX+n*4,4)}, v6, s[32:35], s{SPT + (n >> 2)} offen offset:{(n%4)*1024} sc1" for n in range(8)]
    for t in fl + ml: A(t)
    A("s_waitcnt vmcnt(0)")
    event(A, SROLE, 1, 10)
    top = A.new("o"); A.label(top)
    A(f"s_mov_b32 s{SK}, s{SS}")
    stampB(A, 0, 22)
    for t in zero: A(t)
    for q in range(8): A(f"ds_read_b128 {v(WBUF+q*4,4)}, v3 offset:{q*1024}")
    ok = A.new("mok")
    A("s_waitcnt vmcnt(0)" if (GM.DIAG and GM.DIAGB) or LATEPRE else "s_waitcnt vmcnt(2)")
    for t in chk_tree(A, range(SG, SG+8), 10): A(t)
    A(f"s_cbranch_vccz {ok}")
    p = Poll(A, 41); p.begin()
    for t in fl + ml: A(t)
    A("s_waitcnt vmcnt(0)")
    for t in chk_tree(A, range(SG, SG+8), 10): A(t)
    p.end()
    A.label(ok)
    stampB(A, 1, 22)
    A(f"ds_write_b128 v19, {v(SG,4)}"); A(f"ds_write_b128 v20, {v(SG+4,4)}")
    ok = A.new("fok")
    A(f"v_and_b32 v{FG}, v{FG}, v{FG+1}"); A(f"v_cmp_ne_u32 vcc, 1, v{FG}"); A(f"s_cbranch_vccz {ok}")
    p = Poll(A, 46, sleep=2); p.begin()
    for t in fl: A(t)
    A("s_waitcnt vmcnt(0)"); A(f"v_and_b32 v{FG}, v{FG}, v{FG+1}"); A(f"v_cmp_ne_u32 vcc, 1, v{FG}")
    p.end()
    A.label(ok)
    wait_ready(A, 10, 45, SS)
    A("s_waitcnt lgkmcnt(0)"); A("s_barrier")
    for i in (2, 0, 1, 3, 4, 5, 6):
        A(f"v_add_u32 v10, {i*1024}, v21")
        A(f"ds_read2_b32 {v(MR+i*4,2)}, v10 offset0:0 offset1:2"); A(f"ds_read2_b32 {v(MR+i*4+2,2)}, v10 offset0:32 offset1:34")
    ul = [f"buffer_load_dwordx4 {v(UR+(hh*2+ct)*4,4)}, v5, s[32:35], s{SU_+ct} offen offset:{hh*1024} sc1" for hh in range(4) for ct in range(2)]
    w_smf(A, MR, WACC, WBUF, wreg, IDX, 3, ul + pml + pxl, [1 + 3*q for q in range(8)] + [25 + q for q in range(8)] + [33 + 3*q for q in range(8)])
    for n in range(8):
        r = WACC + n*4
        A(f"v_add_f32 v{r}, v{r}, v{r+1}"); A(f"v_add_f32 v{r+2}, v{r+2}, v{r+3}")
    for n in range(8):
        hh, ct = n >> 1, n & 1
        A(f"v_cvt_pk_bf16_f32 v{WP+ct*4+hh}, v{WACC+n*4}, v{WACC+n*4+2}")
    stampB(A, 2, 22)
    A(f"s_add_u32 s{SMB_}, s{SMB_}, 7168"); A(f"s_add_u32 s{SFU_}, s{SFU_}, 3584")
    A(f"s_add_u32 s{SU_}, s{SU_}, {448*1024}"); A(f"s_add_u32 s{SU_+1}, s{SU_+1}, {448*1024}")
    res = A.new("res"); resd = A.new("resd")
    A(f"s_cmp_eq_u32 s{SL}, 0"); A(f"s_cbranch_scc0 {res}")
    A(f"buffer_load_dwordx4 {v(RES,4)}, v17, s[40:43], s{SRS} offen"); A(f"s_add_u32 s{SRS}, s{SRS}, 28672")
    A(f"s_branch {resd}")
    A.label(res)
    A(f"buffer_load_dwordx4 {v(RES,4)}, v15, s[32:35], s{SRS} offen sc1"); A(f"s_add_u32 s{SRS}, s{SRS}, {LY.RS}")
    A.label(resd)
    ok = A.new("pmok")
    A("s_waitcnt vmcnt(9)")
    for t in chk_tree(A, range(PM, PM+8), 11): A(t)
    A(f"s_cbranch_vccz {ok}")
    sample_poll(A, 12, SPT, 11, 49)
    p = Poll(A, 47); p.begin()
    for t in pml + pxl: A(t)
    A("s_waitcnt vmcnt(8)")
    for t in chk_tree(A, range(PM, PM+8), 11): A(t)
    p.end()
    A.label(ok)
    for ct in range(2):
        for tt in range(2):
            A(f"{MM} {v(D+(ct*2+tt)*4,4)}, {v(WP+ct*4,4)}, {v(PM+tt*4,4)}, 0")
    A("s_waitcnt vmcnt(0)")
    for t in chk_tree(A, range(PX, PX+32), 11): A(t)
    ok = A.new("pxok")
    A(f"s_cbranch_vccz {ok}")
    p = Poll(A, 48); p.begin()
    for t in pxl: A(t)
    A("s_waitcnt vmcnt(0)")
    for t in chk_tree(A, range(PX, PX+32), 11): A(t)
    p.end()
    A.label(ok)
    stampB(A, 3, 22)
    nx = fl + ml
    for hh in range(4):
        for ct in range(2):
            for tt in range(2):
                r = D + (ct*2+tt)*4
                A(f"{MM} {v(r,4)}, {v(UR+(hh*2+ct)*4,4)}, {v(PX+(hh*2+tt)*4,4)}, {v(r,4)}")
        if not LATEPRE: A(nx[hh])
    for q in range(4): A(f"ds_write_b128 v13, {v(D+q*4,4)} offset:{q*1024}")
    A(f"s_add_u32 s{SPT}, s{SPT}, {LY.RS}"); A(f"s_add_u32 s{SPT+1}, s{SPT+1}, {LY.RS}")
    A("s_waitcnt lgkmcnt(0)"); A("s_barrier")
    ne = A.new("noepi")
    A(f"s_cmp_ge_u32 s{SW}, 2"); A(f"s_cbranch_scc1 {ne}")
    final_sum(A, 14, PX, RES, Y)
    final_publish(A, Y, T, 15, 16, SX1, SST)
    A(f"s_branch {ne}_j")
    A.label(ne)
    A("s_waitcnt vmcnt(0)")
    A.label(ne + "_j")
    if LATEPRE:
        for x in nx: A(x)
    stampB(A, 4, 22)
    A(f"s_add_u32 s{SX1}, s{SX1}, {LY.RS}"); A(f"s_add_u32 s{SST}, s{SST}, {LY.RS}")
    A(f"s_add_u32 s{SS}, s{SS}, 1"); A(f"s_cmp_lt_u32 s{SS}, 64"); A(f"s_cbranch_scc1 {top}")
    if EV: A("s_waitcnt vmcnt(0)")
    event(A, SROLE, 4, 10)
    A("s_endpgm")

def load_T(A, srdn, stride, soff, dst):
    A("v_lshrrev_b32 v8, 2, v1"); A(f"v_mul_u32_u24 v8, {stride}, v8"); A("v_and_b32 v9, 3, v1"); A("v_lshl_add_u32 v8, v9, 4, v8")
    A(f"s_mul_i32 s46, s{SW}, 28672")
    for q in range(28):
        A(f"s_add_u32 m0, s46, {q*1024}"); A("s_nop 0")
        A(f"buffer_load_dwordx4 v8, s[{srdn}:{srdn+3}], s{soff} offen lds")
        A(f"s_add_u32 s{soff}, s{soff}, {16*stride}")
    A("v_lshrrev_b32 v8, 4, v1"); A("v_lshlrev_b32 v8, 3, v8"); A("v_bfe_u32 v10, v1, 2, 2"); A("v_add_u32 v8, v8, v10")
    A("v_lshlrev_b32 v8, 6, v8"); A("v_lshl_add_u32 v8, v9, 4, v8"); A("v_add_u32 v8, s46, v8")
    A("s_waitcnt vmcnt(0)")
    for kk in range(14):
        for b in range(2):
            for hh in range(2): A(f"ds_read_b64_tr_b16 {a(dst(b, kk) + hh*2, 2)}, v8 offset:{kk*2048 + hh*256 + b*8}")
        if kk % 3 == 2: A("s_waitcnt lgkmcnt(0)")
    A("s_waitcnt lgkmcnt(0)")

def roleF1(A):
    SS, SA, SN, SN2, SST = 61, 62, 65, 66, 67
    ACC, FB, STG, R_, CS, TB, ONE, OUT, RC, VAR = 24, 56, 80, 108, 124, 140, 148, 152, 160, 176
    LTAB = 65536
    wreg = lambda n, kk: a((n * 14 + kk) * 4, 4)
    for mat in range(2):
        srd(A, 40, "wu" if mat else "wg")
        A(f"s_lshl_b32 s44, s{SRANK}, 2"); A(f"s_add_u32 s44, s44, s{SW}"); A("s_lshl_b32 s44, s44, 6")
        load_T(A, 40, 3584, 44, lambda b, kk: ((mat*2 + b) * 14 + kk) * 4)
    A("s_barrier")
    A("v_and_b32 v9, 15, v1"); A("v_lshrrev_b32 v10, 4, v1")
    A(f"s_mul_i32 s45, s{SW}, 7168"); A("v_add_u32 v3, s45, v2"); A("v_mov_b32 v5, v3"); A("v_mov_b32 v20, v2")
    A(f"s_lshl_b32 s44, s{SRANK}, 2"); A(f"s_add_u32 s44, s44, s{SW}"); A("s_lshl_b32 s44, s44, 11"); A("v_add_u32 v4, s44, v2")
    if LOCALF:
        A("v_mov_b32 v15, v5")
        A(f"s_lshr_b32 s60, s{SROLE}, 5"); wait_all_registered(A, 53, True, 60)
        A("v_mov_b32 v5, v15")
    stat_addrs2(A, 9, 10, 12, 13, 14, 11)
    allready_init(A, VAR)
    A(f"s_mul_i32 s45, s{SL}, {4096 - 28672}"); A(f"s_add_u32 s45, s45, {LY.R_ST - LY.R_X1B}")
    sample_addr_staged(A, VAR+1, "s45", VAR+2)
    toggle = ["v_xor_b32 v5, 0x8000, v5", "v_xor_b32 v20, 0x8000, v20"]
    for q in range(4): A(f"v_mov_b32 v{ONE+q}, 0x3f803f80")
    A("s_waitcnt vmcnt(0)")
    for kk in range(14):
        for n in range(4):
            A(f"{MM} {v(CS+n*4,4)}, {wreg(n,kk)}, {v(ONE,4)}, {v(CS+n*4,4) if kk else 0}")
    A(f"s_mov_b32 s{SS}, 0")
    rec_off(A, SN, SS, LY.R_X1B, 28672); A(f"s_add_u32 s{SN2}, s{SN}, 4096"); rec_off(A, SST, SS, LY.R_ST, 4096); rec_off(A, SA, SS, LY.R_HH, 114688)
    nl = stat_loads2(R_, 12, 13, SST) + loads7_list(SN, SN2, 3, STG)
    A(f"v_mov_b32 v{STG}, -1")
    event(A, SROLE, 1, 10)
    top = A.new("f1"); A.label(top)
    A(f"s_mov_b32 s{SK}, s{SS}")
    stampB(A, 0, 210)
    staged_input2(A, nl, 0 if (GM.DIAG and GM.DIAGB) else 2, STG, R_, RC, 5, 50, 21, lambda: wait_ready(A, 21, 51, SS), VAR+1, SN)
    stampB(A, 2, 210)
    for r in (SN, SN2, SST): A(f"s_add_u32 s{r}, s{r}, {LY.RS}")
    def epi(tt):
        out = []
        for q in range(2): out.append(f"v_mul_f32 v{TB+tt*4+2+q}, {f32(-LY.LOG2E)}, v{TB+tt*4+q}")
        for n in range(4):
            r = ACC + (n*2+tt)*4; tb = TB + tt*4 + (0 if n >= 2 else 2)
            for q in (0, 2): out.append(f"v_pk_mul_f32 {v(r+q,2)}, {v(r+q,2)}, {v(tb,2)} op_sel_hi:[1,0]")
            for q in (0, 2): out.append(f"v_pk_fma_f32 {v(r+q,2)}, {v(CS+n*4+q,2)}, {v(tb,2)}, {v(r+q,2)} op_sel:[0,1,0] op_sel_hi:[1,1,1]")
        G = [ACC + (b * 2 + tt) * 4 + r for b in range(2) for r in range(4)]
        Uu = [ACC + ((2 + b) * 2 + tt) * 4 + r for b in range(2) for r in range(4)]
        out += [f"v_exp_f32 v{g}, v{g}" for g in G] + [f"v_add_f32 v{g}, 1.0, v{g}" for g in G] + [f"v_rcp_f32 v{g}, v{g}" for g in G]
        out += [f"v_mul_f32 v{g}, v{g}, v{u}" for g, u in zip(G, Uu)]
        o = OUT + tt * 4
        out += [f"v_cvt_pk_bf16_f32 v{o+q}, v{G[2*q]}, v{G[2*q+1]}" for q in range(4)] + [f"v_min_u32 v{o+q}, -2, v{o+q}" for q in range(4)]
        return out
    def st(tt):
        x = f"buffer_store_dwordx4 {v(OUT+tt*4,4)}, v4, s[32:35], s{SA} offen offset:{tt*1024}"
        if not LOCALF: return [x + " sc1"]
        l1, l2 = A.new("sl"), A.new("sd")
        return [f"s_cmp_eq_u32 s{SFAST}, 1", f"s_cbranch_scc0 {l1}", x, f"s_branch {l2}", l1 + ":", x + " sc1", l2 + ":"]
    def half(tt, fill, every, start):
        return lds_gemm(A, 14, 1, lambda kk, f, d: f"ds_read_b128 {v(d,4)}, v20 offset:{tt*14336 + kk*1024}", FB + tt*12,
                        lambda kk, fr: [f"{MM} {v(ACC+(n*2+tt)*4,4)}, {wreg(n,kk)}, {v(fr[0],4)}, {v(ACC+(n*2+tt)*4,4) if kk else 0}" for n in range(4)],
                        fill, every, start)
    sc_ = Rec()
    for tt in range(2): stat_combine(sc_, RC + tt*8, 14, TB + tt*4)
    n0 = len(sc_.l) // 2
    f0 = [[x, y] for x, y in zip(sc_.l[:n0], sc_.l[n0:])] + [[] for _ in range(54 - n0)]
    if not PRELATE:
        for k, x in enumerate(nl): f0[8 + 3*k].append(x)
    rest = half(0, f0, 1, 2); assert not rest
    e0 = epi(0)
    f1_ = [[e0[2*q], e0[2*q+1]] if q < 12 else [e0[12 + q]] for q in range(len(e0) - 12)]
    if PRELATE:
        f1_ += [[] for _ in range(54 - len(f1_))]
        for k, x in enumerate(nl): f1_[54 - 2*len(nl) + 2*k].append(x)
    rest = half(1, f1_, 1, 3)
    stampB(A, 3, 210)
    boundary_guard(A, SS, VAR, STG)
    rest = [y for x in rest for y in x] + st(0)
    for x in rest: A(x)
    for x in epi(1): A(x)
    for x in st(1): A(x)
    stampB(A, 4, 210)
    for x in toggle: A(x)
    A(f"s_add_u32 s{SA}, s{SA}, {LY.RS}")
    A(f"s_add_u32 s{SS}, s{SS}, 1"); A(f"s_cmp_lt_u32 s{SS}, 64"); A(f"s_cbranch_scc1 {top}")
    if EV: A("s_waitcnt vmcnt(0)")
    event(A, SROLE, 4, 10)
    A("s_endpgm")

def roleF2(A):
    SS, SA, SB, SC_, SJ = 61, 62, 63, 64, 65
    D, RES, Y, T, HB = 24, 40, 44, 52, 64
    wreg = lambda ct, i: a((ct * 14 + i) * 4, 4)
    A(f"s_sub_u32 s{SJ}, s{SRANK}, 14")
    srd(A, 40, "wd")
    A(f"s_mul_i32 s44, s{SW}, {448*896}"); A(f"s_lshl_b32 s45, s{SJ}, 6"); A("s_add_u32 s44, s44, s45")
    load_T(A, 40, 896, 44, lambda b, kk: (b * 14 + kk) * 4)
    A("s_barrier")
    srd(A, 40, "out")
    A("v_and_b32 v9, 15, v1"); A("v_lshrrev_b32 v10, 4, v1")
    A(f"s_mul_i32 s45, s{SW}, 28672"); A("v_add_u32 v3, s45, v2")
    final_addrs(A, SJ, 9, 10, 13, 14, 15, 16, 17, 0, 11)
    A(f"s_mov_b32 s{SS}, 0")
    rec_off(A, 66, SS, LY.R_HH, 114688)
    for q in range(1, 7): A(f"s_add_u32 s{66+q}, s66, {q*4096}"); A(f"s_add_u32 s{80+q}, s{66+q}, {LY.RS}")
    A(f"s_add_u32 s80, s66, {LY.RS}")
    hl = lambda n, base=66: f"buffer_load_dwordx4 {v(HB+n*4,4)}, v3, s[32:35], s{base+n//4} offen offset:{(n%4)*1024} sc1"
    A(f"v_mov_b32 v{HB}, -1")
    allready_init(A, 212)
    A(f"s_mul_i32 s44, s{SW}, 28672"); A("v_lshlrev_b32 v213, 10, v1"); A("v_add_u32 v213, s44, v213")
    A(f"v_mov_b32 v214, {OOB}"); A("v_cmp_gt_u32 vcc, 28, v1"); A("v_cndmask_b32 v213, v214, v213, vcc")
    event(A, SROLE, 1, 10)
    top = A.new("f2"); A.label(top)
    A(f"s_mov_b32 s{SK}, s{SS}")
    stampB(A, 0, 210)
    rec_off(A, SA, SS, LY.R_X1B, 28672)
    go = A.new("go")
    A("s_waitcnt vmcnt(26)")
    for t in chk_tree(A, range(HB, HB+8), 11): A(t)
    A(f"s_cbranch_vccz {go}")
    wait_ready(A, 11, 62, SS)
    for _ in range(FULL1):
        for n in range(28): A(hl(n))
        A("s_waitcnt vmcnt(26)")
        for t in chk_tree(A, range(HB, HB+8), 11): A(t)
        A(f"s_cbranch_vccz {go}")
    sample_poll(A, 213, 66, 11, 64)
    p = Poll(A, 60); p.begin()
    for n in range(28): A(hl(n))
    A("s_waitcnt vmcnt(26)")
    for t in chk_tree(A, range(HB, HB+8), 11): A(t)
    p.end()
    A.label(go)
    stampB(A, 1, 210)
    vm = VM(A); ids = {}
    for n in range(2, 28): vm.n += 1; ids[n] = vm.n
    idr = vm.issue(f"buffer_load_dwordx4 {v(RES,4)}, v15, s[32:35], s{SA} offen sc1")
    stubs = []
    for i in range(14):
        nxt = chk_tree(A, range(HB+(2*i+2)*4, HB+(2*i+4)*4), 11) if i < 13 else []
        for ct in range(2):
            for tt in range(2):
                r = D + (ct * 2 + tt) * 4
                A(f"{MM} {v(r,4)}, {wreg(ct,i)}, {v(HB+(2*i+tt)*4,4)}, {v(r,4) if i else 0}")
        if nxt:
            vm.wait(ids[2*i+3])
            for t in nxt: A(t)
        if not LATEPRE: vm.issue(hl(2*i, 80)); vm.issue(hl(2*i+1, 80))
        if nxt:
            rl, bl = A.new("rt"), A.new("bk"); stubs.append((rl, bl, i + 1))
            A(f"s_cbranch_vccnz {rl}"); A.label(bl)
    for q in range(7): A(f"s_mov_b32 s{66+q}, s{80+q}"); A(f"s_add_u32 s{80+q}, s{80+q}, {LY.RS}")
    if not LATEPRE: boundary_guard(A, SS, 212, HB)
    stampB(A, 2, 210)
    for q in range(4): A(f"ds_write_b128 v13, {v(D+q*4,4)} offset:{q*1024}")
    A(f"s_waitcnt vmcnt({0 if LATEPRE else 28}) lgkmcnt(0)"); A("s_barrier")
    ne = A.new("noepi"); last = A.new("last")
    A(f"s_cmp_ge_u32 s{SW}, 2"); A(f"s_cbranch_scc1 {ne}")
    final_sum(A, 14, 176, RES, Y)
    stampB(A, 3, 210)
    A(f"s_cmp_eq_u32 s{SL}, 0"); A(f"s_cbranch_scc0 {last}")
    rec_off(A, SA, SS, LY.R_X2B)
    rec_off(A, SB, SS, LY.R_ST + 8192)
    final_publish(A, Y, T, 15, 16, SA, SB)
    A(f"s_branch {ne}")
    A.label(last)
    for q in range(4): A(f"v_cvt_pk_bf16_f32 v{T+q}, v{Y+2*q}, v{Y+2*q+1}")
    A(f"s_mul_i32 s44, s{SS}, 28672")
    A(f"buffer_store_dwordx4 {v(T,4)}, v17, s[40:43], s44 offen")
    A.label(ne)
    stampB(A, 4, 210)
    if LATEPRE:
        for n in range(28): A(hl(n))
        boundary_guard(A, SS, 212, HB)
    A("v_xor_b32 v13, 0x4000, v13"); A("v_xor_b32 v14, 0x4000, v14")
    A(f"s_add_u32 s{SS}, s{SS}, 1"); A(f"s_cmp_lt_u32 s{SS}, 64"); A(f"s_cbranch_scc1 {top}")
    if EV: A("s_waitcnt vmcnt(0)")
    event(A, SROLE, 4, 10)
    A("s_endpgm")
    for rl, bl, i in stubs:
        A.label(rl)
        sample_poll(A, 213, 66, 11, 65)
        p = Poll(A, 63); p.begin()
        for n in range(2*i, 28): A(hl(n))
        A("s_waitcnt vmcnt(0)")
        for t in chk_tree(A, range(HB+2*i*4, HB+28*4), 11): A(t)
        p.end()
        A(f"s_branch {bl}")

def roleF(A):
    A(f"s_lshr_b32 s{SL}, s{SROLE}, 5"); A(f"s_sub_u32 s{SL}, s{SL}, 5")
    A(f"s_cmp_ge_u32 s{SRANK}, 14"); A("s_cbranch_scc1 r_F2")
    roleF1(A)
    A.label("r_F2"); roleF2(A)

def gen_all(A, n0, n1):
    import gen_k0
    d0 = gen_k0.gen_k0(A, n0)
    d1 = gen_k1(A, n1, [(32, 96, "r_TA"), (96, 256, "r_rest")])
    A.label("r_rest")
    A(f"s_cmp_ge_u32 s{SRANK}, 28"); A("s_cbranch_scc1 r_fill")
    A(f"s_cmp_lt_u32 s{SROLE}, 160"); A("s_cbranch_scc1 r_U")
    A(f"s_cmp_lt_u32 s{SROLE}, 224"); A("s_cbranch_scc1 r_F")
    roleO(A)
    A.label("r_fill"); roleFill(A)
    A.label("r_TA"); roleTA(A)
    A.label("r_U"); roleU(A)
    A.label("r_F"); roleF(A)
    return d0 + d1
```

```python
import os
from gen_common import *
MM = "v_mfma_f32_16x16x32_bf16"
MM16 = "v_mfma_f32_16x16x16_bf16"
K1_LDS = 160 * 1024 - 512
CAPS = [32, 32, 32, 32, 32, 32, 32, 32]
NPOLL = int(os.environ.get('NPOLL', '2'))
PRE_SM = int(os.environ.get('PRE_SM', '11'))
TOUCH = int(os.environ.get('TOUCH', '0'))
TPOS = int(os.environ.get('TPOS', '31'))
UEARLY = int(os.environ.get('UEARLY', '0'))
SPLIT = int(os.environ.get('SPLIT', '0'))
TFIRST = int(os.environ.get('TFIRST', '0'))
DOFF = int(os.environ.get('DOFF', '3'))
DMODE = int(os.environ.get('DMODE', '1'))
DSTEP = int(os.environ.get('DSTEP', '3'))
DMA_IN = int(os.environ.get('DMA_IN', '8'))
TMO = 60000
OOB = 0x40000000
NFILL = 20
SW, SROLE, SRANK, SK, STMO, SFAST = 48, 49, 50, 51, 52, 53
DIAG = False

def fail(A, code):
    A(f"s_mov_b32 s54, {code}")
    A("s_branch k1_fail")

BULKSLEEP = int(os.environ.get('BULKSLEEP', '2'))
GATE = int(os.environ.get('GATE', '0'))
XLEAD = int(os.environ.get('XLEAD', '0'))
STG4 = int(os.environ.get('STG4', '0'))
STG2 = int(os.environ.get('STG2', '0'))
XFAST = int(os.environ.get('XFAST', '1'))
MBDIR = int(os.environ.get('MBDIR', '0'))
P3 = int(os.environ.get('P3', '1'))
class Poll:
    def __init__(self, A, code, sleep=0):
        if 30 <= code < 70 and sleep < BULKSLEEP: sleep = BULKSLEEP
        self.A = A; self.code = code; self.sleep = sleep
        self.top = A.new("poll"); self.ok = A.new("pok")
    def begin(self):
        self.A(f"s_mov_b32 s{STMO}, {TMO}")
        self.A.label(self.top)
    def end(self):
        A = self.A
        A(f"s_cbranch_vccz {self.ok}")
        if self.sleep: A(f"s_sleep {self.sleep}")
        A(f"s_sub_u32 s{STMO}, s{STMO}, 1")
        A(f"s_cbranch_scc0 {self.top}")
        fail(A, self.code)
        A.label(self.ok)

def chk_tree(A, regs_, t):
    out = []; rs = list(regs_)
    if len(rs) >= 3:
        out.append(f"v_max3_u32 v{t}, v{rs[0]}, v{rs[1]}, v{rs[2]}"); rs = rs[3:]
    else:
        out.append(f"v_max_u32 v{t}, v{rs[0]}, v{rs[1]}"); rs = rs[2:]
    while len(rs) >= 2:
        out.append(f"v_max3_u32 v{t}, v{t}, v{rs[0]}, v{rs[1]}"); rs = rs[2:]
    if rs: out.append(f"v_max_u32 v{t}, v{t}, v{rs[0]}")
    out.append(f"v_cmp_eq_u32 vcc, -1, v{t}")
    return out

FINE = os.environ.get('FINE', '')
def stamp(A, slot, vt=None):
    if not DIAG or FINE: return
    A(f"s_memrealtime s[{90+2*slot}:{91+2*slot}]")

def fine(A, name):
    if not DIAG or not FINE: return
    names = [n for n in FINE.split(",") if n[0] == name[0]]
    if name in names: A(f"s_memtime s[{90+2*names.index(name)}:{91+2*names.index(name)}]")

def stamp_flush(A, vt):
    if not DIAG: return
    A(f"s_mul_i32 s44, s{SROLE}, {LY.MAXSTEP}")
    A(f"s_add_u32 s44, s44, s{SK}")
    A(f"s_lshl_b32 s44, s44, 2")
    A(f"s_add_u32 s44, s44, s{SW}")
    A(f"s_lshl_b32 s44, s44, 5")
    A(f"s_add_u32 s44, s44, {LY.DBG}")
    A("s_waitcnt lgkmcnt(0)")
    for i in range(4): A(f"v_mov_b32 v{vt+i}, s{90+2*i}")
    A(f"v_mov_b32 v{vt+4}, 0")
    A(f"buffer_store_dwordx4 {v(vt,4)}, v{vt+4}, s[32:35], s44 offen")
    if FINE:
        A("s_nop 1")
        A(f"v_mov_b32 v{vt}, s98"); A(f"v_mov_b32 v{vt+1}, s100"); A(f"v_mov_b32 v{vt+2}, s{STMO}"); A(f"v_mov_b32 v{vt+3}, s57")
        A(f"buffer_store_dwordx4 {v(vt,4)}, v{vt+4}, s[32:35], s44 offen offset:16")
        A("s_mov_b32 s57, 0")

DIAGB = True
EVSEG = int(os.environ.get('EVSEG', '40'))
def stampB(A, slot, vt):
    if EV and not DIAG:
        sk = A.new("ev")
        A(f"s_cmp_lg_u32 s{SK}, {EVSEG}"); A(f"s_cbranch_scc1 {sk}")
        sk2 = A.new("ev")
        A(f"s_cmp_lg_u32 s{SW}, 0"); A(f"s_cbranch_scc1 {sk}")
        event(A, SROLE, slot, vt, 16384)
        A.label(sk)
        return
    if not DIAG or not DIAGB: return
    A("s_memrealtime s[100:101]")
    A(f"s_mul_i32 s99, s{SROLE}, {LY.MAXSTEP}")
    A(f"s_add_u32 s99, s99, s{SK}")
    A(f"s_lshl_b32 s99, s99, 2")
    A(f"s_add_u32 s99, s99, s{SW}")
    A(f"s_lshl_b32 s99, s99, 5")
    A(f"s_add_u32 s99, s99, {LY.DBG + slot*4}")
    A("s_waitcnt lgkmcnt(0)")
    A(f"v_mov_b32 v{vt}, s100"); A(f"v_mov_b32 v{vt+1}, 0")
    A(f"buffer_store_dword v{vt}, v{vt+1}, s[32:35], s99 offen")

def dispatch(A):
    A("s_cmp_ge_u32 s2, 256"); A("s_cbranch_scc1 k1_exit")
    load_args(A)
    srd(A, WS, "ws"); srd(A, 36, "dbg")
    event(A, 2, 0, 10, 32768)
    wave_lane(A, SW, 1)
    A("v_lshlrev_b32 v2, 4, v1")
    A(f"s_mov_b32 s{SK}, 0")
    A(f"s_mov_b32 s{SFAST}, 0")
    A(f"s_mov_b32 s{SROLE}, 999")
    A(f"s_cmp_lg_u32 s{SW}, 0"); A("s_cbranch_scc1 k1_role_wait")
    A("s_getreg_b32 s55, hwreg(HW_REG_XCC_ID, 0, 4)")
    A("s_lshl_b32 s56, s55, 7")
    A(f"s_add_u32 s56, s56, {LY.CNT}")
    A("v_mov_b32 v3, 1")
    A(f"v_cmp_eq_u32 vcc, 0, v1")
    A(f"v_mov_b32 v4, {OOB}")
    A("v_cndmask_b32 v4, v4, 0, vcc" if False else "v_cndmask_b32 v4, v4, v1, vcc")
    A("buffer_atomic_add v3, v4, s[32:35], s56 offen sc0 sc1")
    A("s_waitcnt vmcnt(0)")
    A(f"v_readfirstlane_b32 s{SRANK}, v3")
    A("s_mov_b32 s57, 0")
    for x, c in enumerate(CAPS):
        A(f"s_cmp_eq_u32 s55, {x}"); A(f"s_cselect_b32 s57, {c}, s57")
    A(f"s_cmp_lt_u32 s{SRANK}, s57"); A("s_cbranch_scc0 k1_left")
    A(f"s_lshl_b32 s{SROLE}, s55, 5")
    A(f"s_add_u32 s{SROLE}, s{SROLE}, s{SRANK}")
    A("s_branch k1_role_put")
    A.label("k1_left")
    A("v_mov_b32 v3, 1")
    A(f"s_mov_b32 s56, {LY.CNT + 16*128}")
    A("buffer_atomic_add v3, v4, s[32:35], s56 offen sc0 sc1")
    A("s_waitcnt vmcnt(0)")
    A("v_readfirstlane_b32 s58, v3")
    wait_all_registered(A, 1)
    for x, c in enumerate(CAPS):
        if c == 0: continue
        nxt = A.new("lf")
        A(f"v_readlane_b32 s59, v5, {x}")
        A(f"s_min_u32 s59, s59, {c}")
        A(f"s_sub_u32 s60, {c}, s59")
        A(f"s_cmp_lt_u32 s58, s60"); A(f"s_cbranch_scc0 {nxt}")
        A(f"s_add_u32 s{SROLE}, s59, s58")
        A(f"s_add_u32 s{SROLE}, s{SROLE}, {x*32}")
        A("s_branch k1_role_put")
        A.label(nxt)
        A("s_sub_u32 s58, s58, s60")
    A.label("k1_role_put")
    A(f"v_mov_b32 v3, s{SROLE}")
    A("v_mov_b32 v4, 0")
    A("ds_write_b32 v4, v3")
    A("s_waitcnt lgkmcnt(0)")
    A.label("k1_role_wait")
    A("s_barrier")
    A("v_mov_b32 v4, 0")
    A("ds_read_b32 v3, v4")
    A("s_waitcnt lgkmcnt(0)")
    A(f"v_readfirstlane_b32 s{SROLE}, v3")
    A("s_barrier")
    A(f"s_and_b32 s{SRANK}, s{SROLE}, 31")
    event(A, SROLE, 0, 10)

def wait_all_registered(A, code, or_chain_full=False, sgroup=None):
    A("v_and_b32 v6, 15, v1"); A("v_lshlrev_b32 v6, 7, v6")
    A(f"s_mov_b32 s56, {LY.CNT}")
    p = Poll(A, code, sleep=4); p.begin()
    A("buffer_load_dword v5, v6, s[32:35], s56 offen sc1")
    A("s_waitcnt vmcnt(0)")
    A("v_mov_b32 v7, v5")
    dpp_reduce16(A, "v_add_u32", 7)
    A("v_cmp_ne_u32 vcc, 0x100, v7")
    if or_chain_full:
        A(f"v_readlane_b32 s59, v5, {0 if sgroup is None else 's%d' % sgroup}")
        A(f"s_cmp_ge_u32 s59, 32")
        A(f"s_cselect_b32 s{SFAST}, 1, 0")
        A("s_cselect_b64 vcc, 0, vcc")
    p.end()

def wregA(j, slot):
    n = j * 14 + slot
    return a(n * 4, 4) if n < 64 else v(120 + (n - 64) * 4, 4)

def a_slots_setup(A, SM, ST_, hreg):
    A(f"s_and_b32 s46, s{SW}, 1")
    A(f"s_mul_i32 s47, s{SW}, 7")
    A(f"s_lshr_b32 s44, s47, 1")
    for i in range(14):
        if i < 10:
            A(f"s_add_u32 s45, s44, {4+i}")
            A(f"s_cmp_ge_u32 s45, 14"); A(f"s_cselect_b32 s55, 14, 0"); A(f"s_sub_u32 s45, s45, s55")
        elif i < 13:
            A(f"s_add_u32 s45, s44, {i-10}"); A(f"s_add_u32 s45, s45, s46")
        else:
            A(f"s_cmp_eq_u32 s46, 0"); A(f"s_cselect_b32 s55, 3, 0"); A(f"s_add_u32 s45, s44, s55")
        A(f"s_lshl_b32 s{SM+i}, s45, 10")
    for j in range(7):
        if j < 6:
            A(f"s_add_u32 s45, s47, {j}"); A(f"s_add_u32 s45, s45, s46")
        else:
            A(f"s_cmp_eq_u32 s46, 0"); A(f"s_cselect_b32 s55, 6, 0"); A(f"s_add_u32 s45, s47, s55")
        A(f"s_mul_i32 s55, s{hreg}, 28"); A("s_add_u32 s45, s45, s55")
        A(f"s_mul_i32 s45, s45, 14336")
        A(f"s_add_u32 s{ST_+j}, s45, {LY.AF}")

def load_A_weights(A, SM, ST_, wreg):
    for j in range(7):
        for i in range(14):
            A(f"s_add_u32 s45, s{ST_+j}, s{SM+i}")
            A(f"buffer_load_dwordx4 {wreg(j,i)}, v2, s[32:35], s45 offen")

SMF = "v_smfmac_f32_16x16x64_bf16"
SLY, SSG, SNL, SNS = 40, 41, 42, 43

def next_phase(A, l, s, nl, ns):
    d = A.new("np"); o = A.new("np1")
    A(f"s_cmp_eq_u32 s{l}, 0"); A(f"s_cbranch_scc0 {o}")
    A(f"s_sub_i32 s{ns}, s{s}, {LY.LAG}"); A(f"s_mov_b32 s{nl}, 1")
    A(f"s_cmp_ge_i32 s{ns}, 0"); A(f"s_cbranch_scc1 {d}")
    A(f"s_add_u32 s{ns}, s{s}, 1"); A(f"s_mov_b32 s{nl}, 0"); A(f"s_branch {d}")
    A.label(o)
    A(f"s_add_u32 s{ns}, s{s}, {LY.LAG + 1}"); A(f"s_mov_b32 s{nl}, 0")
    A(f"s_cmp_lt_u32 s{ns}, 64"); A(f"s_cbranch_scc1 {d}")
    A(f"s_add_u32 s{ns}, s{s}, 1"); A(f"s_mov_b32 s{nl}, 1")
    A.label(d)

def ls_off(A, sd, l, s, per, base):
    A(f"s_lshl_b32 s{sd}, s{l}, 6"); A(f"s_add_u32 s{sd}, s{sd}, s{s}"); A(f"s_mul_i32 s{sd}, s{sd}, {per}"); A(f"s_add_u32 s{sd}, s{sd}, {base}")

def sparse_idx(A, vd, t):
    A(f"v_and_b32 v{t}, 1, v1"); A(f"v_cmp_eq_u32 vcc, 0, v{t}")
    A(f"v_mov_b32 v{vd}, 0xeeee"); A(f"v_mov_b32 v{t}, 0x4444"); A(f"v_cndmask_b32 v{vd}, v{vd}, v{t}, vcc")

def wregA8(j, i):
    n = j * 14 + 2 * i
    return a(n * 4, 8) if n < 64 else v(120 + (n - 64) * 4, 8)

S0, S1, SALT, SPRE = 40, 41, 42, 43

def softmax16(A, T, vmask, fill, stores, stubs):
    fill = list(fill)
    def F(n):
        for _ in range(n):
            if fill: A(fill.pop(0))
    S = (T+8, T+9, T, T+1); E = (T+12, T+13, T+4, T+5)
    slow, back = A.new("smx"), A.new("smb")
    A("s_waitcnt lgkmcnt(2)")
    A(f"v_pk_add_f32 {v(T,2)}, {v(T,2)}, {v(T+2,2)}")
    A(f"v_pk_add_f32 {v(T+4,2)}, {v(T+4,2)}, {v(T+6,2)}")
    A("s_waitcnt lgkmcnt(0)")
    A(f"v_pk_add_f32 {v(T+8,2)}, {v(T+8,2)}, {v(T+10,2)}")
    A(f"v_pk_add_f32 {v(T+12,2)}, {v(T+12,2)}, {v(T+14,2)}")
    A(f"v_pk_add_f32 {v(T,2)}, {v(T,2)}, {v(T+4,2)}")
    A(f"v_pk_add_f32 {v(T+8,2)}, {v(T+8,2)}, {v(T+12,2)}")
    fine(A, "a5")
    A(f"v_exp_f32 v{E[2]}, v{S[2]}"); A(f"v_exp_f32 v{E[3]}, v{S[3]}")
    A(f"v_max3_f32 v{T+2}, abs(v{T}), abs(v{T+1}), abs(v{T+8})")
    A(f"v_exp_f32 v{E[0]}, v{S[0]}"); A(f"v_exp_f32 v{E[1]}, v{S[1]}")
    A(f"v_max_f32 v{T+2}, v{T+2}, abs(v{T+9})")
    A(f"v_cmp_nge_f32 vcc, s80, v{T+2}")
    A(f"s_cbranch_vccnz {slow}")
    A.label(back)
    def tail(F, sane):
        A(f"v_add_f32 v{T+2}, v{E[2]}, v{E[3]}")
        A(f"v_add_f32 v{T+3}, v{E[0]}, v{E[1]}")
        A(f"v_fmac_f32 v{T+2}, v{vmask}, v{T+3}")
        for ctl in ("quad_perm:[1,0,3,2]", "quad_perm:[2,3,0,1]", "row_half_mirror", "row_mirror"):
            F(2); A(f"v_add_f32_dpp v{T+2}, v{T+2}, v{T+2} {ctl} row_mask:0xf bank_mask:0xf")
        A(f"v_rcp_f32 v{T+2}, v{T+2}")
        F(1)
        A(f"v_pk_mul_f32 {v(T+4,2)}, {v(T+4,2)}, {v(T+2,2)} op_sel_hi:[1,0]")
        A(f"v_pk_mul_f32 {v(T+12,2)}, {v(T+12,2)}, {v(T+2,2)} op_sel_hi:[1,0]")
        A(f"v_cvt_pk_bf16_f32 v{T}, v{T+4}, v{T+5}")
        A(f"v_cvt_pk_bf16_f32 v{T+8}, v{T+12}, v{T+13}")
        if sane: A(f"v_min_u32 v{T}, -2, v{T}"); A(f"v_min_u32 v{T+8}, -2, v{T+8}")
    tail(F, True)
    st = A.new("sms"); A.label(st)
    A(stores[0]); A(stores[1])
    used = None
    def stub(rest=list(fill)):
        A.label(slow)
        A(f"v_max_f32 v{T+2}, v{T}, v{T+1}")
        A(f"v_max3_f32 v{T+2}, v{T+2}, v{T+8}, v{T+9}")
        dpp_reduce16(A, "v_max_f32", T+2)
        for s_, e_ in zip(S, E): A(f"v_sub_f32 v{e_}, v{s_}, v{T+2}")
        for e_ in E: A(f"v_exp_f32 v{e_}, v{e_}")
        for x in stub.fill: A(x)
        tail(lambda n: None, True)
        A(f"s_branch {st}")
    return fill, stub

def chainA(A):
    SM, ST_ = 60, 74
    SPC, SXS, SFX, SKB, SMS, SB2 = (60, 61), (62, 64), 66, (67, 68), (70, 71), 72
    MR, ACC, MK, SC, SG = 16, 44, 72, 88, 104
    IDX, FLG, VMK, VXW, VXR, VOWN, VMKA, VSW = 112, 113, 114, 115, 116, 0, 10, 15
    MST, KEY0 = 0, 16384
    LX, PART = KEY0 + 65536, KEY0 + 65536 + 8192
    a_slots_setup(A, SM, ST_, SRANK)
    VO = [117, 118, 119, 13]
    for i in range(4): A(f"v_add_u32 v{VO[i]}, s{SM+10+i}, v2"); A(f"s_mov_b32 s{90+i}, s{SM+10+i}")
    for i in range(14): A(f"s_mov_b32 s{SM+i}, {i*1024}")
    load_A_weights(A, SM, ST_, wregA)
    sparse_idx(A, IDX, 9)
    A("v_and_b32 v9, 15, v1"); A("v_lshrrev_b32 v10, 4, v1")
    A(f"s_mul_i32 s45, s{SW}, 3584"); A(f"s_add_u32 s45, s45, {PART}")
    A("v_mul_u32_u24 v3, 208, v9"); A("v_lshl_add_u32 v3, v10, 4, v3"); A("v_add_u32 v3, s45, v3")
    A(f"s_and_b32 s45, s{SW}, 1"); A("s_lshl_b32 s45, s45, 2"); A("v_add_u32 v11, s45, v10")
    A(f"s_lshr_b32 s45, s{SW}, 1"); A("s_mul_i32 s45, s45, 14336"); A(f"s_add_u32 s45, s45, {PART}")
    A("v_mul_u32_u24 v12, 208, v11"); A("v_add_u32 v12, s45, v12")
    A("v_lshrrev_b32 v16, 2, v9"); A("v_lshlrev_b32 v16, 2, v16")
    A("v_and_b32 v14, 1, v9"); A("v_lshl_add_u32 v16, v14, 1, v16")
    A("v_bfe_u32 v14, v9, 1, 1"); A("v_lshl_add_u32 v16, v14, 4, v16")
    A("v_add_u32 v16, 16, v16"); A("v_lshl_add_u32 v4, v16, 2, v12")
    A("v_and_b32 v16, 3, v9"); A("v_lshl_add_u32 v5, v16, 3, v12")
    A("v_lshrrev_b32 v16, 2, v9"); A("v_lshl_add_u32 v16, v16, 3, v11"); A("v_lshlrev_b32 v16, 4, v16")
    A("v_and_b32 v14, 3, v9"); A("v_lshl_add_u32 v6, v14, 2, v16")
    A(f"s_lshl_b32 s45, s{SRANK}, 9"); A("v_add_u32 v6, s45, v6")
    A("v_lshl_add_u32 v7, v9, 3, v11"); A("v_lshlrev_b32 v7, 4, v7")
    A(f"s_lshr_b32 s45, s{SRANK}, 2"); A("s_lshl_b32 s45, s45, 9"); A(f"s_and_b32 s44, s{SRANK}, 3"); A("s_lshl_b32 s44, s44, 2")
    A("s_add_u32 s45, s45, s44"); A("s_add_u32 s45, s45, 8192"); A("v_add_u32 v7, s45, v7")
    A(f"v_mov_b32 v16, {OOB}"); A("v_cmp_gt_u32 vcc, 4, v9"); A("v_cndmask_b32 v7, v16, v7, vcc")
    A(f"v_mov_b32 v{VMK}, 0"); A("v_mov_b32 v14, 1.0"); A(f"v_cndmask_b32 v{VMK}, v{VMK}, v14, vcc")
    for l in range(2):
        A(f"s_mov_b32 s{SMS[l]}, {LY.MS + l*64*7168}")
        A(f"s_mov_b32 s{SPC[l]}, {LY.PC + l*64*10240}")
        A(f"s_mov_b32 s{SXS[l]}, {LY.XS + l*64*28672}"); A(f"s_mov_b32 s{SXS[l]+1}, {LY.XS + l*64*28672 + 14336}")
        A(f"s_lshl_b32 s45, s{SW}, 13"); A(f"s_add_u32 s{SKB[l]}, s45, {KEY0 + l*32768}")
    A(f"s_mov_b32 s{SFX}, {LY.GO + 512}")
    A("v_mov_b32 v8, 0")
    STU = (74, 75); STC = 76
    TL = int(os.environ.get("TLEAD", "0")) * 448 * 1024
    A(f"s_mov_b32 s{STU[0]}, {LY.U + 448*1024 + TL}"); A(f"s_mov_b32 s{STU[1]}, {LY.U + 64*448*1024 + TL}")
    A(f"s_lshl_b32 s45, s{SRANK}, 2"); A(f"s_add_u32 s45, s45, s{SW}"); A("s_lshl_b32 s45, s45, 13")
    A("v_lshlrev_b32 v87, 7, v1"); A("v_add_u32 v87, s45, v87")
    if SPLIT:
        A("s_lshr_b32 s45, s45, 13"); A("s_mul_i32 s45, s45, 28"); A("v_add_u32 v86, s45, v1")
        A("v_lshrrev_b32 v87, 7, v86"); A("v_lshlrev_b32 v87, 15, v87"); A("v_and_b32 v86, 127, v86"); A("v_lshl_add_u32 v87, v86, 7, v87")
        A("v_add_u32 v87, 16384, v87"); A(f"v_mov_b32 v86, {OOB}"); A("v_cmp_gt_u32 vcc, 28, v1"); A("v_cndmask_b32 v87, v86, v87, vcc")
    A(f"s_lshl_b32 s45, s{SW}, 11"); A(f"s_add_u32 s45, s45, {LX}")
    A("v_lshrrev_b32 v16, 2, v9"); A("v_lshlrev_b32 v16, 3, v16"); A("v_and_b32 v14, 3, v9"); A("v_add_u32 v16, v16, v14")
    A("v_lshlrev_b32 v16, 4, v16"); A("v_lshl_add_u32 v16, v10, 2, v16"); A(f"v_add_u32 v{VXW}, s45, v16")
    A("v_bfe_u32 v16, v1, 2, 2"); A("v_lshl_add_u32 v16, v10, 3, v16"); A("v_lshlrev_b32 v16, 4, v16")
    A("v_and_b32 v14, 1, v1"); A("v_lshl_add_u32 v16, v14, 3, v16"); A(f"v_add_u32 v{VXR}, s45, v16")
    A("v_lshrrev_b32 v16, 1, v10"); A("v_lshlrev_b32 v16, 4, v16"); A("v_and_b32 v14, 7, v9"); A("v_lshl_add_u32 v16, v14, 1, v16")
    A("v_lshlrev_b32 v16, 4, v16"); A("v_and_b32 v14, 1, v10"); A("v_lshl_add_u32 v16, v14, 3, v16"); A(f"v_add_u32 v16, {MST}, v16")
    VMA = [0, 10, 14, 9]
    A("s_lshr_b32 s45, s90, 1"); A("v_add_u32 v0, s45, v16"); A("s_lshr_b32 s45, s91, 1"); A("v_add_u32 v10, s45, v16")
    A("s_lshr_b32 s45, s92, 1"); A("v_add_u32 v14, s45, v16")
    A("s_lshr_b32 s45, s93, 1"); A("s_lshl_b32 s44, s46, 2"); A("s_add_u32 s45, s45, s44"); A("v_add_u32 v9, s45, v16")
    A(f"s_add_u32 s45, s{SKB[0]}, 0"); A("v_add_u32 v11, s45, v2")
    A("s_lshl_b32 s45, s46, 3"); A("v_add_u32 v12, s45, v11")
    A(f"s_lshl_b32 s45, s46, 12"); A(f"v_add_u32 v{VSW}, s45, v2")
    A(f"s_lshl_b32 s45, s46, 10"); A(f"s_sub_u32 s{SB2}, 3072, s45")
    if STG4:
        A(f"s_lshl_b32 s45, s{SW}, 11"); A(f"v_add_u32 v{VSW}, s45, v2")
        A(f"s_cmp_eq_u32 s{SW}, 3"); A(f"s_cselect_b32 s{SB2}, 0, 1024")
    CT = 103
    dma = lambda n, l: [f"s_add_u32 m0, s{SKB[l]}, {n*1024}", "s_nop 0", f"buffer_load_dwordx4 v{VO[n>>1]}, s[32:35], s{SXS[l]+(n&1)} offen sc1 lds"]
    def keys(l):
        for n in range(8):
            for t in dma(n, l): A(t)
        A(f"s_add_u32 s{SXS[l]}, s{SXS[l]}, 28672"); A(f"s_add_u32 s{SXS[l]+1}, s{SXS[l]+1}, 28672")
        if l: A(f"s_add_u32 s{SFX}, s{SFX}, 4")
    keys(0)
    for q in range(5, 8): A(f"v_mov_b32 v{88+q}, v{q}")
    wait_all_registered(A, 2, True)
    for q in range(5, 8): A(f"v_mov_b32 v{q}, v{88+q}")
    A(f"v_add_u32 v1, s{SB2}, v{VSW}")
    A("s_waitcnt vmcnt(0)")
    A(f"s_mov_b32 s{S0}, 0"); A(f"s_mov_b32 s{S1}, 0"); A(f"s_mov_b32 s{SPRE}, 0"); A(f"v_mov_b32 v{FLG}, 0")
    A(f"s_mov_b32 s80, {f32(60.0)}")
    A("s_mov_b32 s73, 0")
    zero = [f"v_mov_b32 v{ACC+r}, 0" for r in range(28)]
    for z in zero: A(z)
    if GATE:
        A("v_mov_b32 v88, 1"); A(f"s_mov_b32 s44, {LY.CNT + 31*128}"); A("buffer_store_dword v88, off, s[32:35], s44 sc1")
    event(A, SROLE, 1, 88)
    if EV: A("s_memtime s[84:85]")
    mr = lambda i: MR + i * 4
    SNM = 78
    mloads = [f"buffer_load_dwordx4 {v(mr(q),4)}, v{VSW}, s[32:35], s{SNM} offen offset:{q*1024} sc1" for q in range(3)] + \
             [f"buffer_load_dwordx4 {v(mr(3),4)}, v1, s[32:35], s{SNM} offen sc1"]
    NST = 16
    if STG4:
        mloads = [f"buffer_load_dwordx4 {v(mr(0),4)}, v{VSW}, s[32:35], s{SNM} offen sc1", f"buffer_load_dwordx4 {v(mr(1),4)}, v1, s[32:35], s{SNM} offen sc1"]
        NST = 8
    def stage(fill, issued=False, young=0):
        ok = A.new("sok")
        if not issued:
            for t in mloads: A(t)
        for t in fill: A(t)
        fine(A, "as0")
        A(f"s_waitcnt vmcnt({young})")
        fine(A, "as1")
        for t in chk_tree(A, range(MR, MR+NST), CT): A(t)
        A(f"s_cbranch_vccz {ok}")
        if DIAG or EV: A("s_add_u32 s57, s57, 256")
        p = Poll(A, 10); p.begin()
        for t in mloads: A(t)
        A("s_waitcnt vmcnt(0)")
        for t in chk_tree(A, range(MR, MR+NST), CT): A(t)
        p.end()
        A.label(ok)
        for q in range(NST//4 - 1): A(f"ds_write_b128 v{SG}, {v(mr(q),4)} offset:{q*1024}")
        A(f"ds_write_b128 v{SG+1}, {v(mr(NST//4 - 1),4)}")
        fine(A, "as2")
        A("s_waitcnt lgkmcnt(0)")
        fine(A, "as3")
        if "as0" in FINE: stamp_flush(A, 96)
    def stage2(fill):
        sets = [[mr(0), mr(1), mr(2), mr(3)], [mr(4), mr(5), mr(6), MK]]
        ld = lambda R: [f"buffer_load_dwordx4 {v(R[q],4)}, v{VSW}, s[32:35], s{SNM} offen offset:{q*1024} sc1" for q in range(3)] + \
                       [f"buffer_load_dwordx4 {v(R[3],4)}, v1, s[32:35], s{SNM} offen sc1"]
        oks = [A.new("sok"), A.new("sok")]; top = A.new("sp"); done = A.new("sdn")
        if STG2 == 1:
            for t in ld(sets[1]): A(t)
        A(f"s_mov_b32 s{STMO}, {TMO}")
        A.label(top)
        for q in range(2 if STG2 == 1 else 1):
            A(f"s_waitcnt vmcnt({4 if STG2 == 1 else 0})")
            for x in range(3): A(f"ds_write_b128 v{SG}, {v(sets[q][x],4)} offset:{x*1024}")
            A(f"ds_write_b128 v{SG+1}, {v(sets[q][3],4)}")
            for t in chk_tree(A, [r + x for r in sets[q] for x in range(4)], CT): A(t)
            A(f"s_cbranch_vccz {done}")
            if (DIAG or EV) and q == 0: A("s_add_u32 s57, s57, 256")
            for t in ld(sets[q]): A(t)
        A(f"s_sub_u32 s{STMO}, s{STMO}, 1"); A(f"s_cbranch_scc0 {top}")
        fail(A, 10)
        A.label(done)
        for t in fill[:4]: A(t)
        A("s_waitcnt vmcnt(0) lgkmcnt(0)")
    def flagwait(code):
        ok = A.new("fxok")
        A(f"v_cmp_ne_u32 vcc, 1, v{FLG}"); A(f"s_cbranch_vccz {ok}")
        if DIAG: A("s_add_u32 s57, s57, 1")
        p = Poll(A, code, sleep=2); p.begin()
        A(f"buffer_load_dword v{FLG}, v8, s[32:35], s{SFX} offen sc1")
        A("s_waitcnt vmcnt(0)")
        A(f"v_cmp_ne_u32 vcc, 1, v{FLG}")
        p.end()
        A.label(ok)
    def keys1(code):
        sk = A.new("k1")
        A("s_cmp_ge_u32 s73, 63"); A(f"s_cbranch_scc1 {sk}")
        flagwait(code); keys(1); A("s_add_u32 s73, s73, 1")
        A.label(sk)
    A(f"s_mov_b32 s{SNM}, s{SMS[0]}"); A(f"v_mov_b32 v{SG}, v{VSW}"); A(f"v_mov_b32 v{SG+1}, v1")
    st0 = A.new("st0")
    if not STG4: A(f"s_cmp_lt_u32 s{SW}, 2"); A(f"s_cbranch_scc1 {st0}")
    stage([])
    A.label(st0)
    A(f"s_cmp_eq_u32 s{SFAST}, 1"); A("s_cbranch_scc0 chainA_slow")
    for fast in (True, False):
        if not fast: A.label("chainA_slow")
        SF = "" if fast else " sc1"
        tops = [A.new("cabody0"), A.new("cabody1")]
        smstubs = []; fstubs = []
        for l in range(2):
            o = 1 - l; SS_ = (S0, S1)[l]
            mo = MST + l * 7168
            A.label(tops[l])
            fine(A, "a0")
            A("s_barrier")
            stamp(A, 0, 9)
            fine(A, "ab")
            for i in range(7): A(f"ds_read_b128 {v(mr(i),4)}, v2 offset:{mo + i*1024}")
            if STG2:
                for z in zero[16:]: A(z)
            if DIAG: A(f"s_add_u32 s{SK}, s{SS_}, {64*l}")
            if l == 0: A(f"s_cmp_ge_u32 s{S0}, {LY.LAG}")
            else: A(f"s_cmp_lt_u32 s{S0}, 63")
            A(f"s_cselect_b32 s{SALT}, 1, 0"); A(f"s_cselect_b32 s{STC}, s{STU[o]}, s{STU[l]}")
            A(f"s_cselect_b32 s77, s{SKB[o]}, {PART + 28672}")
            A(f"s_cselect_b32 s79, {7168 if o else 0}, {7168 if l else 0}")
            A(f"s_cselect_b32 s44, {448*1024}, 0"); A(f"s_cselect_b64 s[82:83], -1, 0")
            A(f"s_waitcnt vmcnt({3 if TOUCH == 1 and not TFIRST else 2})")
            book = {0: [f"s_add_u32 s{SMS[l]}, s{SMS[l]}, 7168", f"s_cmp_eq_u32 s{SALT}, 1", f"s_cselect_b32 s{SNM}, s{SMS[o]}, s{SMS[l]}"],
                    4: [f"s_add_u32 s{STU[o]}, s{STU[o]}, s44", f"s_sub_u32 s44, {448*1024}, s44", f"s_add_u32 s{STU[l]}, s{STU[l]}, s44"],
                    5: [f"v_add_u32 v{SG}, s79, v{VSW}"], 6: [f"v_add_u32 v{SG+1}, s79, v1"]}
            if l == 0:
                fr, fb = A.new("frt"), A.new("fbk"); fstubs.append((fr, fb))
                book[1] = [f"v_cmp_ne_u32 vcc, 1, v{FLG}"]
                book[2] = ["s_and_b64 vcc, vcc, s[82:83]", f"s_cbranch_vccnz {fr}", fb + ":"]
            nl = 7
            xk = lambda ks, tt: mr(ks * 2 + tt) if ks < 3 else mr(6) + tt * 2
            def post(j):
                r = ACC + j * 4
                ks, b = (j >> 1, j & 1) if j < 6 else (3, 0)
                return [f"v_add_f32 v{r}, v{r}, v{r+1}", f"v_add_f32 v{r+2}, v{r+2}, v{r+3}", f"v_cvt_pk_bf16_f32 v{r}, v{r}, v{r+2}",
                        f"ds_write_b32 v{VXW}, v{r} offset:{ks*512 + b*64}"]
            kb = l * 32768; d4 = l * 7168 // 4
            mk = []
            for ks in range(3):
                mk.append(f"ds_read2_b32 {v(MK+ks*4,2)}, v{VMA[ks]} offset0:0 offset1:4"); mk.append(f"ds_read2_b32 {v(MK+ks*4+2,2)}, v{VMA[ks]} offset0:1 offset1:5")
            mk.append(f"ds_read2_b32 {v(MK+12,2)}, v{VMA[3]} offset0:0 offset1:4")
            def tr(ks):
                return [f"ds_read_b64_tr_b16 {v(ACC+ks*8+hh*2,2)}, v{VXR} offset:{ks*512 + hh*64}" for hh in range(2 if ks < 3 else 1)]
            lds_ids = {}
            def emit(t, name=None):
                nonlocal nl
                A(t)
                if t.startswith("ds_"):
                    nl += 1
                    if name: lds_ids[name] = nl
            tch = f"buffer_load_dword v86, v87, s[32:35], s{STC} offen"
            def vmem_slot(g):
                if TOUCH == 1 and TFIRST and g == 0: A(tch)
                n = g - DOFF
                if n < 0: return
                if n % DSTEP == 0 and n // DSTEP < 8: A(f"s_add_u32 m0, s77, {(n // DSTEP)*1024}")
                if n % DSTEP == 1 and n // DSTEP < 8: A(dma(n // DSTEP, o)[2])
                if n == 7*DSTEP + 3: A(f"buffer_load_dword v{FLG}, v8, s[32:35], s{SFX} offen sc1")
                if TOUCH == 1 and not TFIRST and n == 7*DSTEP + 4: A(tch)
                if n == 7*DSTEP + 2:
                    A(f"s_cmp_eq_u32 s{SALT}, 1"); A("s_cselect_b32 s44, 28672, 0")
                    A(f"s_add_u32 s{SXS[o]}, s{SXS[o]}, s44"); A(f"s_add_u32 s{SXS[o]+1}, s{SXS[o]+1}, s44")
                    if o: A(f"s_lshl_b32 s44, s{SALT}, 2"); A(f"s_add_u32 s{SFX}, s{SFX}, s44"); A(f"s_add_u32 s73, s73, s{SALT}")
            assert DOFF + 7*DSTEP + 4 <= 48 and DOFF >= 3
            for i in range(5):
                A(f"s_waitcnt lgkmcnt({min(15, nl - 1 - i - (1 if i == 4 else 0) * 2)})")
                extra = dict(book) if i == 0 else {}
                if i == 1:
                    for q in range(7): extra[q] = [mk[q]]
                if i == 2:
                    if not DMODE: extra[0] = [f"s_waitcnt vmcnt({9 if TOUCH == 2 else 8})"]
                    pass
                if 2 <= i <= 4: extra.setdefault(1, []).append(f"ds_read_b128 {v(mr(i-2),4)}, v11 offset:{kb + (i-2)*1024}")
                if i == 4:
                    extra[3] = [f"ds_read_b128 {v(mr(3),4)}, v11 offset:{kb + 3*1024}"]
                    pass
                for j in range(7):
                    if not (os.environ.get("ASKIP") and i in (2, 3)): A(f"{SMF} {v(ACC+j*4,4)}, {v(mr(i),4)}, {wregA8(j,i)}, v{IDX}")
                    for t in extra.get(j, []): emit(t)
                    vmem_slot(i * 7 + j)
                fine(A, f"ag{i}")
            seq = []
            for j in range(7): seq += [(j, 5), (j, 6)]
            P_ = [post(j) for j in range(7)]
            fillers = {1: [f"ds_read_b128 {v(mr(4),4)}, v11 offset:{kb + 4*1024}"],
                       5: P_[0][:2], 6: P_[0][2:], 7: P_[1][:2], 8: P_[1][2:], 9: [("T0", x) for x in tr(0)],
                       10: P_[2][:2], 11: P_[2][2:], 12: P_[3][:2], 13: P_[3][2:] + [("T1", x) for x in tr(1)]}
            for n, (j, i) in enumerate(seq):
                A(f"{SMF} {v(ACC+j*4,4)}, {v(mr(i),4)}, {wregA8(j,i)}, v{IDX}")
                for t in fillers.get(n, []):
                    if isinstance(t, tuple): emit(t[1], t[0])
                    else: emit(t)
                vmem_slot(35 + n)
            stamp(A, 1, 9); fine(A, "a1")
            def sc(ks, name):
                A(f"s_waitcnt lgkmcnt({nl - lds_ids[name]})")
                op = MM if ks < 3 else MM16; w = 4 if ks < 3 else 2
                tb = ACC + ks * 8
                A(f"{op} {v(SC,4)}, {v(MK+ks*4,w)}, {v(tb,w)}, {v(SC,4) if ks else 0}")
                for tt in range(2):
                    A(f"{op} {v(SC+4+tt*4,4)}, {v(xk(ks,tt),w)}, {v(tb,w)}, {v(SC+4+tt*4,4) if ks else 0}")
            emit(f"ds_read_b128 {v(mr(5),4)}, v11 offset:{kb + 5*1024}")
            for tt in range(2): emit(f"ds_read_b64 {v(mr(6)+tt*2,2)}, v12 offset:{kb + (6+tt)*1024}")
            for q in range(4):
                emit(P_[4][q]); emit(P_[5][q])
            for x in tr(2): emit(x, "T2")
            sc(0, "T0")
            for x in P_[6]: emit(x)
            for x in tr(3): emit(x, "T3")
            sc(1, "T1")
            sc(2, "T2")
            sc(3, "T3")
            for z in zero[:5]: A(z)
            fine(A, "a2")
            for q in range(3): A(f"ds_write_b128 v3, {v(SC+q*4,4)} offset:{l*14336 + q*64}")
            el = A.new("el")
            if STG4 != 1:
                if not STG4: A(f"s_cmp_lt_u32 s{SW}, 2"); A(f"s_cbranch_scc{0 if l else 1} {el}")
                for t in mloads: A(t)
            A.label(el)
            for z in zero[5:12]: A(z)
            A("s_waitcnt lgkmcnt(0)")
            fine(A, "a3")
            A("s_barrier")
            fine(A, "a4")
            nosm = A.new("nosm"); join = A.new("join")
            A(f"s_cmp_lt_u32 s{SW}, 2"); A(f"s_cbranch_scc{1 if l else 0} {nosm}")
            T = SC
            A(f"ds_read2st64_b64 {v(T,4)}, v4 offset0:0 offset1:7")
            A(f"ds_read2st64_b64 {v(T+4,4)}, v4 offset0:14 offset1:21")
            A(f"ds_read2st64_b64 {v(T+8,4)}, v5 offset0:0 offset1:7")
            A(f"ds_read2st64_b64 {v(T+12,4)}, v5 offset0:14 offset1:21")
            if STG4 == 1:
                for t in mloads: A(t)
            for z in zero[12:19]: A(z)
            stamp(A, 2, 9)
            rest, stub = softmax16(A, T, VMK, zero[19:],
                             [f"buffer_store_dword v{T}, v6, s[32:35], s{SPC[l]} offen{SF}", f"buffer_store_dword v{T+8}, v7, s[32:35], s{SPC[l]} offen{SF}"], None)
            assert not rest
            stub.fill = zero[19:]; smstubs.append(stub)
            stamp(A, 3, 9); fine(A, "a6")
            if "as0" not in FINE: stamp_flush(A, 96)
            sj = A.new("sj"); ex = A.new("caend")
            A(f"s_cmp_eq_u32 s{SALT}, 1"); A(f"s_cbranch_scc1 {sj if STG4 else join}")
            if STG4: A(f"s_cmp_ge_u32 s{SS_}, 62"); A(f"s_cbranch_scc1 {ex}")
            if l == 0: keys(0)
            else:
                A("s_waitcnt vmcnt(0)")
                keys1(13)
            A("s_waitcnt vmcnt(0)")
            A.label(sj)
            if STG4: stage([], True, 2)
            A(f"s_branch {join}")
            A.label(nosm)
            alt = A.new("alt")
            A(f"s_cmp_eq_u32 s{SALT}, 1"); A(f"s_cbranch_scc1 {alt}")
            A(f"s_cmp_ge_u32 s{SS_}, 62"); A(f"s_cbranch_scc1 {ex}")
            if l == 0: keys(0)
            else:
                A("s_waitcnt vmcnt(0)")
                keys1(15)
            A.label(alt)
            if STG2: stage2(zero[12:])
            else: stage(zero[12:], STG4 != 1)
            A.label(join)
            A(f"s_add_u32 s{SPC[l]}, s{SPC[l]}, 10240"); A(f"s_add_u32 s{SS_}, s{SS_}, 1")
            sw = A.new("sw")
            A(f"s_cmp_eq_u32 s{SALT}, 1"); A(f"s_cbranch_scc1 {sw}")
            A(f"s_cmp_lt_u32 s{SS_}, 63"); A(f"s_cbranch_scc1 {tops[l]}")
            A.label(ex)
            event(A, SROLE, 4, 88)
            if EV:
                A("s_memtime s[100:101]"); A("s_waitcnt lgkmcnt(0)"); A("s_sub_u32 s100, s100, s84"); A("v_mov_b32 v88, s100")
                A("buffer_store_dword v88, v89, s[32:35], s99 offen offset:4")
                A("v_mov_b32 v90, s57"); A(f"s_lshl_b32 s44, s{SW}, 0"); A(f"s_cmp_lt_u32 s{SW}, 2"); A("s_cselect_b32 s44, 8, 12"); A("s_add_u32 s99, s99, s44")
                A("buffer_store_dword v90, v89, s[32:35], s99 offen")
            A("s_endpgm")
            A.label(sw)
            if EV:
                ne = A.new("ne")
                A(f"s_cmp_lg_u32 s{S0}, {LY.LAG + 1 if l == 0 else 62}"); A(f"s_cbranch_scc1 {ne}")
                event(A, SROLE, 2 + l, 88)
                A.label(ne)
            for q in range(4): A(f"v_add_u32 v{VMA[q]}, {7168 if l == 0 else -7168 & 0xffffffff}, v{VMA[q]}")
            A(f"s_branch {tops[o]}")
        for st_ in smstubs: st_()
        for fr, fb in fstubs:
            A.label(fr)
            if DIAG or EV: A("s_add_u32 s57, s57, 1")
            p = Poll(A, 16, sleep=2); p.begin()
            A(f"buffer_load_dword v{FLG}, v8, s[32:35], s{SFX} offen sc1")
            A("s_waitcnt vmcnt(0)")
            A(f"v_cmp_ne_u32 vcc, 1, v{FLG}")
            p.end()
            A(f"s_branch {fb}")

LP = (2, 5)
WBPOS = os.environ.get('WBPOS', 'late')
MSTART = int(os.environ.get('MSTART', '16'))
MGAP = int(os.environ.get('MGAP', '20'))
USTEP = int(os.environ.get('USTEP', '3'))
USTART = int(os.environ.get('USTART', '1'))
BTP = int(os.environ.get('BTP', '0'))
PSTEP = int(os.environ.get('PSTEP', '2'))
def load_B64_weights(A, SJ, wreg):
    for n in range(8):
        hh, ct = n >> 1, n & 1
        A(f"s_lshl_b32 s44, s{SJ}, 1"); A(f"s_add_u32 s44, s44, {ct}"); A("s_lshl_b32 s44, s44, 4")
        A(f"s_lshl_b32 s45, s{SW}, 2"); A("s_add_u32 s44, s44, s45"); A(f"s_add_u32 s44, s44, {hh}")
        A("s_mul_i32 s44, s44, 14336"); A(f"s_add_u32 s44, s44, {LY.BF}")
        for kk in range(14):
            p_, hf = kk >> 1, kk & 1
            A(f"s_add_u32 s45, s44, {kk*1024}")
            if p_ in LP:
                A(f"s_lshl_b32 s47, s{SW}, 15"); A(f"s_add_u32 m0, s47, {((LP.index(p_)*8 + n)*2 + hf)*1024}")
                A("s_nop 0")
                A(f"buffer_load_dwordx4 v2, s[32:35], s45 offen lds")
            else:
                A(f"buffer_load_dwordx4 {wreg(p_,n,hf)}, v2, s[32:35], s45 offen")

def w_smf(A, MR, WACC, WBUF, wreg, IDX, vw, vl, ustep, regfirst=False):
    sched = vl if isinstance(vl, dict) else None
    vl = [] if sched else list(vl); cnt = [0]
    def slot():
        cnt[0] += 1
        if sched:
            for x in sched.get(cnt[0], []): A(x)
            return
        if (cnt[0] in ustep if isinstance(ustep, (list, tuple)) else cnt[0] % ustep == 0) and vl: A(vl.pop(0))
    regp = [p_ for p_ in range(7) if p_ not in LP]
    regl = [(p_, n) for p_ in regp for n in range(8)]
    ldsl = [(p_, n) for p_ in LP for n in range(8)]
    mreg = MR if callable(MR) else (lambda p_: MR + p_ * 4)
    if regfirst:
        regl = [(0, n) for n in (2, 3, 4, 5, 6, 7, 0, 1)] + regl[8:]
        issued = [regs(v(mreg(p_), 4)) for p_ in regfirst]
        done = [0]
        class Tr:
            def __call__(self, text):
                A0(text)
                if text.startswith("ds_"): issued.append(Ins(text).ldst)
            def __getattr__(self, k): return getattr(A0, k)
        A0 = A; A = Tr()
        def smf(n, m, w):
            need_ = regs(m) | regs(w)
            last = max([i + 1 for i, d in enumerate(issued) if d & need_] + [0])
            if last > done[0]:
                A0(f"s_waitcnt lgkmcnt({min(15, len(issued) - last)})"); done[0] = last
            smf.k = getattr(smf, "k", 0) + 1
            if os.environ.get("WSKIP") and smf.k % 2: return
            A0(f"{SMF} {v(WACC+n*4,4)}, {m}, {w}, v{IDX}")
        def slot2():
            cnt[0] += 1
            for x in sched.get(cnt[0], []): A(x)
        for bq in range(4):
            for q in range(10):
                p_, n = regl[bq*10+q]
                smf(n, v(mreg(p_),4), wreg(p_,n))
                if q < 8: A(f"ds_read_b128 {v(WBUF+q*4,4)}, v{vw} offset:{(bq*8+q)*1024}")
                slot2()
            for q in range(4):
                p_, n = ldsl[bq*4+q]
                smf(n, v(mreg(p_),4), v(WBUF+q*8,8))
                slot2()
        return
    for bq in range(4):
        A("s_waitcnt lgkmcnt(0)")
        for q in range(4):
            p_, n = ldsl[bq*4+q]
            A(f"{SMF} {v(WACC+n*4,4)}, {v(mreg(p_),4)}, {v(WBUF+q*8,8)}, v{IDX}")
            slot()
        for q in range(10):
            p_, n = regl[bq*10+q]
            A(f"{SMF} {v(WACC+n*4,4)}, {v(mreg(p_),4)}, {wreg(p_,n)}, v{IDX}")
            if bq < 3 and q < 8: A(f"ds_read_b128 {v(WBUF+q*4,4)}, v{vw} offset:{((bq+1)*8+q)*1024}")
            slot()
    assert not vl

def chainB(A):
    SJ = 60
    SMS, SPC, SU, SWB, SFU = (62, 63), (70, 71), (72, 74), (78, 79), (80, 81)
    SFL, SFW = 82, 83
    WACC, PX, PM, WBUF, SG, FLG, IDX = 44, 76, 92, 96, 152, 10, 13
    WP, D = WACC, SG
    mreg = lambda p_: {2: 16, 5: 20, 0: 24, 1: 28, 3: 32, 4: 24, 6: 28}[p_]
    U1R = [36, 40, 128, 132, 136, 140, 144, 148]
    UREG = 0
    LRED = 131072; MST = LRED + 16384
    regp = [p_ for p_ in range(7) if p_ not in LP]
    def wreg(p_, n, hf=None):
        idx = regp.index(p_) * 8 + n
        o, c = (0, 8) if hf is None else (hf * 4, 4)
        return a(32 + idx * 8 + o, c) if idx < 28 else v(160 + (idx - 28) * 8 + o, c)
    A(f"s_sub_u32 s{SJ}, s{SRANK}, 16")
    load_B64_weights(A, SJ, wreg)
    A(f"s_lshl_b32 s45, s{SW}, 15"); A(f"v_add_u32 v3, s45, v2")
    A("v_and_b32 v9, 15, v1"); A("v_lshrrev_b32 v10, 4, v1")
    A(f"v_mov_b32 v11, {OOB}"); A("v_cmp_gt_u32 vcc, 8, v9")
    A("v_lshl_add_u32 v12, v10, 3, v9"); A("v_lshlrev_b32 v12, 4, v12")
    A(f"s_lshl_b32 s45, s{SW}, 11"); A("v_add_u32 v6, s45, v12"); A("v_cndmask_b32 v6, v11, v6, vcc")
    if P3:
        A("v_add_u32 v6, s45, v12"); A("v_add_u32 v7, 384, v6"); A("v_cndmask_b32 v6, v7, v6, vcc")
    A(f"s_lshl_b32 s45, s{SW}, 9"); A("s_add_u32 s45, s45, 8192"); A("v_add_u32 v7, s45, v12"); A("v_cndmask_b32 v7, v11, v7, vcc")
    A("v_bfe_u32 v9, v1, 2, 3"); A("v_and_b32 v10, 3, v1"); A("v_cmp_gt_u32 vcc, 32, v1")
    if MBDIR:
        A(f"s_lshl_b32 s45, s{SJ}, 9"); A(f"s_lshl_b32 s44, s{SW}, 7"); A("s_add_u32 s84, s45, s44"); A(f"s_add_u32 s84, s84, {LY.MB - LY.MS + 7168}")
    A("v_and_b32 v14, 1, v10"); A("v_lshl_add_u32 v14, v9, 1, v14"); A("v_lshlrev_b32 v14, 4, v14")
    A("v_lshrrev_b32 v15, 1, v10"); A("v_lshl_add_u32 v14, v15, 2, v14")
    A(f"s_lshl_b32 s45, s{SJ}, 9"); A(f"s_lshr_b32 s44, s{SW}, 1"); A("s_lshl_b32 s44, s44, 8"); A("s_add_u32 s45, s45, s44")
    A(f"s_and_b32 s44, s{SW}, 1"); A("s_lshl_b32 s44, s44, 3"); A("s_add_u32 s45, s45, s44"); A("s_add_u32 s45, s45, 7168")
    A("v_add_u32 v14, s45, v14"); A("v_cndmask_b32 v14, v11, v14, vcc")
    A("v_lshlrev_b32 v12, 10, v15"); A("v_lshl_add_u32 v12, v9, 4, v12"); A("v_and_b32 v15, 1, v10"); A("v_lshl_add_u32 v12, v15, 3, v12")
    A(f"s_lshl_b32 s45, s{SW}, 8"); A(f"s_add_u32 s45, s45, {LRED}"); A("v_add_u32 v12, s45, v12")
    A(f"s_lshl_b32 s45, s{SW}, 12"); A("v_add_u32 v8, s45, v2")
    A(f"s_lshl_b32 s45, s{SW}, 11"); A("v_add_u32 v4, s45, v2")
    A(f"s_cmp_eq_u32 s{SW}, 3"); A("s_cselect_b32 s45, 0, 1024"); A("v_add_u32 v15, s45, v4")
    A(f"v_add_u32 v11, {LRED}, v4")
    sparse_idx(A, IDX, 9)
    A(f"v_mov_b32 v{FLG}, 0")
    for l in range(2):
        A(f"s_mov_b32 s{SMS[l]}, {LY.MS + l*64*7168}")
        A(f"s_mov_b32 s{SPC[l]}, {LY.PC + l*64*10240}")
        A(f"s_lshl_b32 s45, s{SJ}, 15"); A(f"s_add_u32 s{SU[l]}, s45, {LY.U + l*64*448*1024}"); A(f"s_add_u32 s{SU[l]+1}, s{SU[l]}, 16384")
        A(f"s_mov_b32 s{SFU[l]}, {LY.GO + l*256}")
    A(f"s_mov_b32 s{SFL}, s{SFU[0]}")
    for q in range(5, 8): A(f"v_mov_b32 v{100+q}, v{q}")
    wait_all_registered(A, 3, True)
    for q in range(5, 8): A(f"v_mov_b32 v{q}, v{100+q}")
    A("s_waitcnt vmcnt(0)")
    flagloads = [f"buffer_load_dword v{FLG}, off, s[32:35], s{SFL} sc1"]
    def flagchk(): A(f"v_cmp_ne_u32 vcc, 1, v{FLG}")
    zero = [f"v_mov_b32 v{WACC+r}, 0" for r in range(32)]
    wb0 = [f"ds_read_b128 {v(WBUF+q*4,4)}, v3 offset:{q*1024}" for q in range(8)]
    mloads = lambda l: [f"buffer_load_dwordx4 {v(SG,4)}, v4, s[32:35], s{SMS[l]} offen sc1", f"buffer_load_dwordx4 {v(SG+4,4)}, v15, s[32:35], s{SMS[l]} offen sc1"]
    def mstage(l, code, first_try):
        ok = A.new("mok")
        if first_try:
            for t in chk_tree(A, range(SG, SG+8), 9): A(t)
            A(f"s_cbranch_vccz {ok}")
        p = Poll(A, code); p.begin()
        for t in mloads(l): A(t)
        A("s_waitcnt vmcnt(0)")
        for t in chk_tree(A, range(SG, SG+8), 9): A(t)
        p.end()
        A.label(ok)
        A(f"ds_write_b128 v4, {v(SG,4)} offset:{MST - 0 + l*7168}" if False else f"ds_write_b128 v0, {v(SG,4)} offset:{l*7168}")
        A(f"ds_write_b128 v5, {v(SG+4,4)} offset:{l*7168}")
    A(f"v_add_u32 v0, {MST}, v4"); A(f"v_add_u32 v5, {MST}, v15"); A(f"v_add_u32 v1, {MST}, v2")
    A(f"s_mov_b32 s{S0}, 0"); A(f"s_mov_b32 s{S1}, 0"); A(f"s_mov_b32 s{SPRE}, 0")
    A("s_mov_b32 s85, 0")
    for t in zero: A(t)
    event(A, SROLE, 1, 76)
    A(f"s_cmp_eq_u32 s{SFAST}, 1"); A("s_cbranch_scc0 chainB_slow")
    for fast in (True, False):
        if not fast: A.label("chainB_slow")
        SF = "" if fast else " sc1"
        tops = [A.new("cbbody0"), A.new("cbbody1")]
        for l in range(2):
            o = 1 - l; SS_ = (S0, S1)[l]; SO_ = (S0, S1)[o]
            A.label(tops[l])
            if DIAG: A(f"s_add_u32 s{SK}, s{SS_}, {64*l}")
            go = A.new("go")
            mrd1 = lambda ll, i: f"ds_read_b128 {v(mreg(i),4)}, v1 offset:{ll*7168 + i*1024}"
            mrd = lambda ll: [mrd1(ll, i) for i in (0, 1, 2)]
            A(f"s_cmp_eq_u32 s{SPRE}, 1"); A(f"s_cbranch_scc1 {go}")
            mstage(l, 20, False)
            A("s_waitcnt lgkmcnt(0)"); A("s_barrier")
            for t in mrd(l): A(t)
            A.label(go)
            stamp(A, 0, 9); fine(A, "b0")
            sk = A.new("ufl"); fr = A.new("frt")
            A("s_cmp_eq_u32 s85, 0"); A(f"s_cbranch_scc1 {fr}"); A.label(sk)
            fine(A, "b1")
            A(f"s_add_u32 s{SFU[l]}, s{SFU[l]}, 4")
            if not os.environ.get("UFIX"): A(f"s_add_u32 s{SU[l]}, s{SU[l]}, {448*1024}"); A(f"s_add_u32 s{SU[l]+1}, s{SU[l]+1}, {448*1024}")
            if l == 0: A(f"s_cmp_ge_u32 s{S0}, {LY.LAG}")
            else: A(f"s_cmp_lt_u32 s{S0}, 63")
            A(f"s_cselect_b32 s{SALT}, 1, 0"); A(f"s_cselect_b32 s{SFL}, s{SFU[o]}, s{SFU[l]}")
            ureg = lambda ll, hh, ct: v(U1R[hh*2+ct], 4) if ll else a(UREG + (hh * 2 + ct) * 4, 4)
            NPX = 2 if P3 else 4
            pxl = lambda hh: f"buffer_load_dwordx4 {v(PX+hh*4,4)}, v6, s[32:35], s{SPC[l]} offen offset:{hh*(1024 if P3 else 512)} sc1"
            pround = [f"buffer_load_dwordx4 {v(PM,4)}, v7, s[32:35], s{SPC[l]} offen sc1"] + [pxl(hh) for hh in range(NPX)]
            uls = lambda ll: [f"buffer_load_dwordx4 {ureg(ll,hh,ct)}, v8, s[32:35], s{SU[ll]+ct} offen offset:{hh*1024} sc1{os.environ.get('UFL', '')}" for hh in range(4) for ct in range(2)]
            mr_, mb_ = A.new("mrt"), A.new("mbk")
            ck = chk_tree(A, range(SG, SG+8), 9)
            sched = {}
            for q, x in enumerate(flagloads + mloads(o)): sched[MSTART + 2 * q] = [x]
            base = MSTART + MGAP
            def fst(name):
                names = [n for n in FINE.split(",") if n and n[0] == name[0]]
                return [f"s_memtime s[{90+2*names.index(name)}:{91+2*names.index(name)}]"] if DIAG and name in names else []
            sched[base] = fst("bw0") + ["s_waitcnt vmcnt(0)"] + fst("bw1") + [ck[0]]
            for q in range(1, 5): sched[base + q] = [ck[q]]
            sched[base + 5] = [f"s_and_b64 vcc, vcc, s[88:89]", f"s_cbranch_vccnz {mr_}", mb_ + ":"]
            sched[base + 6] = [f"ds_write_b128 v0, {v(SG,4)} offset:{o*7168}"]; sched[base + 7] = [f"ds_write_b128 v5, {v(SG+4,4)} offset:{o*7168}"]
            assert base + 7 < 56 - PSTEP * 5
            for q, x in enumerate(pround): sched[56 - PSTEP * (len(pround) - q)] = [x]
            sched.setdefault(9, []).append(mrd1(l, 3)); sched.setdefault(10, []).append(mrd1(l, 4)); sched.setdefault(23, []).append(mrd1(l, 6))
            sched.setdefault(24, []).append(mrd1(l, 5))
            for q in range(4): sched.setdefault(1 + q, []).extend(zero[2*q:2*q+2])
            A(f"s_cselect_b64 s[88:89], -1, 0")
            w_smf(A, mreg, WACC, WBUF, wreg, IDX, 3, sched, None, (0, 1, 2))
            fine(A, "bw2")
            for n in range(8):
                r = WACC + n*4
                A(f"v_add_f32 v{r}, v{r}, v{r+1}"); A(f"v_add_f32 v{r+2}, v{r+2}, v{r+3}")
            for n in range(8):
                hh, ct = n >> 1, n & 1
                A(f"v_cvt_pk_bf16_f32 v{WP+ct*4+hh}, v{WACC+n*4}, v{WACC+n*4+2}")
            nxt = A.new("cbnext"); pok = A.new("pok"); redo = A.new("redo"); fin = A.new("fin")
            fine(A, "bw3")
            A(f"v_readfirstlane_b32 s85, v{FLG}"); A(f"s_and_b32 s85, s85, s{SALT}")
            stamp(A, 1, 9); fine(A, "b2")
            A(f"s_waitcnt vmcnt({NPX})")
            pchk = chk_tree(A, list(range(PM, PM+4)), 9)
            for t in pchk: A(t)
            A(f"s_cbranch_vccz {pok}")
            if EV: A("s_add_u32 s57, s57, 256")
            p = Poll(A, 22); p.begin()
            for t in pround: A(t)
            A(f"s_waitcnt vmcnt({NPX})")
            for t in pchk: A(t)
            p.end()
            A.label(pok)
            stamp(A, 2, 9); fine(A, "b3")
            def final_mm(zf, ul):
                zf = list(zf); ul = list(ul); nu = 0
                for ct in range(2):
                    A(f"{MM} {v(D+ct*4,4)}, {v(WP+ct*4,4)}, {v(PM,4)}, 0")
                    if ul: A(ul.pop(0)); nu += 1
                DB = PX + 8
                for hh in ((1, 0, 3, 2) if P3 else range(4)):
                    if not P3: A(f"s_waitcnt vmcnt({3 - hh + nu})")
                    elif hh & 1: A(f"s_waitcnt vmcnt({1 - (hh >> 1) + nu})")
                    for ct in range(2):
                        dd = (DB if P3 and hh & 1 else D) + ct*4
                        A(f"{MM} {v(dd,4)}, {ureg(l,hh,ct)}, {v(PX+(hh >> 1 if P3 else hh)*4,4)}, {0 if P3 and hh == 1 else v(dd,4)}")
                        if ul: A(ul.pop(0)); nu += 1
                        elif zf: A(zf.pop(0))
                for t in zf[:6]: A(t)
                if P3:
                    for r in range(8): A(f"v_add_f32_dpp v{D+r}, v{DB+r}, v{D+r} row_ror:8 row_mask:0xf bank_mask:0xf")
                fine(A, "b4")
                for ct in range(2): A(f"ds_write_b128 v11, {v(D+ct*4,4)} offset:{l*8192 + ct*1024}")
                for t in zf[6:]: A(t)
                A("s_waitcnt lgkmcnt(0)"); fine(A, "b5"); A("s_barrier"); fine(A, "b6")
                A(f"ds_read2st64_b64 {v(D,4)}, v12 offset0:{16*l} offset1:{16*l+4}")
                A(f"ds_read2st64_b64 {v(D+4,4)}, v12 offset0:{16*l+8} offset1:{16*l+12}")
            def final_sum_():
                A(f"v_pk_add_f32 {v(D,2)}, {v(D,2)}, {v(D+2,2)}")
                A(f"v_pk_add_f32 {v(D+4,2)}, {v(D+4,2)}, {v(D+6,2)}")
                A(f"v_pk_add_f32 {v(D,2)}, {v(D,2)}, {v(D+4,2)}")
            plain = A.new("pl"); fj = A.new("fj")
            A("s_cmp_eq_u32 s85, 0"); A(f"s_cbranch_scc1 {plain}")
            final_mm(zero[8:24], uls(o))
            A(f"s_branch {fj}")
            A.label(plain)
            final_mm(zero[8:24], [])
            A.label(fj)
            for t in mrd(o): A(t)
            for t in zero[24:]: A(t)
            A("s_waitcnt lgkmcnt(3)")
            final_sum_()
            A(f"v_cmp_u_f32 vcc, v{D}, v{D+1}")
            A(f"v_cvt_pk_bf16_f32 v{D+2}, v{D}, v{D+1}")
            A(f"s_cbranch_vccnz {redo}")
            A.label(fin)
            A(f"buffer_store_dword v{D+2}, v14, s[32:35], s{SMS[l]} offen{SF}")
            if MBDIR:
                A(f"s_add_u32 s44, s{SMS[l]}, s84"); A(f"v_lshrrev_b32 v{D+3}, 2, v2"); A("s_mov_b32 exec_hi, 0")
                A(f"buffer_store_dword v{D+2}, v{D+3}, s[32:35], s44 offen sc1"); A("s_mov_b32 exec_hi, -1")
            stamp(A, 3, 9); fine(A, "b7")
            if EV and not DIAG:
                A(f"s_add_u32 s{SK}, s{SS_}, 1"); stampB(A, l, 92)
            stamp_flush(A, 76)
            A.label(nxt)
            A(f"s_mov_b32 s{SPRE}, s{SALT}")
            A(f"s_add_u32 s{SMS[l]}, s{SMS[l]}, 7168")
            A(f"s_add_u32 s{SPC[l]}, s{SPC[l]}, 10240");
            A(f"s_add_u32 s{SS_}, s{SS_}, 1")
            A(f"s_cmp_eq_u32 s{SALT}, 1"); A(f"s_cbranch_scc1 {tops[o]}")
            A(f"s_cmp_lt_u32 s{SS_}, 63"); A(f"s_cbranch_scc1 {tops[l]}")
            if EV:
                event(A, SROLE, 4, 92); A("v_mov_b32 v94, s57"); A("buffer_store_dword v94, v93, s[32:35], s99 offen offset:8")
            A("s_endpgm")
            A.label(fr)
            if EV: A("s_add_u32 s57, s57, 1")
            p = Poll(A, 21, sleep=2); p.begin()
            for t in flagloads: A(t)
            A("s_waitcnt vmcnt(0)")
            flagchk()
            p.end()
            for t in uls(l): A(t)
            A(f"s_branch {sk}")
            A.label(mr_)
            p = Poll(A, 24); p.begin()
            for t in mloads(o): A(t)
            A("s_waitcnt vmcnt(0)")
            for t in ck: A(t)
            p.end()
            A(f"s_branch {mb_}")
            A.label(redo)
            if DIAG: A("s_add_u32 s57, s57, 1")
            p = Poll(A, 23); p.begin()
            for hh in range(NPX): A(pxl(hh))
            A("s_waitcnt vmcnt(0)")
            for t in chk_tree(A, range(PX, PX+4*NPX), 9): A(t)
            p.end()
            A("s_waitcnt lgkmcnt(0)"); A("s_barrier")
            final_mm([], [])
            A("s_waitcnt lgkmcnt(0)")
            final_sum_()
            A(f"v_cvt_pk_bf16_f32 v{D+2}, v{D}, v{D+1}")
            A(f"v_min_u32 v{D+2}, -2, v{D+2}")
            A(f"s_branch {fin}")

def touch_lines(A, vaddr, vd, soff, n):
    for q in range(n):
        A(f"buffer_load_dword v{vd}, v{vaddr}, s[32:35], s{soff} offen")
        if q < n - 1: A(f"s_add_u32 s{soff}, s{soff}, 8192")

def chainR(A):
    wait_all_registered(A, 4, True)
    A(f"s_cmp_eq_u32 s{SRANK}, 31"); A("s_cbranch_scc1 r_chainG")
    if MBDIR: A("s_endpgm")
    A(f"s_lshl_b32 s45, s{SW}, 11"); A("v_add_u32 v3, s45, v2")
    A(f"s_cmp_eq_u32 s{SW}, 3"); A("s_cselect_b32 s44, 0, 1024"); A("v_add_u32 v4, s44, v3")
    A("v_lshrrev_b32 v8, 4, v1"); A("v_lshlrev_b32 v8, 8, v8"); A("v_and_b32 v9, 7, v1"); A("v_lshl_add_u32 v8, v9, 5, v8")
    A("v_bfe_u32 v9, v1, 3, 1"); A("v_lshl_add_u32 v8, v9, 3, v8"); A("v_add_u32 v8, s45, v8"); A("v_add_u32 v9, s44, v8")
    A(f"s_mov_b32 s{SLY}, 0"); A(f"s_mov_b32 s{SSG}, 0")
    top = A.new("rr"); A.label(top)
    next_phase(A, SLY, SSG, SNL, SNS)
    A(f"s_mov_b32 s{SLY}, s{SNL}"); A(f"s_mov_b32 s{SSG}, s{SNS}")
    A(f"s_cmp_ge_u32 s{SSG}, 64"); A("s_cbranch_scc1 k1_exit")
    A(f"s_cmp_eq_u32 s{SSG}, 0"); A(f"s_cbranch_scc1 {top}")
    ls_off(A, 60, SLY, SSG, 7168, LY.MS); A(f"s_add_u32 s61, s60, {LY.MB - LY.MS}")
    p = Poll(A, 70); p.begin()
    A("buffer_load_dwordx4 v[12:15], v3, s[32:35], s60 offen sc1"); A("buffer_load_dwordx4 v[16:19], v4, s[32:35], s60 offen sc1")
    A("s_waitcnt vmcnt(0)")
    for t in chk_tree(A, range(12, 20), 10): A(t)
    p.end()
    A("ds_write_b128 v3, v[12:15]"); A("ds_write_b128 v4, v[16:19]")
    A("ds_read2_b32 v[20:21], v8 offset0:0 offset1:4"); A("ds_read2_b32 v[22:23], v8 offset0:1 offset1:5")
    A("ds_read2_b32 v[24:25], v9 offset0:0 offset1:4"); A("ds_read2_b32 v[26:27], v9 offset0:1 offset1:5")
    A("s_waitcnt lgkmcnt(2)"); A("buffer_store_dwordx4 v[20:23], v3, s[32:35], s61 offen sc1")
    A("s_waitcnt lgkmcnt(0)"); A("buffer_store_dwordx4 v[24:27], v4, s[32:35], s61 offen sc1")
    A(f"s_branch {top}")
    A.label("r_chainG")
    A("v_min_u32 v3, 27, v1"); A("v_lshlrev_b32 v3, 7, v3"); A("v_lshlrev_b32 v4, 7, v1"); A("v_mov_b32 v8, 0"); A("v_mov_b32 v9, 1")
    A("s_mov_b32 s60, 0")
    A(f"s_lshl_b32 s62, s{SW}, 8"); A(f"s_add_u32 s62, s62, {LY.GO}")
    def go_store():
        sl = A.new("gs"); dn = A.new("gd")
        A("s_mov_b64 exec, 1")
        A(f"s_cmp_eq_u32 s{SFAST}, 1"); A(f"s_cbranch_scc0 {sl}")
        A("buffer_store_dword v9, v8, s[32:35], s62 offen"); A(f"s_branch {dn}")
        A.label(sl); A("buffer_store_dword v9, v8, s[32:35], s62 offen sc1")
        A.label(dn); A("s_mov_b64 exec, -1"); A("s_add_u32 s62, s62, 4")
    A(f"s_cmp_ge_u32 s{SW}, 2"); A("s_cbranch_scc1 r_chainX")
    A(f"s_mul_i32 s61, s{SW}, {64*3584}"); A(f"s_add_u32 s61, s61, {LY.FU}")
    top = A.new("gu"); A.label(top)
    p = Poll(A, 71, sleep=1); p.begin()
    A("buffer_load_dwordx4 v[12:15], v3, s[32:35], s61 offen sc1"); A("s_waitcnt vmcnt(0)")
    A("v_and_b32 v12, v12, v13"); A("v_and_b32 v14, v14, v15"); A("v_and_b32 v12, v12, v14"); A("v_cmp_ne_u32 vcc, 1, v12")
    p.end()
    go_store()
    A("s_add_u32 s61, s61, 3584"); A("s_add_u32 s60, s60, 1"); A("s_cmp_lt_u32 s60, 63"); A(f"s_cbranch_scc1 {top}")
    A("s_endpgm")
    A.label("r_chainX")
    A(f"s_cmp_eq_u32 s{SW}, 3"); A("s_cbranch_scc1 r_chainT")
    A(f"s_mov_b32 s61, {LY.FX}"); A(f"s_mov_b32 s63, {LY.XS + 64*28672}")
    top = A.new("gx"); A.label(top)
    p = Poll(A, 72, sleep=1); p.begin()
    A("buffer_load_dword v12, v3, s[32:35], s61 offen sc1"); A("s_waitcnt vmcnt(0)"); A("v_cmp_ne_u32 vcc, 1, v12")
    p.end()
    if XFAST: go_store()
    A("s_mov_b32 s64, s63"); touch_lines(A, 4, 13, 64, 4)
    if not XFAST:
        A("s_waitcnt vmcnt(0)")
        go_store()
    A("s_add_u32 s61, s61, 3584"); A("s_add_u32 s63, s63, 28672"); A("s_add_u32 s60, s60, 1"); A("s_cmp_lt_u32 s60, 63"); A(f"s_cbranch_scc1 {top}")
    A("s_endpgm")
    A.label("r_chainT")
    WL = int(os.environ.get("WLEAD", "1"))
    A(f"s_mov_b32 s61, {LY.MS}")
    A(f"s_mov_b32 s64, {LY.XS + 28672}"); touch_lines(A, 4, 13, 64, 8)
    A(f"s_mov_b32 s64, {LY.PC}"); touch_lines(A, 4, 13, 64, 3)
    A(f"s_mov_b32 s64, {LY.MS}"); touch_lines(A, 4, 13, 64, 3)
    A(f"s_mov_b32 s63, {LY.XS + (WL+1)*28672}")
    A(f"s_mov_b32 s65, {LY.PC + WL*10240}"); A(f"s_mov_b32 s66, {LY.MS + (WL+1)*7168}")
    A(f"s_mov_b32 s67, {LY.PC + 64*10240}"); A(f"s_mov_b32 s68, {LY.MS + 65*7168}"); A(f"s_mov_b32 s69, {LY.XS + (64 + (1 if WL == 0 else 0))*28672}")
    top = A.new("gt"); A.label(top)
    p = Poll(A, 73, sleep=4); p.begin()
    A("buffer_load_dword v12, v8, s[32:35], s61 offen sc1"); A("s_waitcnt vmcnt(0)"); A("v_cmp_eq_u32 vcc, -1, v12")
    p.end()
    if EV:
        A("s_memtime s[70:71]"); A(f"s_mul_i32 s64, s60, {448*1024}"); A(f"s_add_u32 s64, s64, {LY.U + 3*448*1024}")
        A("s_waitcnt lgkmcnt(0)"); touch_lines(A, 4, 13, 64, 1); A("s_waitcnt vmcnt(0)"); A("s_memtime s[72:73]"); A("s_waitcnt lgkmcnt(0)")
        A("s_sub_u32 s72, s72, s70"); A("v_mov_b32 v14, s72"); A("s_lshl_b32 s64, s60, 2"); A(f"s_add_u32 s64, s64, {LY.DBG + 131072}")
        A("buffer_store_dword v14, v8, s[32:35], s64 offen")
    A("s_mov_b32 s64, s65"); touch_lines(A, 4, 13, 64, 2)
    A("s_mov_b32 s64, s66"); touch_lines(A, 4, 13, 64, 1)
    n1 = A.new("n1")
    A(f"s_cmp_lt_u32 s60, {LY.LAG - WL}"); A(f"s_cbranch_scc1 {n1}")
    A("s_mov_b32 s64, s67"); touch_lines(A, 4, 13, 64, 2)
    A("s_mov_b32 s64, s68"); touch_lines(A, 4, 13, 64, 1)
    A("s_mov_b32 s64, s69"); touch_lines(A, 4, 13, 64, 4)
    A("s_add_u32 s67, s67, 10240"); A("s_add_u32 s68, s68, 7168"); A("s_add_u32 s69, s69, 28672")
    A.label(n1)
    A("s_mov_b32 s64, s63"); touch_lines(A, 4, 13, 64, 4)
    A("s_add_u32 s65, s65, 10240"); A("s_add_u32 s66, s66, 7168")
    A("s_add_u32 s61, s61, 7168"); A("s_add_u32 s63, s63, 28672"); A("s_add_u32 s60, s60, 1"); A("s_cmp_lt_u32 s60, 64"); A(f"s_cbranch_scc1 {top}")
    touch_lines(A, 4, 13, 67, (LY.LAG * 10240) // 8192 + 1)
    touch_lines(A, 4, 13, 68, (LY.LAG * 7168) // 8192 + 1)
    A("s_endpgm")

def gen_k1(A, name, roles):
    kernel_head(A, name)
    dispatch(A)
    A("s_mov_b32 s76, 4096"); A("s_mov_b32 s77, 8192"); A("s_mov_b32 s57, 0")
    A(f"s_cmp_lt_u32 s{SROLE}, 16"); A("s_cbranch_scc1 r_chainA")
    A(f"s_cmp_lt_u32 s{SROLE}, 30"); A("s_cbranch_scc1 r_chainB")
    A(f"s_cmp_lt_u32 s{SROLE}, 32"); A("s_cbranch_scc1 r_chainR")
    if GATE:
        ng = A.new("ng")
        A(f"s_cmp_lt_u32 s{SROLE}, 64"); A(f"s_cbranch_scc1 {ng}")
        A(f"s_cmp_ge_u32 s{SRANK}, 28"); A(f"s_cselect_b32 s44, 3, s{SROLE}"); A(f"s_cmp_lt_u32 s{SROLE}, 96"); A(f"s_cselect_b32 s44, s{SROLE}, s44")
        A("s_lshr_b32 s45, s44, 5"); A("s_cmp_eq_u32 s45, 3"); A(f"s_cbranch_scc1 {ng}"); A("s_cmp_eq_u32 s44, 3"); A(f"s_cbranch_scc1 {ng}")
        A(f"s_mov_b32 s44, {LY.CNT + 31*128}")
        p = Poll(A, 5, sleep=16); p.begin()
        A("buffer_load_dword v3, off, s[32:35], s44 sc1"); A("s_waitcnt vmcnt(0)"); A("v_cmp_ne_u32 vcc, 1, v3")
        p.end()
        A.label(ng)
    for lo, hi, lab in roles:
        A(f"s_cmp_lt_u32 s{SROLE}, {hi}"); A(f"s_cbranch_scc1 {lab}")
    A.label("k1_exit")
    A("s_endpgm")
    A.label("k1_fail")
    A(f"s_lshl_b32 s55, s{SROLE}, 16"); A(f"s_lshl_b32 s56, s{SK}, 8"); A("s_or_b32 s54, s54, s55"); A("s_or_b32 s54, s54, s56")
    A("v_mov_b32 v3, s54"); A("s_and_b32 s55, s54, 15"); A("s_lshl_b32 s55, s55, 2"); A("v_mov_b32 v4, s55")
    A("buffer_store_dword v3, v4, s[36:39], 0 offen")
    A("s_endpgm")
    A.label("r_chainA"); chainA(A)
    A.label("r_chainB"); chainB(A)
    A.label("r_chainR"); chainR(A)
    return kernel_desc(name, 512, 256)
```
